```python
import torch

def _softmax(x, axis=-1):
    return torch.softmax(x, dim=axis)
def _gelu(x):
    return torch.nn.functional.gelu(x, approximate="tanh")
def _silu(x):
    return torch.nn.functional.silu(x)
def _sigmoid(x):
    return torch.sigmoid(x)
def _layernorm(x, axis=-1, eps=1e-5):
    m = x.mean(dim=axis, keepdim=True)
    v = x.var(dim=axis, keepdim=True, unbiased=False)
    return (x - m) / torch.sqrt(v + eps)
def _scatter_add(tgt, idx, src, axis=0):
    return tgt.clone().index_add_(axis, idx, src)
def _segment_sum(src, seg, n):
    out = torch.zeros((n,) + src.shape[1:], dtype=src.dtype)
    return out.index_add_(0, seg, src)
def _pad(x, pw):
    flat = tuple(v for pair in reversed(pw) for v in pair)
    return torch.nn.functional.pad(x, flat)

kernel_name = 'concat_heads__gqa_block_cached__gqa_block_cached__near_ridge'

def setup_inputs():

    _w = (lambda a: (lambda t: t.to(torch.bfloat16) if t.is_floating_point() else t)(torch.as_tensor(a)))
    def _A_setup():
        B, Sq, D = 16, 128, 448
        Hq, Hkv, Sk, Dh = 16, 8, 512, 256
        assert Hq % Hkv == 0, (Hq, Hkv)
        return {
            "x": _w((lambda *s: torch.randn(*s, dtype=torch.bfloat16) * 0.8)(B, Sq, D)),
            "k_cache": _w((lambda *s: torch.randn(*s, dtype=torch.bfloat16) * 0.8)(B, Hkv, Sk, Dh)),
            "v_cache": _w((lambda *s: torch.randn(*s, dtype=torch.bfloat16) * 0.05)(B, Hkv, Sk, Dh)),
            "wq": _w((lambda *s: torch.randn(*s, dtype=torch.bfloat16) * 0.8)(D, Hq * Dh) * (D ** -0.5)),
            "wo": _w((lambda *s: torch.randn(*s, dtype=torch.bfloat16) * 0.05)(Hq * Dh, D) * ((Hq * Dh) ** -0.5)),
        }
    _A_in = _A_setup()

    def _B_setup():
        B, Sq, D = 16, 128, 448
        Hq, Hkv, Sk, Dh = 16, 8, 512, 256
        assert Hq % Hkv == 0, (Hq, Hkv)
        return {
            "x": _w((lambda *s: torch.randn(*s, dtype=torch.bfloat16) * 0.8)(B, Sq, D)),
            "k_cache": _w((lambda *s: torch.randn(*s, dtype=torch.bfloat16) * 0.8)(B, Hkv, Sk, Dh)),
            "v_cache": _w((lambda *s: torch.randn(*s, dtype=torch.bfloat16) * 0.05)(B, Hkv, Sk, Dh)),
            "wq": _w((lambda *s: torch.randn(*s, dtype=torch.bfloat16) * 0.8)(D, Hq * Dh) * (D ** -0.5)),
            "wo": _w((lambda *s: torch.randn(*s, dtype=torch.bfloat16) * 0.05)(Hq * Dh, D) * ((Hq * Dh) ** -0.5)),
        }
    _B_in = _B_setup()

    return {
        "A_x": _A_in["x"],
        "A_k_cache": _A_in["k_cache"],
        "A_v_cache": _A_in["v_cache"],
        "A_wq": _A_in["wq"],
        "A_wo": _A_in["wo"],
        "B_x": _B_in["x"],
        "B_k_cache": _B_in["k_cache"],
        "B_v_cache": _B_in["v_cache"],
        "B_wq": _B_in["wq"],
        "B_wo": _B_in["wo"],
    }

def reference(A_x, A_k_cache, A_v_cache, A_wq, A_wo, B_x, B_k_cache, B_v_cache, B_wq, B_wo):
    def _A_ref(x, k_cache, v_cache, wq, wo):
        B, Sq, D = x.shape
        Hq, Dh = 16, 256
        Hkv = k_cache.shape[1]
        rep = Hq // Hkv
        q = (lambda x, *d: x.permute(*d))((x @ wq).reshape(B, Sq, Hq, Dh), 0, 2, 1, 3)
        k = (lambda x, n, axis: torch.repeat_interleave(x, n, dim=axis))(k_cache, rep, axis=1)
        v = (lambda x, n, axis: torch.repeat_interleave(x, n, dim=axis))(v_cache, rep, axis=1)
        scores = torch.einsum("bhqd,bhkd->bhqk", q, k) * (Dh ** -0.5)
        p = _softmax(scores, axis=-1)
        o = torch.einsum("bhqk,bhkd->bhqd", p, v)
        return (lambda x, *d: x.permute(*d))(o, 0, 2, 1, 3).reshape(B, Sq, Hq * Dh) @ wo

    def _B_ref(x, k_cache, v_cache, wq, wo):
        B, Sq, D = x.shape
        Hq, Dh = 16, 256
        Hkv = k_cache.shape[1]
        rep = Hq // Hkv
        q = (lambda x, *d: x.permute(*d))((x @ wq).reshape(B, Sq, Hq, Dh), 0, 2, 1, 3)
        k = (lambda x, n, axis: torch.repeat_interleave(x, n, dim=axis))(k_cache, rep, axis=1)
        v = (lambda x, n, axis: torch.repeat_interleave(x, n, dim=axis))(v_cache, rep, axis=1)
        scores = torch.einsum("bhqd,bhkd->bhqk", q, k) * (Dh ** -0.5)
        p = _softmax(scores, axis=-1)
        o = torch.einsum("bhqk,bhkd->bhqd", p, v)
        return (lambda x, *d: x.permute(*d))(o, 0, 2, 1, 3).reshape(B, Sq, Hq * Dh) @ wo

    a = _A_ref(A_x, A_k_cache, A_v_cache, A_wq, A_wo)
    b = _B_ref(B_x, B_k_cache, B_v_cache, B_wq, B_wo)
    return torch.concatenate([a, b], axis=-1)
```

```python
class R:
    __slots__ = ("k", "b", "n")

    def __init__(self, k, b, n=1):
        self.k, self.b, self.n = k, b, n

    def __str__(self):
        if self.n == 1:
            return f"{self.k}{self.b}"
        return f"{self.k}[{self.b}:{self.b + self.n - 1}]"

    def regs(self):
        return {(self.k, self.b + i) for i in range(self.n)}

    def __getitem__(self, i):
        if isinstance(i, slice):
            st = i.start or 0
            return R(self.k, self.b + st, i.stop - st)
        assert 0 <= i < self.n
        return R(self.k, self.b + i, 1)


def V(b, n=1):
    return R("v", b, n)


def A(b, n=1):
    return R("a", b, n)


def S(b, n=1):
    return R("s", b, n)


def _regs(xs):
    out = set()
    for x in xs:
        if isinstance(x, R):
            out |= x.regs()
    return out


class Ins:
    __slots__ = ("text", "kind", "defs", "uses", "cuse", "tag", "cost", "abuse")

    def __init__(self, text, kind, defs=(), uses=(), cuse=(), tag=None, cost=4, abuse=()):
        self.text = text
        self.kind = kind
        self.defs = _regs(defs)
        self.uses = _regs(uses)
        self.cuse = _regs(cuse)
        self.abuse = _regs(abuse)
        self.tag = tag
        self.cost = cost


TRANS = {"v_exp_f32", "v_rcp_f32", "v_log_f32", "v_rsq_f32", "v_sqrt_f32"}


def valu(op, dst, *srcs, extra_defs=(), extra_uses=()):
    ops = ", ".join(str(x) for x in (dst,) + srcs)
    uses = []
    txt = [str(dst)]
    for s in srcs:
        if isinstance(s, tuple):
            txt.append(s[0] + str(s[1]))
            uses.append(s[1])
        else:
            txt.append(str(s))
            uses.append(s)
    kind = "trans" if op in TRANS else "valu"
    return Ins(f"{op} " + ", ".join(txt), kind, defs=[dst] + list(extra_defs),
               uses=uses + list(extra_uses), cost=8 if kind == "trans" else 4)


def mfma(D, Aop, Bop, C):
    cu = [C] if isinstance(C, R) else []
    return Ins(f"v_mfma_f32_32x32x16_bf16 {D}, {Aop}, {Bop}, {C}", "mfma", defs=[D],
               uses=[Aop, Bop] + cu, cuse=cu, abuse=[Aop, Bop], cost=8)


def ds_read_b128(dst, addr, off):
    assert 0 <= off < 65536, off
    return Ins(f"ds_read_b128 {dst}, {addr} offset:{off}", "ds", defs=[dst], uses=[addr])


def ds_read_tr(dst, addr, off):
    assert 0 <= off < 65536, off
    return Ins(f"ds_read_b64_tr_b16 {dst}, {addr} offset:{off}", "ds", defs=[dst], uses=[addr])


def salu(text, defs=(), uses=()):
    return Ins(text, "salu", defs=defs, uses=uses, cost=2)


def setm0(text):
    i = Ins(text, "salu", cost=2)
    i.defs = {("m0", 0)}
    return i


def dma(voff, srd, soff, off=0, tag=None):
    assert 0 <= off < 4096
    t = f"buffer_load_dwordx4 {voff}, {srd}, {soff} offen"
    if off:
        t += f" offset:{off}"
    t += " lds"
    i = Ins(t, "dma", uses=[voff, srd, soff], tag=tag, cost=16)
    i.uses |= {("m0", 0)}
    return i


def bload(dst, voff, srd, soff, off=0, tag=None, n=4):
    assert 0 <= off < 4096
    op = {4: "buffer_load_dwordx4", 2: "buffer_load_dwordx2", 1: "buffer_load_dword"}[n]
    t = f"{op} {dst}, {voff}, {srd}, {soff} offen"
    if off:
        t += f" offset:{off}"
    return Ins(t, "vmem", defs=[dst], uses=[voff, srd, soff], tag=tag, cost=8)


def bstore(src, voff, srd, soff, off=0, n=4, flags=""):
    assert 0 <= off < 4096
    op = {4: "buffer_store_dwordx4", 2: "buffer_store_dwordx2", 1: "buffer_store_dword"}[n]
    t = f"{op} {src}, {voff}, {srd}, {soff} offen"
    if off:
        t += f" offset:{off}"
    if flags:
        t += " " + flags
    return Ins(t, "store", uses=[src, voff, srd, soff], cost=8)


def raw(text, kind="other", **kw):
    return Ins(text, kind, **kw)


def label(name):
    return Ins(name + ":", "label", cost=0)


class Group:
    def __init__(self, items):
        self.items = items
        self.cost = sum(x.cost for x in items)
        self.kind = "group"


def flatten(stream):
    out = []
    for it in stream:
        if isinstance(it, Group):
            out.extend(flatten(it.items))
        else:
            out.append(it)
    return out


class WaitVM:
    def __init__(self, tag):
        self.tag = tag
        self.cost = 4
        self.kind = "pseudo"


class WaitAll:
    def __init__(self, vm=True, lgkm=True):
        self.vm, self.lgkm = vm, lgkm
        self.cost = 4
        self.kind = "pseudo"


def finalize(stream):
    stream = flatten(stream)
    out = []
    dsq = []
    vmq = []

    def emit_wait(vm=None, lg=None):
        parts = []
        if vm is not None:
            parts.append(f"vmcnt({min(vm, 63)})")
        if lg is not None:
            parts.append(f"lgkmcnt({min(lg, 15)})")
        out.append(Ins("s_waitcnt " + " ".join(parts), "wait"))

    for it in stream:
        if isinstance(it, WaitVM):
            idx = None
            for i, (tag, _) in enumerate(vmq):
                if tag == it.tag or (isinstance(it.tag, (tuple, list, set)) and tag in it.tag):
                    idx = i
            if idx is not None:
                cnt = len(vmq) - 1 - idx
                emit_wait(vm=cnt)
                del vmq[: idx + 1]
            continue
        if isinstance(it, WaitAll):
            emit_wait(vm=0 if it.vm else None, lg=0 if it.lgkm else None)
            if it.vm:
                vmq.clear()
            if it.lgkm:
                dsq.clear()
            continue
        touched = it.uses | it.defs
        idx = None
        for i, d in enumerate(dsq):
            if d & touched:
                idx = i
        lg = None
        if idx is not None:
            lg = len(dsq) - 1 - idx
            del dsq[: idx + 1]
        idx = None
        for i, (_, d) in enumerate(vmq):
            if d & touched:
                idx = i
        vm = None
        if idx is not None:
            vm = len(vmq) - 1 - idx
            del vmq[: idx + 1]
        if lg is not None or vm is not None:
            emit_wait(vm=vm, lg=lg)
        out.append(it)
        if it.kind == "ds":
            dsq.append(set(it.defs))
        elif it.kind == "vmem":
            vmq.append((it.tag, set(it.defs)))
        elif it.kind in ("dma", "store"):
            vmq.append((it.tag, set()))

    res = []
    hist = []
    pos = 0

    def need(it):
        req = 0
        isvalu = it.kind in ("valu", "trans", "perm")
        for prev, p in reversed(hist):
            dist = pos - p - 1
            if dist >= 20:
                break
            r = 0
            pk = prev.kind
            if pk in ("valu", "trans", "perm"):
                if it.kind == "mfma" and (prev.defs & it.uses):
                    r = max(r, 2)
                if pk == "trans" and isvalu and it.kind != "trans" and (prev.defs & it.uses):
                    r = max(r, 1)
                if pk == "trans" and it.kind == "trans" and (prev.defs & it.uses):
                    r = max(r, 1)
                if it.kind == "perm" and (prev.defs & (it.uses | it.defs)):
                    r = max(r, 2)
                sdefs = {x for x in prev.defs if x[0] in ("s", "vcc")}
                if sdefs:
                    if isvalu and (sdefs & it.uses):
                        r = max(r, 2)
                    if it.kind in ("vmem", "dma", "store") and (sdefs & it.uses):
                        r = max(r, 5)
                    if it.kind == "salu" and (sdefs & it.uses):
                        r = max(r, 2)
                if it.text.startswith("v_readfirstlane") and (prev.defs & it.uses):
                    r = max(r, 1)
            if pk == "mfma":
                if it.kind == "mfma":
                    if prev.defs & it.abuse:
                        r = max(r, 12)
                    if (prev.defs & it.cuse) and prev.defs != it.cuse:
                        r = max(r, 10)
                elif isvalu or it.kind in ("vmem", "dma", "store", "ds"):
                    if prev.defs & (it.uses | it.defs):
                        r = max(r, 12)
                    if isvalu and (prev.cuse & it.defs):
                        r = max(r, 7)
            if pk == "salu" and ("m0", 0) in prev.defs and it.kind == "dma":
                r = max(r, 1)
            if pk == "store" and (prev.uses & it.defs):
                r = max(r, 2)
            req = max(req, r - dist)
        return req

    for it in out:
        if it.kind == "label":
            res.append(it.text)
            continue
        n = need(it)
        while n > 0:
            k = min(n, 16)
            res.append(f"  s_nop {k - 1}")
            pos += k
            n -= k
        res.append("  " + it.text)
        hist.append((it, pos))
        if it.kind == "nop":
            pos += it.cost
        else:
            pos += 1
        if len(hist) > 40:
            del hist[:10]
    return res


def nop(n):
    return Ins(f"s_nop {n - 1}", "nop", cost=n)


def interleave(slots, fillers, cap=24, start=0, end=None):
    n = len(slots)
    if end is None:
        end = n
    free = []
    for i, sl in enumerate(slots):
        f = sum(x.cost for x in sl if x.kind != "mfma")
        free.append(max(cap - f, 2) if start <= i < end else 0)
    tot_free = sum(free)
    tot_fill = sum(x.cost for x in fillers)
    out = []
    cum_free = 0
    cum_fill = 0
    k = 0
    for i, sl in enumerate(slots):
        out.extend(sl)
        cum_free += free[i]
        target = tot_fill * cum_free / tot_free if tot_free else 0
        while k < len(fillers) and (cum_fill + fillers[k].cost / 2 <= target or (i == end - 1)):
            if free[i] == 0:
                break
            out.append(fillers[k])
            cum_fill += fillers[k].cost
            k += 1
    assert k == len(fillers), (k, len(fillers))
    return out
```

```python
import math
import struct
import sys
import os

sys.path.insert(0, os.path.dirname(os.path.abspath(__file__)))
from asmir import *

NAME = "concat_heads__gqa_block_cached__gqa_block_cached__near_ridge"
K1 = NAME + "_kernel"
K2 = "reduce_out_kernel"


def f32bits(x):
    return struct.unpack("<I", struct.pack("<f", x))[0]


CSCALE = math.log2(math.e) / 16.0
TLOG2 = 8.0
TRAW = TLOG2 / CSCALE

SRD_X, SRD_K, SRD_V, SRD_WQ, SRD_WO, SRD_WS = (S(16, 4), S(20, 4), S(24, 4), S(28, 4), S(32, 4), S(36, 4))
sW, sG, sB, sBLK, sC = S(40), S(41), S(42), S(43), S(44)
sM0WQ, sOFFWQ, sM0K, sM0V, sOFFKV = S(45), S(46), S(47), S(48), S(49)
sT0, sT1 = S(50), S(51)
sMASK0, sMASK1 = S(52, 2), S(54, 2)
sFLAG = S(56)
sRET = S(58, 2)
sM0WO = S(60)
sOFFWS = S(61)
sTRAW = S(62)

def Qf(qb, s):
    return V((qb * 16 + s) * 4, 4)


def Xf(s):
    return V(s * 4, 4)


def Of(ks):
    return V(ks * 4, 4)


def Sb(p, qb):
    return V(128 + p * 32 + qb * 16, 16)


def Kf(i):
    return V(192 + (i % 4) * 4, 4)


def Vf(i):
    return V(208 + (i % 4) * 4, 4)


def Wf(i):
    return V(192 + (i % 8) * 4, 4)


vAK, vAV, vOFFKV, vL16 = V(224), V(225), V(226), V(227)
vM = [V(228), V(229)]
vTHR = [V(230), V(231)]
vL = [V(232), V(233)]
vAL = [V(234), V(235)]
vT = [V(236), V(237)]
vU = [V(238), V(239)]
vTMP = V(240, 8)
vMR = [V(248), V(249)]
vAWQ = V(250)
vAWO0, vAWO1 = V(251), V(252)
vWOFF = [V(240 + i) for i in range(7)]
vX = V(128, 16)

KSTR, VSTR = 1040, 1088
KSLOT, VSLOT = 16 * KSTR, 16 * VSTR
KS = [i * KSLOT for i in range(4)]
VBASE = 4 * KSLOT
VS = [i * VSLOT for i in range(4)]
P1BASE = VBASE + VSLOT
P1S = [i * VSLOT for i in range(4)]
WOSLOT = 28672
LDS_BYTES = 163840
assert P1BASE + 4 * VSLOT <= LDS_BYTES


def Oacc(dt, qb):
    return A((dt * 2 + qb) * 16, 16)


def Qacc(nt):
    return A(nt * 16, 16)


def Wacc(t):
    return A(t * 16, 16)


def barrier():
    return raw("s_barrier", "other", cost=4)


def dma_wq(s):
    out = []
    for i in range(4):
        out.append(setm0(f"s_add_u32 m0, {sM0WQ}, {P1S[s % 4] + i * VSTR}"))
        out.append(salu(f"s_add_u32 {sT0}, {sOFFWQ}, {(16 * s + i) * 8192}", defs=[sT0]))
        out.append(dma(vL16, SRD_WQ, sT0, tag=("wq", s)))
    return out


def dma_k(j):
    out = [salu(f"s_add_u32 {sT1}, {sOFFKV}, {j * 16384}", defs=[sT1])]
    for i in range(4):
        out.append(setm0(f"s_add_u32 m0, {sM0K}, {KS[j % 4] + i * (KSTR - 512)}"))
        out.append(dma(vOFFKV, SRD_K, sT1, off=i * 512, tag=("k", j)))
    return out


def dma_v(j):
    out = [salu(f"s_add_u32 {sT1}, {sOFFKV}, {j * 16384}", defs=[sT1])]
    for i in range(4):
        out.append(setm0(f"s_add_u32 m0, {sM0V}, {VBASE + VS[j % 4] + i * (VSTR - 512)}"))
        out.append(dma(vOFFKV, SRD_V, sT1, off=i * 512, tag=("v", j)))
    return out


def dma_wo(st):
    out = [salu(f"s_mov_b32 {sT1}, {st * 28672}", defs=[sT1])]
    for i in range(7):
        out.append(setm0(f"s_add_u32 m0, {sM0WO}, {(st % 4) * WOSLOT + i * 1024}"))
        out.append(dma(vWOFF[i], SRD_WO, sT1, tag=("wo", st)))
    return out


def rd_wq(f):
    s, nt = divmod(f, 16)
    d = Wf(f)
    off = P1S[s % 4] + nt * 64
    return [ds_read_tr(d[0:2], vAWQ, off), ds_read_tr(d[2:4], vAWQ, off + 4 * VSTR)]


def rd_k(j, s):
    return [ds_read_b128(Kf(s), vAK, KS[j % 4] + s * 32)]


def rd_v(j, f):
    dt, ks = divmod(f, 2)
    d = Vf(f)
    off = VS[j % 4] + ks * 512 + dt * 64
    return [ds_read_tr(d[0:2], vAV, off), ds_read_tr(d[2:4], vAV, off + 4 * VSTR)]


def rd_wo(f):
    st, r = divmod(f, 28)
    ks, t = divmod(r, 14)
    half, tt = divmod(t, 7)
    slot = st % 4
    base = vAWO0 if slot < 2 else vAWO1
    off = (slot % 2) * WOSLOT + half * 14336 + ks * 7168 + tt * 64
    d = Wf(f)
    return [ds_read_tr(d[0:2], base, off), ds_read_tr(d[2:4], base, off + 4 * 448)]


def sm_max(p):
    out = []
    for qb in range(2):
        s_ = Sb(p, qb)
        t = vT[qb]
        out.append(valu("v_max3_f32", t, s_[0], s_[1], s_[2]))
        for r in range(3, 15, 2):
            out.append(valu("v_max3_f32", t, t, s_[r], s_[r + 1]))
        out.append(valu("v_max_f32", t, t, s_[15]))
    for qb in range(2):
        out.append(valu("v_mov_b32", vU[qb], vT[qb]))
    for qb in range(2):
        out.append(Ins(f"v_permlane32_swap_b32 {vT[qb]}, {vU[qb]}", "perm", defs=[vT[qb], vU[qb]],
                       uses=[vT[qb], vU[qb]]))
    for qb in range(2):
        out.append(valu("v_max_f32", vT[qb], vT[qb], vU[qb]))
    return out


def sm_check(first):
    out = []
    if first:
        for qb in range(2):
            out.append(valu("v_mov_b32", vMR[qb], vT[qb]))
            out.append(valu("v_mul_f32", vM[qb], sC, vT[qb]))
            out.append(valu("v_add_f32", vTHR[qb], sTRAW, vT[qb]))
            out.append(valu("v_mov_b32", vL[qb], 0))
        return out
    out.append(valu("v_cmp_gt_f32", sMASK0, vT[0], vTHR[0]))
    out.append(valu("v_cmp_gt_f32", sMASK1, vT[1], vTHR[1]))
    global _lbl
    _lbl += 1
    out.append(Group([
        salu(f"s_or_b64 {sMASK0}, {sMASK0}, {sMASK1}", defs=[sMASK0], uses=[sMASK0, sMASK1]),
        salu(f"s_cbranch_scc0 L_noslow{_lbl}"),
        Ins(f"s_call_b64 {sRET}, L_slow", "salu", cost=2,
            defs=vM + vTHR + vL + vAL + vMR + vU, uses=vM + vTHR + vL + vT + vMR),
        label(f"L_noslow{_lbl}")]))
    return out


_lbl = 0


def sm_exp(p, qb, grp):
    s_ = Sb(p, qb)
    out = []
    rs = range(4 * grp, 4 * grp + 4)
    for r in rs:
        out.append(valu("v_fma_f32", s_[r], s_[r], sC, ("-", vM[qb])))
    for r in rs:
        out.append(valu("v_exp_f32", s_[r], s_[r]))
    for r in rs:
        out.append(valu("v_add_f32", vL[qb], vL[qb], s_[r]))
    ks, g2 = divmod(grp, 2)
    for jj in range(2):
        j = 2 * g2 + jj
        out.append(valu("v_cvt_pk_bf16_f32", s_[8 * ks + j], s_[8 * ks + 2 * j], s_[8 * ks + 2 * j + 1]))
    return out


def Pf(p, qb, ks):
    return Sb(p, qb)[8 * ks: 8 * ks + 4]


def resc_check():
    global _lbl
    _lbl += 1
    allO = [A(0, 256)]
    return [
        salu(f"s_cmp_eq_u32 {sFLAG}, 0", uses=[sFLAG]),
        salu(f"s_cbranch_scc1 L_nores{_lbl}"),
        Ins(f"s_call_b64 {sRET}, L_resc", "salu", cost=2),
        label(f"L_nores{_lbl}"),
    ]


NG1 = 3


def softmax1(j):
    p = j % 2
    out = sm_max(p) + sm_check(j == 0)
    for gi in range(NG1):
        out += sm_exp(p, gi // 4, gi % 4)
    return out


def softmax2(j):
    p = j % 2
    out = []
    for gi in range(NG1, 8):
        out += sm_exp(p, gi // 4, gi % 4)
    return out


def gen_k1():
    st = []
    e = st.append
    ext = st.extend
    e(salu("s_cmp_ge_u32 s2, 256"))
    e(salu("s_cbranch_scc1 L_end"))
    e(salu(f"s_and_b32 {sG}, s2, 7"))
    e(salu(f"s_lshr_b32 {sB}, s2, 3"))
    e(salu(f"s_and_b32 {sB}, {sB}, 15"))
    e(salu(f"s_lshr_b32 {sBLK}, s2, 7"))
    e(salu(f"s_load_dwordx2 s[14:15], s[0:1], 96"))
    e(salu(f"s_mul_i32 s3, {sBLK}, 40"))
    e(salu("s_add_u32 s0, s0, s3"))
    e(salu("s_addc_u32 s1, s1, 0"))
    e(salu("s_load_dwordx8 s[4:11], s[0:1], 0"))
    e(salu("s_load_dwordx2 s[12:13], s[0:1], 32"))
    lane, tA, tB, tC, tD = V(240), V(241), V(242), V(243), V(244)
    e(valu("v_and_b32", lane, 63, V(0)))
    e(valu("v_lshrrev_b32", tA, 6, V(0)))
    e(Ins(f"v_readfirstlane_b32 {sW}, {tA}", "valu", defs=[sW], uses=[tA]))
    e(valu("v_lshlrev_b32", vL16, 4, lane))
    e(valu("v_lshrrev_b32", tA, 5, lane))
    e(valu("v_and_b32", tB, 31, lane))
    e(valu("v_lshlrev_b32", tC, 13, tA))
    e(valu("v_lshl_add_u32", vOFFKV, tB, 4, tC))
    e(valu("v_and_b32", tC, 3, tB))
    e(valu("v_and_b32", tD, 4, tB))
    e(valu("v_lshl_add_u32", tC, tD, 1, tC))
    e(valu("v_and_b32", tD, 8, tB))
    e(valu("v_lshrrev_b32", tD, 1, tD))
    e(valu("v_add_u32", tC, tC, tD))
    e(valu("v_mul_u32_u24", vAK, KSTR, tC))
    e(valu("v_lshrrev_b32", tD, 4, tB))
    e(valu("v_lshl_add_u32", vAK, tD, 9, vAK))
    e(valu("v_lshl_add_u32", vAK, tA, 4, vAK))
    e(valu("v_bfe_u32", tC, lane, 2, 2))
    e(valu("v_lshl_add_u32", tC, tA, 3, tC))
    e(valu("v_and_b32", tD, 1, lane))
    e(valu("v_lshlrev_b32", tD, 4, tD))
    e(valu("v_and_b32", tB, 2, lane))
    e(valu("v_lshl_add_u32", tD, tB, 2, tD))
    e(valu("v_bfe_u32", tB, lane, 4, 1))
    e(valu("v_lshl_add_u32", tD, tB, 5, tD))
    e(valu("v_mul_u32_u24", vAV, VSTR, tC))
    e(valu("v_add_u32", vAV, vAV, tD))
    e(valu("v_add_u32", vAWQ, P1BASE, vAV))
    e(valu("v_add_u32", vAV, VBASE, vAV))
    e(valu("v_mul_u32_u24", vAWO0, 448, tC))
    e(valu("v_add_u32", vAWO0, vAWO0, tD))
    e(valu("v_add_u32", vAWO1, 2 * WOSLOT, vAWO0))
    e(valu("v_and_b32", tB, 31, lane))
    e(valu("v_lshrrev_b32", tC, 6, V(0)))
    e(valu("v_lshl_add_u32", tB, tC, 5, tB))
    e(valu("v_mul_u32_u24", tB, 896, tB))
    vXOFF = V(245)
    e(valu("v_lshl_add_u32", vXOFF, tA, 4, tB))
    e(salu(f"s_mov_b32 {sC}, {f32bits(CSCALE):#x}"))
    e(salu(f"s_mov_b32 {sTRAW}, {f32bits(TRAW):#x}"))
    e(salu(f"s_mov_b32 {sFLAG}, 0"))
    e(salu(f"s_mul_i32 {sM0WQ}, {sW}, {4 * VSTR}", uses=[sW]))
    e(salu(f"s_mov_b32 {sM0V}, {sM0WQ}"))
    e(salu(f"s_add_u32 {sM0WQ}, {sM0WQ}, {P1BASE}"))
    e(salu(f"s_lshl_b32 {sOFFWQ}, {sW}, 15"))
    e(salu(f"s_mul_i32 {sM0K}, {sW}, {4 * KSTR}"))
    e(salu(f"s_lshl_b32 {sOFFKV}, {sW}, 11"))
    e(salu(f"s_mul_i32 {sM0WO}, {sW}, {7 * 1024}"))
    e(salu(f"s_mul_i32 {sOFFWS}, {sW}, {14 * 4096}"))
    e(raw("s_waitcnt lgkmcnt(0)", "wait"))

    def srd(d, ptr_lo, off_expr_reg, size):
        e(salu(f"s_add_u32 s{d.b}, s{ptr_lo}, {off_expr_reg}"))
        e(salu(f"s_addc_u32 s{d.b + 1}, s{ptr_lo + 1}, 0"))
        e(salu(f"s_mov_b32 s{d.b + 2}, {size}"))
        e(salu(f"s_mov_b32 s{d.b + 3}, 0x00020000"))

    e(salu(f"s_mul_i32 s3, {sB}, 114688"))
    srd(SRD_X, 4, "s3", 114688)
    e(salu(f"s_lshl_b32 s3, {sB}, 3"))
    e(salu(f"s_add_u32 s3, s3, {sG}"))
    e(salu(f"s_lshl_b32 s3, s3, 18"))
    srd(SRD_K, 6, "s3", 262144)
    srd(SRD_V, 8, "s3", 262144)
    e(salu(f"s_lshl_b32 s3, {sG}, 10"))
    srd(SRD_WQ, 10, "s3", 447 * 8192 + 1024)
    e(salu(f"s_mul_i32 s3, {sG}, 458752"))
    srd(SRD_WO, 12, "s3", 458752)
    e(salu(f"s_mul_i32 s3, s2, 229376"))
    srd(SRD_WS, 14, "s3", 229376)

    ext(dma_wq(0))
    for s in range(28):
        e(bload(Xf(s), vXOFF, SRD_X, 0, off=s * 32, tag=("x", s)))
    ext(dma_wq(1))
    ext(dma_wq(2))
    kvpre = dma_k(0) + dma_k(1) + dma_k(2) + dma_v(0) + dma_k(3)
    kvgroups = [dma_k(0), dma_k(1), dma_k(2), dma_v(0), dma_k(3)]
    kv_at = {3: 0, 7: 1, 11: 2, 15: 3, 19: 4}
    LA = 6
    e(WaitVM(("wq", 0)))
    e(barrier())
    for f in range(LA):
        ext(rd_wq(f))
    for s in range(28):
        slots = []
        for nt in range(16):
            f = 16 * s + nt
            sl = [mfma(Qacc(nt), Wf(f), Xf(s), Qacc(nt) if s > 0 else 0)]
            if f + LA < 448:
                sl += rd_wq(f + LA)
            if nt == 3 and s + 1 < 28:
                sl += [WaitVM(("wq", s + 1)), barrier()]
            slots.append(sl)
        fill = []
        if s + 3 < 28:
            fill += dma_wq(s + 3)
        if s in kv_at:
            fill += kvgroups[kv_at[s]]
        ext(interleave(slots, fill, start=4, end=14))

    e(WaitVM(("k", 0)))
    e(barrier())
    ext(dma_v(1))
    for s3 in range(3):
        ext(rd_k(0, s3))
    for qb in range(2):
        for s in range(16):
            acc = Qacc(qb * 8 + s // 2)
            for ee in range(8):
                e(valu("v_accvgpr_read_b32", vX[(s % 2) * 8 + ee], acc[(s % 2) * 8 + ee]))
            for jj in range(4):
                e(valu("v_cvt_pk_bf16_f32", Qf(qb, s)[jj], vX[(s % 2) * 8 + 2 * jj], vX[(s % 2) * 8 + 2 * jj + 1]))

    lane2, t1, t2, t3 = vX[0], vX[1], vX[2], vX[3]
    e(valu("v_lshrrev_b32", lane2, 4, vL16))
    e(salu(f"s_and_b32 s3, {sW}, 1"))
    e(salu(f"s_mul_i32 s3, s3, 448"))
    e(salu(f"s_lshr_b32 {sT0}, {sW}, 1"))
    e(salu(f"s_mul_i32 {sT0}, {sT0}, 448"))
    e(salu(f"s_mov_b32 {sT1}, 9363"))
    for i in range(7):
        e(valu("v_add_u32", t1, S(3), lane2))
        e(valu("v_add_u32", t1, 64 * i, t1))
        e(valu("v_mul_lo_u32", t2, t1, sT1))
        e(valu("v_lshrrev_b32", t2, 18, t2))
        e(valu("v_mul_u32_u24", t3, 28, t2))
        e(valu("v_sub_u32", t3, t1, t3))
        e(valu("v_mul_u32_u24", t2, 896, t2))
        e(valu("v_lshl_add_u32", t2, t3, 4, t2))
        e(valu("v_add_u32", vWOFF[i], sT0, t2))

    for j in range(17):
        p = j % 2
        fillA = softmax2(j - 1) if j >= 1 else []
        if j < 16:
            slots = []
            for s in range(16):
                for qb in range(2):
                    sl = [mfma(Sb(p, qb), Kf(s), Qf(qb, s), Sb(p, qb) if s > 0 else 0)]
                    if qb == 0:
                        if s + 3 < 16:
                            sl += rd_k(j, s + 3)
                        elif j >= 1:
                            sl += rd_v(j - 1, s + 3 - 16)
                    slots.append(sl)
            ext(interleave(slots, fillA, start=0, end=30))
        else:
            for f in range(3):
                ext(rd_v(j - 1, f))
            ext(fillA)
        if j >= 2:
            ext(resc_check())
        sync = []
        waits = []
        if j + 1 < 16:
            waits.append(("k", j + 1))
        if j < 16:
            waits.append(("v", j))
        grp = []
        if j + 4 < 16:
            grp += dma_k(j + 4)
        if j + 2 < 16:
            grp += dma_v(j + 2)
        if j == 13:
            grp += dma_wo(0)
        if j == 15:
            grp += dma_wo(1) + dma_wo(2)
        if j == 16:
            grp += dma_wo(3)
        sync = ([WaitVM(waits)] if waits else []) + [barrier()]
        fillB = softmax1(j) if j < 16 else []
        if j >= 1:
            slots = []
            for f in range(16):
                dt, ks = divmod(f, 2)
                for qb in range(2):
                    sl = [mfma(Oacc(dt, qb), Vf(f), Pf(1 - p, qb, ks),
                               Oacc(dt, qb) if (j > 1 or ks > 0) else 0)]
                    if qb == 0:
                        if f + 3 < 16:
                            sl += rd_v(j - 1, f + 3)
                        elif j + 1 < 16:
                            sl += rd_k(j + 1, f + 3 - 16)
                    if f == 0 and qb == 1:
                        sl += sync
                    slots.append(sl)
            body = interleave(slots, grp + fillB, start=2, end=32)
            ext(body)
        else:
            ext(sync)
            ext(grp)
            for s3 in range(3):
                ext(rd_k(1, s3))
            ext(fillB)

    for qb in range(2):
        e(valu("v_mov_b32", vU[qb], vL[qb]))
    for qb in range(2):
        e(Ins(f"v_permlane32_swap_b32 {vL[qb]}, {vU[qb]}", "perm", defs=[vL[qb], vU[qb]], uses=[vL[qb], vU[qb]]))
    for qb in range(2):
        e(valu("v_add_f32", vL[qb], vL[qb], vU[qb]))
    for qb in range(2):
        e(valu("v_rcp_f32", vL[qb], vL[qb]))
    e(WaitVM(("wo", 0)))
    e(barrier())
    LA = 6
    for f in range(LA):
        ext(rd_wo(f))
    for ksg in range(32):
        qb, s = divmod(ksg, 16)
        dt, hf = divmod(s, 2)
        acc = Oacc(dt, qb)
        tb = (ksg % 2) * 8
        for ee in range(8):
            e(valu("v_accvgpr_read_b32", vX[tb + ee], acc[hf * 8 + ee]))
        for ee in range(8):
            e(valu("v_mul_f32", vX[tb + ee], vX[tb + ee], vL[qb]))
        for jj in range(4):
            e(valu("v_cvt_pk_bf16_f32", Of(ksg)[jj], vX[tb + 2 * jj], vX[tb + 2 * jj + 1]))

    for stg in range(16):
        slots = []
        for r in range(28):
            f = 28 * stg + r
            ks, t = divmod(r, 14)
            ksg = 2 * stg + ks
            sl = [mfma(Wacc(t), Wf(f), Of(ksg), Wacc(t) if ksg > 0 else 0)]
            if f + LA < 448:
                sl += rd_wo(f + LA)
            if r == 3 and stg + 1 < 16:
                sl += [WaitVM(("wo", stg + 1)), barrier()]
            slots.append(sl)
        fill = []
        if stg >= 1 and stg + 3 < 16:
            fill += dma_wo(stg + 3)
        ext(interleave(slots, fill, start=4, end=22))

    for t in range(14):
        e(salu(f"s_add_u32 {sT0}, {sOFFWS}, {t * 4096}", defs=[sT0]))
        for c in range(4):
            e(bstore(Wacc(t)[4 * c: 4 * c + 4], vL16, SRD_WS, sT0, off=c * 1024))
    e(label("L_end"))
    e(raw("s_endpgm"))

    lines = finalize(st)

    sub = []
    s_ = sub.append
    s_(label("L_slow"))
    s_(nop(2))
    for qb in range(2):
        s_(valu("v_max_f32", vMR[qb], vMR[qb], vT[qb]))
        s_(valu("v_mul_f32", vU[qb], sC, vMR[qb]))
        s_(valu("v_sub_f32", vAL[qb], vM[qb], vU[qb]))
        s_(valu("v_exp_f32", vAL[qb], vAL[qb]))
        s_(valu("v_mov_b32", vM[qb], vU[qb]))
        s_(valu("v_add_f32", vTHR[qb], sTRAW, vMR[qb]))
        s_(valu("v_mul_f32", vL[qb], vL[qb], vAL[qb]))
    s_(salu(f"s_mov_b32 {sFLAG}, 1"))
    s_(nop(2))
    s_(raw(f"s_setpc_b64 {sRET}"))
    s_(label("L_resc"))
    s_(nop(16))
    tt = [vU[0], vU[1], vT[0], vT[1]]
    for dt in range(8):
        for qb in range(2):
            acc = Oacc(dt, qb)
            for r0 in range(0, 16, 4):
                for k in range(4):
                    s_(valu("v_accvgpr_read_b32", tt[k], acc[r0 + k]))
                for k in range(4):
                    s_(valu("v_mul_f32", tt[k], tt[k], vAL[qb]))
                for k in range(4):
                    s_(valu("v_accvgpr_write_b32", acc[r0 + k], tt[k]))
    s_(salu(f"s_mov_b32 {sFLAG}, 0"))
    s_(nop(4))
    s_(raw(f"s_setpc_b64 {sRET}"))
    lines += finalize(sub)
    return lines


def gen_k2():
    st = []
    e = st.append
    e(salu("s_cmp_ge_u32 s2, 896"))
    e(salu("s_cbranch_scc1 L2_end"))
    e(salu("s_load_dwordx2 s[4:5], s[0:1], 80"))
    e(salu("s_load_dwordx2 s[6:7], s[0:1], 96"))
    e(salu("s_and_b32 s8, s2, 1"))
    e(salu("s_lshr_b32 s9, s2, 1"))
    e(salu("s_mul_i32 s10, s9, 4682"))
    e(salu("s_lshr_b32 s10, s10, 16"))
    e(salu("s_mul_i32 s11, s10, 14"))
    e(salu("s_sub_u32 s11, s9, s11"))
    lane, w, t1, t2 = V(1), V(2), V(3), V(4)
    e(valu("v_and_b32", lane, 63, V(0)))
    e(valu("v_lshrrev_b32", w, 6, V(0)))
    e(valu("v_mul_u32_u24", t1, 14 * 4096, w))
    e(valu("v_lshl_add_u32", t1, lane, 4, t1))
    e(salu("s_lshl_b32 s12, s11, 12"))
    e(salu("s_lshl_b32 s13, s8, 11"))
    e(salu("s_add_u32 s12, s12, s13"))
    e(valu("v_add_u32", t1, S(12), t1))
    e(salu("s_and_b32 s13, s10, 15"))
    e(salu("s_lshr_b32 s14, s10, 4"))
    e(salu("s_mul_i32 s13, s13, 229376"))
    e(salu("s_mul_i32 s14, s14, 896"))
    e(salu("s_add_u32 s13, s13, s14"))
    e(salu("s_lshl_b32 s14, s11, 6"))
    e(salu("s_add_u32 s13, s13, s14"))
    e(salu("s_lshl_b32 s14, s8, 5"))
    e(salu("s_add_u32 s13, s13, s14"))
    e(valu("v_and_b32", t2, 31, lane))
    e(valu("v_lshl_add_u32", t2, w, 5, t2))
    e(valu("v_mul_u32_u24", t2, 1792, t2))
    e(valu("v_lshrrev_b32", lane, 5, lane))
    e(valu("v_lshl_add_u32", t2, lane, 4, t2))
    e(valu("v_add_u32", t2, S(13), t2))
    e(raw("s_waitcnt lgkmcnt(0)", "wait"))
    e(salu("s_mov_b32 s16, s4"))
    e(salu("s_mov_b32 s17, s5"))
    e(salu(f"s_mov_b32 s18, {16 * 128 * 896 * 2}"))
    e(salu("s_mov_b32 s19, 0x00020000"))
    e(salu(f"s_mul_i32 s14, s10, {8 * 229376}"))
    e(salu("s_add_u32 s20, s6, s14"))
    e(salu("s_addc_u32 s21, s7, 0"))
    e(salu(f"s_mov_b32 s22, {8 * 229376}"))
    e(salu("s_mov_b32 s23, 0x00020000"))
    so, sw = S(16, 4), S(20, 4)
    for g in range(8):
        e(salu(f"s_mov_b32 s{24 + g}, {g * 229376}"))
    for g in range(8):
        for cc in range(2):
            e(bload(V(8 + g * 8 + cc * 4, 4), t1, sw, S(24 + g), off=cc * 1024))
    for g in range(1, 8):
        for k in range(8):
            e(valu("v_add_f32", V(8 + k), V(8 + k), V(8 + g * 8 + k)))
    for jj in range(4):
        e(valu("v_cvt_pk_bf16_f32", V(4 + 0 + jj + 68), V(8 + 2 * jj), V(8 + 2 * jj + 1)))
    e(bstore(V(72, 4), t2, so, 0))
    e(label("L2_end"))
    e(raw("s_endpgm"))
    return finalize(st)


HEADER = open(os.path.join(os.path.dirname(os.path.abspath(__file__)), "header.txt")).read()


def kd(name, vgpr, accum, sgpr):
    return f""".amdhsa_kernel {name}
  .amdhsa_next_free_vgpr {vgpr}
  .amdhsa_next_free_sgpr {sgpr}
  .amdhsa_accum_offset {accum}
  .amdhsa_group_segment_fixed_size 0
  .amdhsa_kernarg_size 104
  .amdhsa_user_sgpr_count 2
  .amdhsa_user_sgpr_kernarg_segment_ptr 1
  .amdhsa_system_sgpr_workgroup_id_x 1
.end_amdhsa_kernel
"""


def main():
    out = HEADER
    out += f"; @launch kernel={K1} grid=(256,1,1) block=(256,1,1) lds={LDS_BYTES}\n"
    out += f"; @launch kernel={K2} grid=(896,1,1) block=(256,1,1) lds=0\n"
    out += '.amdgcn_target "amdgcn-amd-amdhsa--gfx950"\n.text\n'
    for name, gen in ((K1, gen_k1), (K2, gen_k2)):
        out += f".globl {name}\n.p2align 8\n.type {name},@function\n{name}:\n"
        out += "\n".join(gen()) + "\n"
    out += '.section .rodata,"a"\n.p2align 6\n'
    out += kd(K1, 512, 256, 102)
    out += ".p2align 6\n"
    out += kd(K2, 80, 80, 40)
    dst = sys.argv[1] if len(sys.argv) > 1 else f"cdna_kernels/{NAME}.s"
    open(dst, "w").write(out)
    print("wrote", dst, len(out), "bytes", out.count("\n"), "lines")


if __name__ == "__main__":
    main()
```

```python
import math
import struct
import sys
import os

sys.path.insert(0, os.path.dirname(os.path.abspath(__file__)))
from asmir import *

NAME = "concat_heads__gqa_block_cached__gqa_block_cached__near_ridge"
K1 = NAME + "_kernel"
K2 = "reduce_out_kernel"


def f32bits(x):
    return struct.unpack("<I", struct.pack("<f", x))[0]


CSCALE = math.log2(math.e) / 16.0
TLOG2 = 8.0
TRAW = TLOG2 / CSCALE

SRD_X, SRD_K, SRD_V, SRD_WQ, SRD_WO, SRD_WS = (S(16, 4), S(20, 4), S(24, 4), S(28, 4), S(32, 4), S(36, 4))
sW, sG, sB, sBLK, sC = S(40), S(41), S(42), S(43), S(44)
sM0WQ, sOFFWQ, sM0K, sM0V, sOFFKV = S(45), S(46), S(47), S(48), S(49)
sT0, sT1 = S(50), S(51)
sMASK0, sMASK1 = S(52, 2), S(54, 2)
sFLAG = S(56)
sRET = S(58, 2)
sM0WO = S(60)
sOFFWS = S(61)
sTRAW = S(62)
sPFOFF = S(63)
SRD_PF = S(96, 4)
sT2 = S(100)
PFD = int(os.environ.get("PFD", "0"))
ROT = int(os.environ.get("ROT", "1"))
sROT = S(101)

def Qf(qb, s):
    return V((qb * 16 + s) * 4, 4)


def Xf(s):
    return V(s * 4, 4)


def Of(ks):
    return V(ks * 4, 4)


def Sb(p, qb):
    return V(128 + p * 32 + qb * 16, 16)


def Kf(i):
    return V(192 + (i % 4) * 4, 4)


def Vf(i):
    return V(208 + (i % 4) * 4, 4)


def Wf(i):
    return V(192 + (i % 8) * 4, 4)


vAK, vAV, vOFFKV, vL16 = V(224), V(225), V(226), V(227)
vM = [V(228), V(229)]
vTHR = [V(230), V(231)]
vL = [V(232), V(233)]
vAL = [V(234), V(235)]
vT = [V(236), V(237)]
vU = [V(238), V(239)]
vTMP = V(240, 8)
vMR = [V(248), V(249)]
vAWQ = V(250)
vAWO0, vAWO1 = V(251), V(252)
vDUMMY, vL128, vPFWQ = V(253), V(254), V(255)
vWOFF = [V(240 + i) for i in range(7)]
vX = V(128, 16)

KSTR, VSTR = 1040, 1088
KSLOT, VSLOT = 16 * KSTR, 16 * VSTR
KS = [i * KSLOT for i in range(4)]
VBASE = 4 * KSLOT
VS = [i * VSLOT for i in range(4)]
P1BASE = VBASE + VSLOT
P1S = [i * VSLOT for i in range(4)]
WOSLOT = 28672
LDS_BYTES = 163840
assert P1BASE + 4 * VSLOT <= LDS_BYTES


def Oacc(dt, qb):
    return A((dt * 2 + qb) * 16, 16)


def Qacc(nt):
    return A(nt * 16, 16)


def Wacc(t):
    return A(t * 16, 16)


def barrier():
    return raw("s_barrier", "other", cost=4)


STAMP = int(os.environ.get("STAMP", "0"))
_nst = 0


def stamp():
    global _nst
    if not STAMP:
        return []
    i = _nst
    _nst += 1
    assert i < 16
    return [raw(f"s_memtime s[{64 + 2 * i}:{65 + 2 * i}]", "salu", cost=2)]


def stamp_store():
    if not STAMP:
        return []
    out = [raw("s_waitcnt lgkmcnt(0)", "wait"),
           salu(f"s_cmp_lg_u32 {sW}, 0"), salu("s_cbranch_scc1 L_end"),
           salu("s_lshl_b32 s3, s2, 7"), salu(f"s_add_u32 s3, s3, {64 << 20}"),
           salu("s_add_u32 s4, s14, s3"), salu("s_addc_u32 s5, s15, 0"),
           salu("s_mov_b32 s6, 128"), salu("s_mov_b32 s7, 0x00020000"),
           valu("v_mov_b32", V(2), 0)]
    for i in range(_nst):
        out.append(valu("v_mov_b32", V(4 + 2 * i), S(64 + 2 * i)))
        out.append(valu("v_mov_b32", V(5 + 2 * i), S(65 + 2 * i)))
        out.append(bstore(V(4 + 2 * i, 2), V(2), S(4, 4), 0, off=i * 8, n=2))
    return out


def dma_wq(s):
    out = []
    for i in range(4):
        out.append(setm0(f"s_add_u32 m0, {sM0WQ}, {P1S[s % 4] + i * VSTR}"))
        out.append(salu(f"s_add_u32 {sT0}, {sOFFWQ}, {(16 * s + i) * 8192}", defs=[sT0]))
        out.append(dma(vL16, SRD_WQ, sT0, tag=("wq", s)))
    return out


def kv_off(j):
    if not ROT:
        return [salu(f"s_add_u32 {sT1}, {sOFFKV}, {j * 16384}", defs=[sT1])]
    return [salu(f"s_add_u32 {sT1}, {sROT}, {j * 16384}", defs=[sT1]),
            salu(f"s_and_b32 {sT1}, {sT1}, 0x3ffff", defs=[sT1]),
            salu(f"s_add_u32 {sT1}, {sT1}, {sOFFKV}", defs=[sT1])]


def dma_k(j):
    out = kv_off(j)
    for i in range(4):
        out.append(setm0(f"s_add_u32 m0, {sM0K}, {KS[j % 4] + i * (KSTR - 512)}"))
        out.append(dma(vOFFKV, SRD_K, sT1, off=i * 512, tag=("k", j)))
    return out


def dma_v(j):
    out = kv_off(j)
    for i in range(4):
        out.append(setm0(f"s_add_u32 m0, {sM0V}, {VBASE + VS[j % 4] + i * (VSTR - 512)}"))
        out.append(dma(vOFFKV, SRD_V, sT1, off=i * 512, tag=("v", j)))
    return out


def dma_wo(st):
    out = [salu(f"s_mov_b32 {sT1}, {st * 28672}", defs=[sT1])]
    for i in range(7):
        out.append(setm0(f"s_add_u32 m0, {sM0WO}, {(st % 4) * WOSLOT + i * 1024}"))
        out.append(dma(vWOFF[i], SRD_WO, sT1, tag=("wo", st)))
    return out


def pfload(*a, **kw):
    i = bload(*a, **kw)
    i.defs = set()
    return i


def pf_kv(j):
    if PFD <= 0 or j + 2 + PFD >= 16:
        return []
    off = j * 16384
    op = f"s_add_u32 {sT2}, {sPFOFF}, {off}" if off >= 0 else f"s_sub_u32 {sT2}, {sPFOFF}, {-off}"
    return [salu(op, defs=[sT2]), pfload(vDUMMY, vL128, SRD_PF, sT2, tag=("pf", j), n=1)]


def rd_wq(f):
    s, nt = divmod(f, 16)
    d = Wf(f)
    off = P1S[s % 4] + nt * 64
    return [ds_read_tr(d[0:2], vAWQ, off), ds_read_tr(d[2:4], vAWQ, off + 4 * VSTR)]


def rd_k(j, s):
    return [ds_read_b128(Kf(s), vAK, KS[j % 4] + s * 32)]


def rd_v(j, f):
    dt, ks = divmod(f, 2)
    d = Vf(f)
    off = VS[j % 4] + ks * 512 + dt * 64
    return [ds_read_tr(d[0:2], vAV, off), ds_read_tr(d[2:4], vAV, off + 4 * VSTR)]


def rd_wo(f):
    st, r = divmod(f, 28)
    ks, t = divmod(r, 14)
    half, tt = divmod(t, 7)
    slot = st % 4
    base = vAWO0 if slot < 2 else vAWO1
    off = (slot % 2) * WOSLOT + half * 14336 + ks * 7168 + tt * 64
    d = Wf(f)
    return [ds_read_tr(d[0:2], base, off), ds_read_tr(d[2:4], base, off + 4 * 448)]


def sm_max(p):
    out = []
    for qb in range(2):
        s_ = Sb(p, qb)
        t = vT[qb]
        out.append(valu("v_max3_f32", t, s_[0], s_[1], s_[2]))
        for r in range(3, 15, 2):
            out.append(valu("v_max3_f32", t, t, s_[r], s_[r + 1]))
        out.append(valu("v_max_f32", t, t, s_[15]))
    for qb in range(2):
        out.append(valu("v_mov_b32", vU[qb], vT[qb]))
    for qb in range(2):
        out.append(Ins(f"v_permlane32_swap_b32 {vT[qb]}, {vU[qb]}", "perm", defs=[vT[qb], vU[qb]],
                       uses=[vT[qb], vU[qb]]))
    for qb in range(2):
        out.append(valu("v_max_f32", vT[qb], vT[qb], vU[qb]))
    return out


def sm_check(first):
    out = []
    if first:
        for qb in range(2):
            out.append(valu("v_mov_b32", vMR[qb], vT[qb]))
            out.append(valu("v_mul_f32", vM[qb], sC, vT[qb]))
            out.append(valu("v_add_f32", vTHR[qb], sTRAW, vT[qb]))
            out.append(valu("v_mov_b32", vL[qb], 0))
        return out
    out.append(valu("v_cmp_gt_f32", sMASK0, vT[0], vTHR[0]))
    out.append(valu("v_cmp_gt_f32", sMASK1, vT[1], vTHR[1]))
    global _lbl
    _lbl += 1
    out.append(Group([
        salu(f"s_or_b64 {sMASK0}, {sMASK0}, {sMASK1}", defs=[sMASK0], uses=[sMASK0, sMASK1]),
        salu(f"s_cbranch_scc0 L_noslow{_lbl}"),
        Ins(f"s_call_b64 {sRET}, L_slow", "salu", cost=2,
            defs=vM + vTHR + vL + vAL + vMR + vU, uses=vM + vTHR + vL + vT + vMR),
        label(f"L_noslow{_lbl}")]))
    return out


_lbl = 0


def sm_exp(p, qb, grp):
    s_ = Sb(p, qb)
    out = []
    rs = range(4 * grp, 4 * grp + 4)
    for r in rs:
        out.append(valu("v_fma_f32", s_[r], s_[r], sC, ("-", vM[qb])))
    for r in rs:
        out.append(valu("v_exp_f32", s_[r], s_[r]))
    for r in rs:
        out.append(valu("v_add_f32", vL[qb], vL[qb], s_[r]))
    ks, g2 = divmod(grp, 2)
    for jj in range(2):
        j = 2 * g2 + jj
        out.append(valu("v_cvt_pk_bf16_f32", s_[8 * ks + j], s_[8 * ks + 2 * j], s_[8 * ks + 2 * j + 1]))
    return out


def Pf(p, qb, ks):
    return Sb(p, qb)[8 * ks: 8 * ks + 4]


def resc_check():
    global _lbl
    _lbl += 1
    allO = [A(0, 256)]
    return [
        salu(f"s_cmp_eq_u32 {sFLAG}, 0", uses=[sFLAG]),
        salu(f"s_cbranch_scc1 L_nores{_lbl}"),
        Ins(f"s_call_b64 {sRET}, L_resc", "salu", cost=2),
        label(f"L_nores{_lbl}"),
    ]


NG1 = 3


def softmax1(j):
    p = j % 2
    out = sm_max(p) + sm_check(j == 0)
    for gi in range(NG1):
        out += sm_exp(p, gi // 4, gi % 4)
    return out


def softmax2(j):
    p = j % 2
    out = []
    for gi in range(NG1, 8):
        out += sm_exp(p, gi // 4, gi % 4)
    return out


def gen_k1():
    st = []
    e = st.append
    ext = st.extend
    e(salu("s_cmp_ge_u32 s2, 256"))
    e(salu("s_cbranch_scc1 L_end"))
    e(salu(f"s_and_b32 {sG}, s2, 7"))
    e(salu(f"s_lshr_b32 s3, s2, 6"))
    e(salu(f"s_xor_b32 {sG}, {sG}, s3"))
    e(salu(f"s_lshr_b32 {sB}, s2, 3"))
    e(salu(f"s_and_b32 {sB}, {sB}, 15"))
    e(salu(f"s_lshr_b32 {sBLK}, s2, 7"))
    e(salu(f"s_load_dwordx2 s[14:15], s[0:1], 96"))
    e(salu(f"s_mul_i32 s3, {sBLK}, 40"))
    e(salu("s_add_u32 s0, s0, s3"))
    e(salu("s_addc_u32 s1, s1, 0"))
    e(salu("s_load_dwordx8 s[4:11], s[0:1], 0"))
    e(salu("s_load_dwordx2 s[12:13], s[0:1], 32"))
    lane, tA, tB, tC, tD = V(240), V(241), V(242), V(243), V(244)
    e(valu("v_and_b32", lane, 63, V(0)))
    e(valu("v_lshrrev_b32", tA, 6, V(0)))
    e(Ins(f"v_readfirstlane_b32 {sW}, {tA}", "valu", defs=[sW], uses=[tA]))
    e(valu("v_lshlrev_b32", vL16, 4, lane))
    e(valu("v_lshlrev_b32", vL128, 7, lane))
    e(valu("v_lshrrev_b32", tA, 3, lane))
    e(valu("v_and_b32", tB, 7, lane))
    e(valu("v_lshlrev_b32", tA, 13, tA))
    e(valu("v_lshl_add_u32", vPFWQ, tB, 7, tA))
    e(valu("v_lshrrev_b32", tA, 5, lane))
    e(valu("v_and_b32", tB, 31, lane))
    e(valu("v_lshlrev_b32", tC, 13, tA))
    e(valu("v_lshl_add_u32", vOFFKV, tB, 4, tC))
    e(valu("v_and_b32", tC, 3, tB))
    e(valu("v_and_b32", tD, 4, tB))
    e(valu("v_lshl_add_u32", tC, tD, 1, tC))
    e(valu("v_and_b32", tD, 8, tB))
    e(valu("v_lshrrev_b32", tD, 1, tD))
    e(valu("v_add_u32", tC, tC, tD))
    e(valu("v_mul_u32_u24", vAK, KSTR, tC))
    e(valu("v_lshrrev_b32", tD, 4, tB))
    e(valu("v_lshl_add_u32", vAK, tD, 9, vAK))
    e(valu("v_lshl_add_u32", vAK, tA, 4, vAK))
    e(valu("v_bfe_u32", tC, lane, 2, 2))
    e(valu("v_lshl_add_u32", tC, tA, 3, tC))
    e(valu("v_and_b32", tD, 1, lane))
    e(valu("v_lshlrev_b32", tD, 4, tD))
    e(valu("v_and_b32", tB, 2, lane))
    e(valu("v_lshl_add_u32", tD, tB, 2, tD))
    e(valu("v_bfe_u32", tB, lane, 4, 1))
    e(valu("v_lshl_add_u32", tD, tB, 5, tD))
    e(valu("v_mul_u32_u24", vAV, VSTR, tC))
    e(valu("v_add_u32", vAV, vAV, tD))
    e(valu("v_add_u32", vAWQ, P1BASE, vAV))
    e(valu("v_add_u32", vAV, VBASE, vAV))
    e(valu("v_mul_u32_u24", vAWO0, 448, tC))
    e(valu("v_add_u32", vAWO0, vAWO0, tD))
    e(valu("v_add_u32", vAWO1, 2 * WOSLOT, vAWO0))
    e(valu("v_and_b32", tB, 31, lane))
    e(valu("v_lshrrev_b32", tC, 6, V(0)))
    e(valu("v_lshl_add_u32", tB, tC, 5, tB))
    e(valu("v_mul_u32_u24", tB, 896, tB))
    vXOFF = V(245)
    e(valu("v_lshl_add_u32", vXOFF, tA, 4, tB))
    e(salu(f"s_mov_b32 {sC}, {f32bits(CSCALE):#x}"))
    e(salu(f"s_mov_b32 {sTRAW}, {f32bits(TRAW):#x}"))
    e(salu(f"s_mov_b32 {sFLAG}, 0"))
    e(salu(f"s_lshr_b32 {sROT}, s2, 4"))
    e(salu(f"s_add_u32 {sROT}, {sROT}, s2"))
    e(salu(f"s_and_b32 {sROT}, {sROT}, 15"))
    e(salu(f"s_lshl_b32 {sROT}, {sROT}, 14"))
    e(salu(f"s_mul_i32 {sM0WQ}, {sW}, {4 * VSTR}", uses=[sW]))
    e(salu(f"s_mov_b32 {sM0V}, {sM0WQ}"))
    e(salu(f"s_add_u32 {sM0WQ}, {sM0WQ}, {P1BASE}"))
    e(salu(f"s_lshl_b32 {sOFFWQ}, {sW}, 15"))
    e(salu(f"s_mul_i32 {sM0K}, {sW}, {4 * KSTR}"))
    e(salu(f"s_lshl_b32 {sOFFKV}, {sW}, 11"))
    e(salu(f"s_mul_i32 {sM0WO}, {sW}, {7 * 1024}"))
    e(salu(f"s_mul_i32 {sOFFWS}, {sW}, {14 * 4096}"))
    e(raw("s_waitcnt lgkmcnt(0)", "wait"))

    def srd(d, ptr_lo, off_expr_reg, size):
        e(salu(f"s_add_u32 s{d.b}, s{ptr_lo}, {off_expr_reg}"))
        e(salu(f"s_addc_u32 s{d.b + 1}, s{ptr_lo + 1}, 0"))
        e(salu(f"s_mov_b32 s{d.b + 2}, {size}"))
        e(salu(f"s_mov_b32 s{d.b + 3}, 0x00020000"))

    e(salu(f"s_mul_i32 s3, {sB}, 114688"))
    srd(SRD_X, 4, "s3", 114688)
    e(salu(f"s_lshl_b32 s3, {sB}, 3"))
    e(salu(f"s_add_u32 s3, s3, {sG}"))
    e(salu(f"s_lshl_b32 s3, s3, 18"))
    srd(SRD_K, 6, "s3", 262144)
    srd(SRD_V, 8, "s3", 262144)
    e(salu(f"s_lshl_b32 s3, {sG}, 10"))
    srd(SRD_WQ, 10, "s3", 447 * 8192 + 1024)
    e(salu(f"s_mul_i32 s3, {sG}, 458752"))
    srd(SRD_WO, 12, "s3", 458752)
    e(salu(f"s_andn2_b32 s3, s2, 7"))
    e(salu(f"s_or_b32 s3, s3, {sG}"))
    e(salu(f"s_mul_i32 s3, s3, 229376"))
    srd(SRD_WS, 14, "s3", 229376)

    e(salu(f"s_cmp_lt_u32 {sW}, 2"))
    e(salu(f"s_cselect_b32 s96, s20, s24"))
    e(salu(f"s_cselect_b32 s97, s21, s25"))
    e(salu(f"s_mov_b32 s98, 262144"))
    e(salu(f"s_mov_b32 s99, 0x00020000"))
    e(salu(f"s_cselect_b32 {sPFOFF}, {4 + PFD}, {2 + PFD}"))
    e(salu(f"s_lshl_b32 {sPFOFF}, {sPFOFF}, 14"))
    e(salu(f"s_and_b32 s3, {sW}, 1"))
    e(salu(f"s_lshl_b32 s3, s3, 13"))
    e(salu(f"s_add_u32 {sPFOFF}, {sPFOFF}, s3"))
    ext(stamp())
    ext(dma_wq(0))
    e(salu(f"s_and_b32 s3, {sB}, 7"))
    e(salu(f"s_mul_i32 s3, s3, {56 * 8192}"))
    e(salu(f"s_lshl_b32 {sT2}, {sW}, 16"))
    e(salu(f"s_add_u32 {sT2}, {sT2}, s3"))
    e(pfload(vDUMMY, vPFWQ, SRD_WQ, sT2, tag=("pfw", 0), n=1))
    e(salu(f"s_add_u32 {sT2}, {sT2}, {4 << 16}"))
    e(pfload(vDUMMY, vPFWQ, SRD_WQ, sT2, tag=("pfw", 1), n=1))

    for s in range(28):
        e(bload(Xf(s), vXOFF, SRD_X, 0, off=s * 32, tag=("x", s)))
    ext(dma_wq(1))
    ext(dma_wq(2))
    kvpre = dma_k(0) + dma_k(1) + dma_k(2) + dma_v(0) + dma_k(3)
    kvgroups = [dma_k(0), dma_k(1), dma_k(2), dma_v(0), dma_k(3)]
    kv_at = {3: 0, 7: 1, 11: 2, 15: 3, 19: 4}
    LA = 6
    e(WaitVM(("wq", 0)))
    e(barrier())
    for f in range(LA):
        ext(rd_wq(f))
    for s in range(28):
        slots = []
        for nt in range(16):
            f = 16 * s + nt
            sl = [mfma(Qacc(nt), Wf(f), Xf(s), Qacc(nt) if s > 0 else 0)]
            if f + LA < 448:
                sl += rd_wq(f + LA)
            if nt == 3 and s + 1 < 28:
                sl += [WaitVM(("wq", s + 1)), barrier()]
            slots.append(sl)
        fill = []
        if s + 3 < 28:
            fill += dma_wq(s + 3)
        if s in kv_at:
            fill += kvgroups[kv_at[s]]
        if s in (20, 22, 24, 26):
            fill += pf_kv((s - 20) // 2 - 4)
        ext(interleave(slots, fill, start=4, end=14))

    ext(stamp())
    e(WaitVM(("k", 0)))
    e(barrier())
    ext(dma_v(1))
    for s3 in range(3):
        ext(rd_k(0, s3))
    for qb in range(2):
        for s in range(16):
            acc = Qacc(qb * 8 + s // 2)
            for ee in range(8):
                e(valu("v_accvgpr_read_b32", vX[(s % 2) * 8 + ee], acc[(s % 2) * 8 + ee]))
            for jj in range(4):
                e(valu("v_cvt_pk_bf16_f32", Qf(qb, s)[jj], vX[(s % 2) * 8 + 2 * jj], vX[(s % 2) * 8 + 2 * jj + 1]))

    lane2, t1, t2, t3 = vX[0], vX[1], vX[2], vX[3]
    e(valu("v_lshrrev_b32", lane2, 4, vL16))
    e(salu(f"s_and_b32 s3, {sW}, 1"))
    e(salu(f"s_mul_i32 s3, s3, 448"))
    e(salu(f"s_lshr_b32 {sT0}, {sW}, 1"))
    e(salu(f"s_mul_i32 {sT0}, {sT0}, 448"))
    e(salu(f"s_mov_b32 {sT1}, 9363"))
    for i in range(7):
        e(valu("v_add_u32", t1, S(3), lane2))
        e(valu("v_add_u32", t1, 64 * i, t1))
        e(valu("v_mul_lo_u32", t2, t1, sT1))
        e(valu("v_lshrrev_b32", t2, 18, t2))
        e(valu("v_mul_u32_u24", t3, 28, t2))
        e(valu("v_sub_u32", t3, t1, t3))
        e(valu("v_mul_u32_u24", t2, 896, t2))
        e(valu("v_lshl_add_u32", t2, t3, 4, t2))
        e(valu("v_add_u32", vWOFF[i], sT0, t2))

    ext(stamp())
    for j in range(17):
        p = j % 2
        if j in (4, 12):
            ext(stamp())
        fillA = softmax2(j - 1) if j >= 1 else []
        if j < 16:
            slots = []
            for s in range(16):
                for qb in range(2):
                    sl = [mfma(Sb(p, qb), Kf(s), Qf(qb, s), Sb(p, qb) if s > 0 else 0)]
                    if qb == 0:
                        if s + 3 < 16:
                            sl += rd_k(j, s + 3)
                        elif j >= 1:
                            sl += rd_v(j - 1, s + 3 - 16)
                    slots.append(sl)
            ext(interleave(slots, fillA, start=0, end=30))
        else:
            for f in range(3):
                ext(rd_v(j - 1, f))
            ext(fillA)
        if j >= 2:
            ext(resc_check())
        sync = []
        waits = []
        if j + 1 < 16:
            waits.append(("k", j + 1))
        if j < 16:
            waits.append(("v", j))
        grp = []
        if j + 4 < 16:
            grp += dma_k(j + 4)
        if j + 2 < 16:
            grp += dma_v(j + 2)
        grp += pf_kv(j)
        if j == 6:
            grp += [salu(f"s_and_b32 s3, {sB}, 7"), salu(f"s_mul_i32 s3, s3, 57344"),
                    salu(f"s_lshl_b32 {sT2}, {sW}, 13"), salu(f"s_add_u32 {sT2}, {sT2}, s3", defs=[sT2]),
                    pfload(vDUMMY, vL128, SRD_WO, sT2, tag=("pfo", 0), n=1),
                    salu(f"s_add_u32 {sT2}, {sT2}, {4 << 13}", defs=[sT2]),
                    pfload(vDUMMY, vL128, SRD_WO, sT2, tag=("pfo", 1), n=1)]
        if j == 13:
            grp += dma_wo(0)
        if j == 15:
            grp += dma_wo(1) + dma_wo(2)
        if j == 16:
            grp += dma_wo(3)
        sync = ([WaitVM(waits)] if waits else []) + [barrier()]
        fillB = softmax1(j) if j < 16 else []
        if j >= 1:
            slots = []
            for f in range(16):
                dt, ks = divmod(f, 2)
                for qb in range(2):
                    sl = [mfma(Oacc(dt, qb), Vf(f), Pf(1 - p, qb, ks),
                               Oacc(dt, qb) if (j > 1 or ks > 0) else 0)]
                    if qb == 0:
                        if f + 3 < 16:
                            sl += rd_v(j - 1, f + 3)
                        elif j + 1 < 16:
                            sl += rd_k(j + 1, f + 3 - 16)
                    if f == 0 and qb == 1:
                        sl += sync
                    slots.append(sl)
            body = interleave(slots, grp + fillB, start=2, end=32)
            ext(body)
        else:
            ext(sync)
            ext(grp)
            for s3 in range(3):
                ext(rd_k(1, s3))
            ext(fillB)

    ext(stamp())
    for qb in range(2):
        e(valu("v_mov_b32", vU[qb], vL[qb]))
    for qb in range(2):
        e(Ins(f"v_permlane32_swap_b32 {vL[qb]}, {vU[qb]}", "perm", defs=[vL[qb], vU[qb]], uses=[vL[qb], vU[qb]]))
    for qb in range(2):
        e(valu("v_add_f32", vL[qb], vL[qb], vU[qb]))
    for qb in range(2):
        e(valu("v_rcp_f32", vL[qb], vL[qb]))
    e(WaitVM(("wo", 0)))
    e(barrier())
    LA = 6
    for f in range(LA):
        ext(rd_wo(f))
    for ksg in range(32):
        qb, s = divmod(ksg, 16)
        dt, hf = divmod(s, 2)
        acc = Oacc(dt, qb)
        tb = (ksg % 2) * 8
        for ee in range(8):
            e(valu("v_accvgpr_read_b32", vX[tb + ee], acc[hf * 8 + ee]))
        for ee in range(8):
            e(valu("v_mul_f32", vX[tb + ee], vX[tb + ee], vL[qb]))
        for jj in range(4):
            e(valu("v_cvt_pk_bf16_f32", Of(ksg)[jj], vX[tb + 2 * jj], vX[tb + 2 * jj + 1]))

    ext(stamp())
    for stg in range(16):
        slots = []
        for r in range(28):
            f = 28 * stg + r
            ks, t = divmod(r, 14)
            ksg = 2 * stg + ks
            sl = [mfma(Wacc(t), Wf(f), Of(ksg), Wacc(t) if ksg > 0 else 0)]
            if f + LA < 448:
                sl += rd_wo(f + LA)
            if r == 3 and stg + 1 < 16:
                sl += [WaitVM(("wo", stg + 1)), barrier()]
            slots.append(sl)
        fill = []
        if stg >= 1 and stg + 3 < 16:
            fill += dma_wo(stg + 3)
        ext(interleave(slots, fill, start=4, end=22))

    ext(stamp())
    for t in range(14):
        e(salu(f"s_add_u32 {sT0}, {sOFFWS}, {t * 4096}", defs=[sT0]))
        for c in range(4):
            e(bstore(Wacc(t)[4 * c: 4 * c + 4], vL16, SRD_WS, sT0, off=c * 1024))
    if STAMP:
        e(WaitAll())
    ext(stamp())
    ext(stamp_store())
    e(label("L_end"))
    e(raw("s_endpgm"))

    lines = finalize(st)

    sub = []
    s_ = sub.append
    s_(label("L_slow"))
    s_(nop(2))
    for qb in range(2):
        s_(valu("v_max_f32", vMR[qb], vMR[qb], vT[qb]))
        s_(valu("v_mul_f32", vU[qb], sC, vMR[qb]))
        s_(valu("v_sub_f32", vAL[qb], vM[qb], vU[qb]))
        s_(valu("v_exp_f32", vAL[qb], vAL[qb]))
        s_(valu("v_mov_b32", vM[qb], vU[qb]))
        s_(valu("v_add_f32", vTHR[qb], sTRAW, vMR[qb]))
        s_(valu("v_mul_f32", vL[qb], vL[qb], vAL[qb]))
    s_(salu(f"s_mov_b32 {sFLAG}, 1"))
    s_(nop(2))
    s_(raw(f"s_setpc_b64 {sRET}"))
    s_(label("L_resc"))
    s_(nop(16))
    tt = [vU[0], vU[1], vT[0], vT[1]]
    for dt in range(8):
        for qb in range(2):
            acc = Oacc(dt, qb)
            for r0 in range(0, 16, 4):
                for k in range(4):
                    s_(valu("v_accvgpr_read_b32", tt[k], acc[r0 + k]))
                for k in range(4):
                    s_(valu("v_mul_f32", tt[k], tt[k], vAL[qb]))
                for k in range(4):
                    s_(valu("v_accvgpr_write_b32", acc[r0 + k], tt[k]))
    s_(salu(f"s_mov_b32 {sFLAG}, 0"))
    s_(nop(4))
    s_(raw(f"s_setpc_b64 {sRET}"))
    lines += finalize(sub)
    return lines


def gen_k2():
    st = []
    e = st.append
    e(salu("s_cmp_ge_u32 s2, 896"))
    e(salu("s_cbranch_scc1 L2_end"))
    e(salu("s_load_dwordx2 s[4:5], s[0:1], 80"))
    e(salu("s_load_dwordx2 s[6:7], s[0:1], 96"))
    e(salu("s_and_b32 s8, s2, 1"))
    e(salu("s_lshr_b32 s9, s2, 1"))
    e(salu("s_mul_i32 s10, s9, 4682"))
    e(salu("s_lshr_b32 s10, s10, 16"))
    e(salu("s_mul_i32 s11, s10, 14"))
    e(salu("s_sub_u32 s11, s9, s11"))
    lane, w, t1, t2 = V(1), V(2), V(3), V(4)
    e(valu("v_and_b32", lane, 63, V(0)))
    e(valu("v_lshrrev_b32", w, 6, V(0)))
    e(valu("v_mul_u32_u24", t1, 14 * 4096, w))
    e(valu("v_lshl_add_u32", t1, lane, 4, t1))
    e(salu("s_lshl_b32 s12, s11, 12"))
    e(salu("s_lshl_b32 s13, s8, 11"))
    e(salu("s_add_u32 s12, s12, s13"))
    e(valu("v_add_u32", t1, S(12), t1))
    e(salu("s_and_b32 s13, s10, 15"))
    e(salu("s_lshr_b32 s14, s10, 4"))
    e(salu("s_mul_i32 s13, s13, 229376"))
    e(salu("s_mul_i32 s14, s14, 896"))
    e(salu("s_add_u32 s13, s13, s14"))
    e(salu("s_lshl_b32 s14, s11, 6"))
    e(salu("s_add_u32 s13, s13, s14"))
    e(salu("s_lshl_b32 s14, s8, 5"))
    e(salu("s_add_u32 s13, s13, s14"))
    e(valu("v_and_b32", t2, 31, lane))
    e(valu("v_lshl_add_u32", t2, w, 5, t2))
    e(valu("v_mul_u32_u24", t2, 1792, t2))
    e(valu("v_lshrrev_b32", lane, 5, lane))
    e(valu("v_lshl_add_u32", t2, lane, 4, t2))
    e(valu("v_add_u32", t2, S(13), t2))
    e(raw("s_waitcnt lgkmcnt(0)", "wait"))
    e(salu("s_mov_b32 s16, s4"))
    e(salu("s_mov_b32 s17, s5"))
    e(salu(f"s_mov_b32 s18, {16 * 128 * 896 * 2}"))
    e(salu("s_mov_b32 s19, 0x00020000"))
    e(salu(f"s_mul_i32 s14, s10, {8 * 229376}"))
    e(salu("s_add_u32 s20, s6, s14"))
    e(salu("s_addc_u32 s21, s7, 0"))
    e(salu(f"s_mov_b32 s22, {8 * 229376}"))
    e(salu("s_mov_b32 s23, 0x00020000"))
    so, sw = S(16, 4), S(20, 4)
    for g in range(8):
        e(salu(f"s_mov_b32 s{24 + g}, {g * 229376}"))
    for g in range(8):
        for cc in range(2):
            e(bload(V(8 + g * 8 + cc * 4, 4), t1, sw, S(24 + g), off=cc * 1024))
    for g in range(1, 8):
        for k in range(8):
            e(valu("v_add_f32", V(8 + k), V(8 + k), V(8 + g * 8 + k)))
    for jj in range(4):
        e(valu("v_cvt_pk_bf16_f32", V(4 + 0 + jj + 68), V(8 + 2 * jj), V(8 + 2 * jj + 1)))
    e(bstore(V(72, 4), t2, so, 0))
    e(label("L2_end"))
    e(raw("s_endpgm"))
    return finalize(st)


HEADER = open(os.path.join(os.path.dirname(os.path.abspath(__file__)), "header.txt")).read()


def kd(name, vgpr, accum, sgpr):
    return f""".amdhsa_kernel {name}
  .amdhsa_next_free_vgpr {vgpr}
  .amdhsa_next_free_sgpr {sgpr}
  .amdhsa_accum_offset {accum}
  .amdhsa_group_segment_fixed_size 0
  .amdhsa_kernarg_size 104
  .amdhsa_user_sgpr_count 2
  .amdhsa_user_sgpr_kernarg_segment_ptr 1
  .amdhsa_system_sgpr_workgroup_id_x 1
.end_amdhsa_kernel
"""


def main():
    out = HEADER
    out += f"; @launch kernel={K1} grid=(256,1,1) block=(256,1,1) lds={LDS_BYTES}\n"
    out += f"; @launch kernel={K2} grid=(896,1,1) block=(256,1,1) lds=0\n"
    out += '.amdgcn_target "amdgcn-amd-amdhsa--gfx950"\n.text\n'
    for name, gen in ((K1, gen_k1), (K2, gen_k2)):
        out += f".globl {name}\n.p2align 8\n.type {name},@function\n{name}:\n"
        out += "\n".join(gen()) + "\n"
    out += '.section .rodata,"a"\n.p2align 6\n'
    out += kd(K1, 512, 256, 102)
    out += ".p2align 6\n"
    out += kd(K2, 80, 80, 40)
    dst = sys.argv[1] if len(sys.argv) > 1 else f"cdna_kernels/{NAME}.s"
    open(dst, "w").write(out)
    print("wrote", dst, len(out), "bytes", out.count("\n"), "lines")


if __name__ == "__main__":
    main()
```

```python
class R:
    __slots__ = ("k", "b", "n")

    def __init__(self, k, b, n=1):
        self.k, self.b, self.n = k, b, n

    def __str__(self):
        if self.n == 1:
            return f"{self.k}{self.b}"
        return f"{self.k}[{self.b}:{self.b + self.n - 1}]"

    def regs(self):
        return {(self.k, self.b + i) for i in range(self.n)}

    def __getitem__(self, i):
        if isinstance(i, slice):
            st = i.start or 0
            return R(self.k, self.b + st, i.stop - st)
        assert 0 <= i < self.n
        return R(self.k, self.b + i, 1)


def V(b, n=1):
    return R("v", b, n)


def A(b, n=1):
    return R("a", b, n)


def S(b, n=1):
    return R("s", b, n)


def _regs(xs):
    out = set()
    for x in xs:
        if isinstance(x, R):
            out |= x.regs()
    return out


class Ins:
    __slots__ = ("text", "kind", "defs", "uses", "cuse", "tag", "cost", "abuse")

    def __init__(self, text, kind, defs=(), uses=(), cuse=(), tag=None, cost=4, abuse=()):
        self.text = text
        self.kind = kind
        self.defs = _regs(defs)
        self.uses = _regs(uses)
        self.cuse = _regs(cuse)
        self.abuse = _regs(abuse)
        self.tag = tag
        self.cost = cost


TRANS = {"v_exp_f32", "v_rcp_f32", "v_log_f32", "v_rsq_f32", "v_sqrt_f32"}


def valu(op, dst, *srcs, extra_defs=(), extra_uses=()):
    ops = ", ".join(str(x) for x in (dst,) + srcs)
    uses = []
    txt = [str(dst)]
    for s in srcs:
        if isinstance(s, tuple):
            txt.append(s[0] + str(s[1]))
            uses.append(s[1])
        else:
            txt.append(str(s))
            uses.append(s)
    kind = "trans" if op in TRANS else "valu"
    return Ins(f"{op} " + ", ".join(txt), kind, defs=[dst] + list(extra_defs),
               uses=uses + list(extra_uses), cost=8 if kind == "trans" else 4)


def mfma(D, Aop, Bop, C):
    cu = [C] if isinstance(C, R) else []
    return Ins(f"v_mfma_f32_32x32x16_bf16 {D}, {Aop}, {Bop}, {C}", "mfma", defs=[D],
               uses=[Aop, Bop] + cu, cuse=cu, abuse=[Aop, Bop], cost=8)


def ds_read_b128(dst, addr, off):
    assert 0 <= off < 65536, off
    return Ins(f"ds_read_b128 {dst}, {addr} offset:{off}", "ds", defs=[dst], uses=[addr])


def ds_read_tr(dst, addr, off):
    assert 0 <= off < 65536, off
    return Ins(f"ds_read_b64_tr_b16 {dst}, {addr} offset:{off}", "ds", defs=[dst], uses=[addr])


def salu(text, defs=(), uses=()):
    return Ins(text, "salu", defs=defs, uses=uses, cost=2)


def setm0(text):
    i = Ins(text, "salu", cost=2)
    i.defs = {("m0", 0)}
    return i


def dma(voff, srd, soff, off=0, tag=None, flags=""):
    assert 0 <= off < 4096
    t = f"buffer_load_dwordx4 {voff}, {srd}, {soff} offen"
    if off:
        t += f" offset:{off}"
    if flags:
        t += " " + flags
    t += " lds"
    i = Ins(t, "dma", uses=[voff, srd, soff], tag=tag, cost=16)
    i.uses |= {("m0", 0)}
    return i


def bload(dst, voff, srd, soff, off=0, tag=None, n=4, flags=""):
    assert 0 <= off < 4096
    op = {4: "buffer_load_dwordx4", 2: "buffer_load_dwordx2", 1: "buffer_load_dword"}[n]
    t = f"{op} {dst}, {voff}, {srd}, {soff} offen"
    if off:
        t += f" offset:{off}"
    if flags:
        t += " " + flags
    return Ins(t, "vmem", defs=[dst], uses=[voff, srd, soff], tag=tag, cost=8)


def bstore(src, voff, srd, soff, off=0, n=4, flags=""):
    assert 0 <= off < 4096
    op = {4: "buffer_store_dwordx4", 2: "buffer_store_dwordx2", 1: "buffer_store_dword"}[n]
    t = f"{op} {src}, {voff}, {srd}, {soff} offen"
    if off:
        t += f" offset:{off}"
    if flags:
        t += " " + flags
    return Ins(t, "store", uses=[src, voff, srd, soff], cost=8)


def raw(text, kind="other", **kw):
    return Ins(text, kind, **kw)


def label(name):
    return Ins(name + ":", "label", cost=0)


class Group:
    def __init__(self, items):
        self.items = items
        self.cost = sum(x.cost for x in items)
        self.kind = "group"


def flatten(stream):
    out = []
    for it in stream:
        if isinstance(it, Group):
            out.extend(flatten(it.items))
        else:
            out.append(it)
    return out


class WaitVM:
    def __init__(self, tag):
        self.tag = tag
        self.cost = 4
        self.kind = "pseudo"


class WaitAll:
    def __init__(self, vm=True, lgkm=True):
        self.vm, self.lgkm = vm, lgkm
        self.cost = 4
        self.kind = "pseudo"


def finalize(stream):
    stream = flatten(stream)
    out = []
    dsq = []
    vmq = []

    def emit_wait(vm=None, lg=None):
        parts = []
        if vm is not None:
            parts.append(f"vmcnt({min(vm, 63)})")
        if lg is not None:
            parts.append(f"lgkmcnt({min(lg, 15)})")
        out.append(Ins("s_waitcnt " + " ".join(parts), "wait"))

    for it in stream:
        if isinstance(it, WaitVM):
            idx = None
            for i, (tag, _) in enumerate(vmq):
                if tag == it.tag or (isinstance(it.tag, (tuple, list, set)) and tag in it.tag):
                    idx = i
            if idx is not None:
                cnt = len(vmq) - 1 - idx
                emit_wait(vm=cnt)
                del vmq[: idx + 1]
            continue
        if isinstance(it, WaitAll):
            emit_wait(vm=0 if it.vm else None, lg=0 if it.lgkm else None)
            if it.vm:
                vmq.clear()
            if it.lgkm:
                dsq.clear()
            continue
        touched = it.uses | it.defs
        idx = None
        for i, d in enumerate(dsq):
            if d & touched:
                idx = i
        lg = None
        if idx is not None:
            lg = len(dsq) - 1 - idx
            del dsq[: idx + 1]
        idx = None
        for i, (_, d) in enumerate(vmq):
            if d & touched:
                idx = i
        vm = None
        if idx is not None:
            vm = len(vmq) - 1 - idx
            del vmq[: idx + 1]
        if lg is not None or vm is not None:
            emit_wait(vm=vm, lg=lg)
        out.append(it)
        if it.kind == "ds":
            dsq.append(set(it.defs))
        elif it.kind == "vmem":
            vmq.append((it.tag, set(it.defs)))
        elif it.kind in ("dma", "store"):
            vmq.append((it.tag, set()))

    res = []
    hist = []
    pos = 0

    def need(it):
        req = 0
        isvalu = it.kind in ("valu", "trans", "perm")
        for prev, p in reversed(hist):
            dist = pos - p - 1
            if dist >= 20:
                break
            r = 0
            pk = prev.kind
            if pk in ("valu", "trans", "perm"):
                if it.kind == "mfma" and (prev.defs & it.uses):
                    r = max(r, 2)
                if pk == "trans" and isvalu and it.kind != "trans" and (prev.defs & it.uses):
                    r = max(r, 1)
                if pk == "trans" and it.kind == "trans" and (prev.defs & it.uses):
                    r = max(r, 1)
                if it.kind == "perm" and (prev.defs & (it.uses | it.defs)):
                    r = max(r, 2)
                sdefs = {x for x in prev.defs if x[0] in ("s", "vcc")}
                if sdefs:
                    if isvalu and (sdefs & it.uses):
                        r = max(r, 2)
                    if it.kind in ("vmem", "dma", "store") and (sdefs & it.uses):
                        r = max(r, 5)
                    if it.kind == "salu" and (sdefs & it.uses):
                        r = max(r, 2)
                if it.text.startswith("v_readfirstlane") and (prev.defs & it.uses):
                    r = max(r, 1)
            if pk == "mfma":
                if it.kind == "mfma":
                    if prev.defs & it.abuse:
                        r = max(r, 12)
                    if (prev.defs & it.cuse) and prev.defs != it.cuse:
                        r = max(r, 10)
                elif isvalu or it.kind in ("vmem", "dma", "store", "ds"):
                    if prev.defs & (it.uses | it.defs):
                        r = max(r, 12)
                    if isvalu and (prev.cuse & it.defs):
                        r = max(r, 7)
            if pk == "salu" and ("m0", 0) in prev.defs and it.kind == "dma":
                r = max(r, 1)
            if pk == "store" and (prev.uses & it.defs):
                r = max(r, 2)
            req = max(req, r - dist)
        return req

    for it in out:
        if it.kind == "label":
            res.append(it.text)
            continue
        n = need(it)
        while n > 0:
            k = min(n, 16)
            res.append(f"  s_nop {k - 1}")
            pos += k
            n -= k
        res.append("  " + it.text)
        hist.append((it, pos))
        if it.kind == "nop":
            pos += it.cost
        else:
            pos += 1
        if len(hist) > 40:
            del hist[:10]
    return res


def nop(n):
    return Ins(f"s_nop {n - 1}", "nop", cost=n)


def interleave(slots, fillers, cap=24, start=0, end=None):
    n = len(slots)
    if end is None:
        end = n
    free = []
    for i, sl in enumerate(slots):
        f = sum(x.cost for x in sl if x.kind != "mfma")
        free.append(max(cap - f, 2) if start <= i < end else 0)
    tot_free = sum(free)
    tot_fill = sum(x.cost for x in fillers)
    out = []
    cum_free = 0
    cum_fill = 0
    k = 0
    for i, sl in enumerate(slots):
        out.extend(sl)
        cum_free += free[i]
        target = tot_fill * cum_free / tot_free if tot_free else 0
        while k < len(fillers) and (cum_fill + fillers[k].cost / 2 <= target or (i == end - 1)):
            if free[i] == 0:
                break
            out.append(fillers[k])
            cum_fill += fillers[k].cost
            k += 1
    assert k == len(fillers), (k, len(fillers))
    return out
```

```python
import math
import struct
import sys
import os

sys.path.insert(0, os.path.dirname(os.path.abspath(__file__)))
from asmir import *

NAME = "concat_heads__gqa_block_cached__gqa_block_cached__near_ridge"
K1 = NAME + "_kernel"
K2 = "reduce_out_kernel"


def f32bits(x):
    return struct.unpack("<I", struct.pack("<f", x))[0]


def env(k, d):
    return type(d)(os.environ.get(k, d))


CSCALE = math.log2(math.e) / 16.0
TLOG2 = 8.0
TRAW = TLOG2 / CSCALE
KVF = env("KVF", "nt")
STF = env("STF", "")
K2F = env("K2F", "")
STAMP = env("STAMP", 0)
WARM = env("WARM", 1)
NG1 = env("NG1", 3)

SRD_X, SRD_K, SRD_V, SRD_WQ, SRD_WO, SRD_WS = (S(16, 4), S(20, 4), S(24, 4), S(28, 4), S(32, 4), S(36, 4))
sW, sG, sB, sBLK, sC = S(40), S(41), S(42), S(43), S(44)
sM0V, sOFFWQ, sM0K, sM0X, sOFFKV = S(45), S(46), S(47), S(48), S(49)
sT0, sT1 = S(50), S(51)
sMASK0, sMASK1 = S(52, 2), S(54, 2)
sFLAG = S(56)
sOFFX = S(57)
sRET = S(58, 2)
sM0WO = S(60)
sOFFWS = S(61)
sTRAW = S(62)
sOFFWO = S(63)
sT2 = S(100)


def Qf(qb, s):
    return V((qb * 16 + s) * 4, 4)


def Xf(s):
    return V(s * 4, 4)


def Of(ks):
    return V(ks * 4, 4)


def Sb(p, qb):
    return V(128 + p * 32 + qb * 16, 16)


def Kf(i):
    return V(192 + (i % 4) * 4, 4)


def Vf(i):
    return V(208 + (i % 4) * 4, 4)


def Wf(i):
    return V(192 + (i % 8) * 4, 4)


def Wacc(buf, tt):
    return V(128 + buf * 32 + tt * 16, 16)


vAK, vAV, vOFFKV, vL16 = V(224), V(225), V(226), V(227)
vM = [V(228), V(229)]
vTHR = [V(230), V(231)]
vL = [V(232), V(233)]
vAL = [V(234), V(235)]
vT = [V(236), V(237)]
vU = [V(238), V(239)]
vTMP = V(240, 8)
vMR = [V(248), V(249)]
vAWQ = V(250)
vOFFWO = V(251)
vAWO = [[V(252), V(253)], [V(254), V(255)]]
vXO = [V(128), V(129)]
vAX = V(130, 4)
vDUMMY, vPFWQ, vL128 = V(144), V(145), V(146)
vX = V(160, 16)

KSTR, VSTR = 1040, 1088
KSLOT, VSLOT = 16 * KSTR, 16 * VSTR
KS = [i * KSLOT for i in range(4)]
VBASE = 4 * KSLOT
VS = [i * VSLOT for i in range(4)]
P1BASE = VBASE + VSLOT
NP1 = 4
XBASE = 2 * KSLOT
assert XBASE + 32768 <= 4 * KSLOT
WOSLOT = 32768
LDS_BYTES = 163840
PART = 4 * 14 * 2048
assert P1BASE + NP1 * VSLOT <= LDS_BYTES


def Oacc(dt, qb):
    return A((dt * 2 + qb) * 16, 16)


def Qacc(nt):
    return A(nt * 16, 16)


def barrier():
    return raw("s_barrier", "other", cost=4)


_nst = 0


def stamp():
    global _nst
    if not STAMP:
        return []
    i = _nst
    _nst += 1
    assert i < 16
    return [raw(f"s_memtime s[{64 + 2 * i}:{65 + 2 * i}]", "salu", cost=2)]


def stamp_store():
    if not STAMP:
        return []
    out = [raw("s_waitcnt lgkmcnt(0)", "wait"),
           salu(f"s_cmp_lg_u32 {sW}, 0"), salu("s_cbranch_scc1 L_end"),
           salu("s_lshl_b32 s3, s2, 7"), salu(f"s_add_u32 s3, s3, {64 << 20}"),
           salu("s_add_u32 s4, s14, s3"), salu("s_addc_u32 s5, s15, 0"),
           salu("s_mov_b32 s6, 128"), salu("s_mov_b32 s7, 0x00020000"),
           valu("v_mov_b32", V(2), 0)]
    for i in range(_nst):
        out.append(valu("v_mov_b32", V(4 + 2 * i), S(64 + 2 * i)))
        out.append(valu("v_mov_b32", V(5 + 2 * i), S(65 + 2 * i)))
        out.append(bstore(V(4 + 2 * i, 2), V(2), S(4, 4), 0, off=i * 8, n=2))
    return out


def dma_wq(s):
    out = []
    for i in range(4):
        out.append(setm0(f"s_add_u32 m0, {sM0V}, {P1BASE + (s % NP1) * VSLOT + i * VSTR}"))
        out.append(salu(f"s_add_u32 {sT0}, {sOFFWQ}, {(16 * s + i) * 8192}", defs=[sT0]))
        out.append(dma(vL16, SRD_WQ, sT0, tag=("wq", s)))
    return out


def dma_x(pc):
    out = []
    for i in range(4):
        out.append(setm0(f"s_add_u32 m0, {sM0X}, {(pc % 2) * 16384 + i * 1024}"))
        out.append(salu(f"s_add_u32 {sT1}, {sOFFX}, {pc * 128 + i * 8 * 896}", defs=[sT1]))
        out.append(dma(vXO[i % 2], SRD_X, sT1, tag=("x", pc)))
    return out


def dma_k(j):
    out = [salu(f"s_add_u32 {sT1}, {sOFFKV}, {j * 16384}", defs=[sT1])]
    for i in range(4):
        out.append(setm0(f"s_add_u32 m0, {sM0K}, {KS[j % 4] + i * (KSTR - 512)}"))
        out.append(dma(vOFFKV, SRD_K, sT1, off=i * 512, tag=("k", j), flags=KVF))
    return out


def dma_v(j):
    out = [salu(f"s_add_u32 {sT1}, {sOFFKV}, {j * 16384}", defs=[sT1])]
    for i in range(4):
        out.append(setm0(f"s_add_u32 m0, {sM0V}, {VBASE + VS[j % 4] + i * (VSTR - 512)}"))
        out.append(dma(vOFFKV, SRD_V, sT1, off=i * 512, tag=("v", j), flags=KVF))
    return out


def dma_wo(sg):
    ps, hs = divmod(sg, 2)
    out = []
    for i in range(8):
        out.append(setm0(f"s_add_u32 m0, {sM0WO}, {(sg % 4) * WOSLOT + i * 1024}"))
        out.append(salu(f"s_add_u32 {sT1}, {sOFFWO}, {(256 * hs + 8 * i) * 896 + 128 * ps}", defs=[sT1]))
        out.append(dma(vOFFWO, SRD_WO, sT1, tag=("wo", sg)))
    return out


def pfload(*a, **kw):
    i = bload(*a, **kw)
    i.defs = set()
    return i


def rd_wq(f):
    s, nt = divmod(f, 16)
    d = Wf(f)
    off = (s % NP1) * VSLOT + nt * 64
    return [ds_read_tr(d[0:2], vAWQ, off), ds_read_tr(d[2:4], vAWQ, off + 4 * VSTR)]


def rd_x(s):
    pc, sp = divmod(s, 4)
    return [ds_read_b128(Xf(s), vAX[sp], (pc % 2) * 16384)]


def rd_k(j, s):
    return [ds_read_b128(Kf(s), vAK, KS[j % 4] + s * 32)]


def rd_v(j, f):
    dt, ks = divmod(f, 2)
    d = Vf(f)
    off = VS[j % 4] + ks * 512 + dt * 64
    return [ds_read_tr(d[0:2], vAV, off), ds_read_tr(d[2:4], vAV, off + 4 * VSTR)]


def rd_wo(f):
    sg, r = divmod(f, 32)
    ks, tt = divmod(r, 2)
    slot = sg % 4
    base = vAWO[slot // 2][tt]
    off = (slot % 2) * WOSLOT + ks * 2048
    d = Wf(f)
    return [ds_read_tr(d[0:2], base, off), ds_read_tr(d[2:4], base, off + 512)]


def sm_max(p):
    out = []
    for qb in range(2):
        s_ = Sb(p, qb)
        t = vT[qb]
        out.append(valu("v_max3_f32", t, s_[0], s_[1], s_[2]))
        for r in range(3, 15, 2):
            out.append(valu("v_max3_f32", t, t, s_[r], s_[r + 1]))
        out.append(valu("v_max_f32", t, t, s_[15]))
    for qb in range(2):
        out.append(valu("v_mov_b32", vU[qb], vT[qb]))
    for qb in range(2):
        out.append(Ins(f"v_permlane32_swap_b32 {vT[qb]}, {vU[qb]}", "perm", defs=[vT[qb], vU[qb]],
                       uses=[vT[qb], vU[qb]]))
    for qb in range(2):
        out.append(valu("v_max_f32", vT[qb], vT[qb], vU[qb]))
    return out


_lbl = 0


def sm_check(first):
    global _lbl
    out = []
    if first:
        for qb in range(2):
            out.append(valu("v_mov_b32", vMR[qb], vT[qb]))
            out.append(valu("v_mul_f32", vM[qb], sC, vT[qb]))
            out.append(valu("v_add_f32", vTHR[qb], sTRAW, vT[qb]))
            out.append(valu("v_mov_b32", vL[qb], 0))
        return out
    out.append(valu("v_cmp_gt_f32", sMASK0, vT[0], vTHR[0]))
    out.append(valu("v_cmp_gt_f32", sMASK1, vT[1], vTHR[1]))
    _lbl += 1
    out.append(Group([
        salu(f"s_or_b64 {sMASK0}, {sMASK0}, {sMASK1}", defs=[sMASK0], uses=[sMASK0, sMASK1]),
        salu(f"s_cbranch_scc0 L_noslow{_lbl}"),
        Ins(f"s_call_b64 {sRET}, L_slow", "salu", cost=2,
            defs=vM + vTHR + vL + vAL + vMR + vU, uses=vM + vTHR + vL + vT + vMR),
        label(f"L_noslow{_lbl}")]))
    return out


def sm_exp(p, qb, grp):
    s_ = Sb(p, qb)
    out = []
    rs = range(4 * grp, 4 * grp + 4)
    for r in rs:
        out.append(valu("v_fma_f32", s_[r], s_[r], sC, ("-", vM[qb])))
    for r in rs:
        out.append(valu("v_exp_f32", s_[r], s_[r]))
    for r in rs:
        out.append(valu("v_add_f32", vL[qb], vL[qb], s_[r]))
    ks, g2 = divmod(grp, 2)
    for jj in range(2):
        j = 2 * g2 + jj
        out.append(valu("v_cvt_pk_bf16_f32", s_[8 * ks + j], s_[8 * ks + 2 * j], s_[8 * ks + 2 * j + 1]))
    return out


def Pf(p, qb, ks):
    return Sb(p, qb)[8 * ks: 8 * ks + 4]


def resc_check():
    global _lbl
    _lbl += 1
    return [
        salu(f"s_cmp_eq_u32 {sFLAG}, 0", uses=[sFLAG]),
        salu(f"s_cbranch_scc1 L_nores{_lbl}"),
        Ins(f"s_call_b64 {sRET}, L_resc", "salu", cost=2),
        label(f"L_nores{_lbl}"),
    ]


def softmax1(j):
    p = j % 2
    out = sm_max(p) + sm_check(j == 0)
    for gi in range(NG1):
        out += sm_exp(p, gi // 4, gi % 4)
    return out


def softmax2(j):
    p = j % 2
    out = []
    for gi in range(NG1, 8):
        out += sm_exp(p, gi // 4, gi % 4)
    return out


def conv_o(ksg):
    qb, s = divmod(ksg, 16)
    dt, hf = divmod(s, 2)
    acc = Oacc(dt, qb)
    out = []
    for ee in range(8):
        out.append(valu("v_accvgpr_read_b32", vTMP[ee], acc[hf * 8 + ee]))
    for ee in range(8):
        out.append(valu("v_mul_f32", vTMP[ee], vTMP[ee], vL[qb]))
    for jj in range(4):
        out.append(valu("v_cvt_pk_bf16_f32", Of(ksg)[jj], vTMP[2 * jj], vTMP[2 * jj + 1]))
    return out


def store_pass(ps):
    out = []
    for tt in range(2):
        acc = Wacc(ps % 2, tt)
        for sp in range(2):
            g = []
            for jj in range(4):
                g.append(valu("v_cvt_pk_bf16_f32", acc[8 * sp + jj], acc[8 * sp + 2 * jj], acc[8 * sp + 2 * jj + 1]))
            g.append(salu(f"s_add_u32 {sT0}, {sOFFWS}, {ps * 4096}", defs=[sT0]))
            g.append(bstore(acc[8 * sp: 8 * sp + 4], vL16, SRD_WS, sT0, off=(2 * tt + sp) * 1024, flags=STF))
            out.append(g)
    return out


def gen_k1():
    st = []
    e = st.append
    ext = st.extend
    ext(stamp())
    e(salu("s_cmp_ge_u32 s2, 256"))
    e(salu("s_cbranch_scc1 L_end"))
    e(salu(f"s_and_b32 {sG}, s2, 7"))
    e(salu(f"s_lshr_b32 s3, s2, 6"))
    e(salu(f"s_xor_b32 {sG}, {sG}, s3"))
    e(salu(f"s_lshr_b32 {sB}, s2, 3"))
    e(salu(f"s_and_b32 {sB}, {sB}, 15"))
    e(salu(f"s_lshr_b32 {sBLK}, s2, 7"))
    e(salu(f"s_load_dwordx2 s[14:15], s[0:1], 96"))
    e(salu(f"s_mul_i32 s3, {sBLK}, 40"))
    e(salu("s_add_u32 s0, s0, s3"))
    e(salu("s_addc_u32 s1, s1, 0"))
    e(salu("s_load_dwordx8 s[4:11], s[0:1], 0"))
    e(salu("s_load_dwordx2 s[12:13], s[0:1], 32"))
    lane, tA, tB, tC, tD, tE = (vTMP[i] for i in range(6))
    e(valu("v_and_b32", lane, 63, V(0)))
    e(valu("v_lshrrev_b32", tA, 6, V(0)))
    e(Ins(f"v_readfirstlane_b32 {sW}, {tA}", "valu", defs=[sW], uses=[tA]))
    e(valu("v_lshlrev_b32", vL16, 4, lane))
    e(valu("v_lshrrev_b32", tA, 3, lane))
    e(valu("v_mul_u32_u24", tA, 896, tA))
    e(valu("v_and_b32", tB, 7, lane))
    e(valu("v_lshrrev_b32", tC, 4, lane))
    e(valu("v_xor_b32", tB, tB, tC))
    e(valu("v_lshl_add_u32", vXO[0], tB, 4, tA))
    e(valu("v_xor_b32", vXO[1], 64, vXO[0]))
    e(salu(f"s_mul_i32 {sM0V}, {sW}, {4 * VSTR}", uses=[sW]))
    e(salu(f"s_lshl_b32 {sOFFWQ}, {sW}, 15"))
    e(salu(f"s_lshl_b32 {sM0X}, {sW}, 12"))
    e(salu(f"s_add_u32 {sM0X}, {sM0X}, {XBASE}"))
    e(salu(f"s_mul_i32 {sOFFX}, {sW}, {32 * 896}"))
    e(raw("s_waitcnt lgkmcnt(0)", "wait"))

    def srd(d, ptr_lo, off_expr_reg, size):
        e(salu(f"s_add_u32 s{d.b}, s{ptr_lo}, {off_expr_reg}"))
        e(salu(f"s_addc_u32 s{d.b + 1}, s{ptr_lo + 1}, 0"))
        e(salu(f"s_mov_b32 s{d.b + 2}, {size}"))
        e(salu(f"s_mov_b32 s{d.b + 3}, 0x00020000"))

    e(salu(f"s_lshl_b32 s3, {sG}, 10"))
    srd(SRD_WQ, 10, "s3", 447 * 8192 + 1024)
    e(salu(f"s_mul_i32 s3, {sB}, 114688"))
    srd(SRD_X, 4, "s3", 114688)
    ext(stamp())
    ext(dma_wq(0))
    ext(dma_x(0))
    ext(dma_wq(1))
    ext(dma_x(1))
    ext(dma_wq(2))
    e(salu(f"s_lshl_b32 s3, {sB}, 3"))
    e(salu(f"s_add_u32 s3, s3, {sG}"))
    e(salu(f"s_lshl_b32 s3, s3, 18"))
    srd(SRD_K, 6, "s3", 262144)
    srd(SRD_V, 8, "s3", 262144)
    e(salu(f"s_mul_i32 s3, {sG}, 458752"))
    srd(SRD_WO, 12, "s3", 458752)
    e(salu(f"s_andn2_b32 s3, s2, 7"))
    e(salu(f"s_or_b32 s3, s3, {sG}"))
    e(salu(f"s_mul_i32 s3, s3, {PART}"))
    srd(SRD_WS, 14, "s3", PART)
    e(salu(f"s_mov_b32 {sC}, {f32bits(CSCALE):#x}"))
    e(salu(f"s_mov_b32 {sTRAW}, {f32bits(TRAW):#x}"))
    e(salu(f"s_mov_b32 {sFLAG}, 0"))
    e(salu(f"s_mul_i32 {sM0K}, {sW}, {4 * KSTR}"))
    e(salu(f"s_lshl_b32 {sOFFKV}, {sW}, 11"))
    e(salu(f"s_lshl_b32 {sM0WO}, {sW}, 13"))
    e(salu(f"s_mul_i32 {sOFFWO}, {sW}, {64 * 896}"))
    e(salu(f"s_mul_i32 {sOFFWS}, {sW}, {14 * 2048}"))
    e(valu("v_lshrrev_b32", tA, 5, lane))
    e(valu("v_and_b32", tB, 31, lane))
    e(valu("v_lshlrev_b32", tC, 13, tA))
    e(valu("v_lshl_add_u32", vOFFKV, tB, 4, tC))
    e(valu("v_bfe_u32", tC, tB, 1, 3))
    e(valu("v_xor_b32", tC, tC, tA))
    e(valu("v_lshlrev_b32", tC, 4, tC))
    e(valu("v_lshl_add_u32", tC, tB, 7, tC))
    e(valu("v_add_u32", vAX[0], sM0X, tC))
    for sp in range(1, 4):
        e(valu("v_xor_b32", vAX[sp], sp << 5, vAX[0]))
    e(valu("v_and_b32", tC, 3, tB))
    e(valu("v_and_b32", tD, 4, tB))
    e(valu("v_lshl_add_u32", tC, tD, 1, tC))
    e(valu("v_and_b32", tD, 8, tB))
    e(valu("v_lshrrev_b32", tD, 1, tD))
    e(valu("v_add_u32", tC, tC, tD))
    e(valu("v_mul_u32_u24", vAK, KSTR, tC))
    e(valu("v_lshrrev_b32", tD, 4, tB))
    e(valu("v_lshl_add_u32", vAK, tD, 9, vAK))
    e(valu("v_lshl_add_u32", vAK, tA, 4, vAK))
    e(valu("v_bfe_u32", tE, lane, 2, 2))
    e(valu("v_lshl_add_u32", tC, tA, 3, tE))
    e(valu("v_and_b32", tD, 1, lane))
    e(valu("v_lshlrev_b32", tD, 4, tD))
    e(valu("v_and_b32", tB, 2, lane))
    e(valu("v_lshl_add_u32", tD, tB, 2, tD))
    e(valu("v_bfe_u32", tB, lane, 4, 1))
    e(valu("v_lshl_add_u32", tD, tB, 5, tD))
    e(valu("v_mul_u32_u24", vAV, VSTR, tC))
    e(valu("v_add_u32", vAV, vAV, tD))
    e(valu("v_add_u32", vAWQ, P1BASE, vAV))
    e(valu("v_add_u32", vAV, VBASE, vAV))
    e(valu("v_lshl_add_u32", tC, tC, 7, tD))
    e(valu("v_lshrrev_b32", tE, 1, tE))
    e(valu("v_lshlrev_b32", tE, 6, tE))
    e(valu("v_add_u32", vAWO[0][0], tC, tE))
    e(valu("v_xor_b32", tE, 64, tE))
    e(valu("v_add_u32", vAWO[0][1], tC, tE))
    e(valu("v_add_u32", vAWO[1][0], 2 * WOSLOT, vAWO[0][0]))
    e(valu("v_add_u32", vAWO[1][1], 2 * WOSLOT, vAWO[0][1]))
    e(valu("v_lshrrev_b32", tC, 3, lane))
    e(valu("v_mul_u32_u24", tC, 896, tC))
    e(valu("v_and_b32", tD, 7, lane))
    e(valu("v_lshlrev_b32", tB, 2, tB))
    e(valu("v_xor_b32", tD, tD, tB))
    e(valu("v_lshl_add_u32", vOFFWO, tD, 4, tC))
    if WARM:
        e(valu("v_lshrrev_b32", tA, 3, lane))
        e(valu("v_and_b32", tB, 7, lane))
        e(valu("v_lshlrev_b32", tA, 13, tA))
        e(valu("v_lshl_add_u32", vPFWQ, tB, 7, tA))
        e(salu(f"s_and_b32 s3, {sB}, 7"))
        e(salu(f"s_mul_i32 s3, s3, {56 * 8192}"))
        e(salu(f"s_lshl_b32 {sT2}, {sW}, 16"))
        e(salu(f"s_add_u32 {sT2}, {sT2}, s3"))
        e(pfload(vDUMMY, vPFWQ, SRD_WQ, sT2, tag=("pfw", 0), n=1))
        e(salu(f"s_add_u32 {sT2}, {sT2}, {4 << 16}"))
        e(pfload(vDUMMY, vPFWQ, SRD_WQ, sT2, tag=("pfw", 1), n=1))
    ext(stamp())
    e(WaitVM(("x", 0)))
    ext(stamp())
    for s in range(4):
        ext(rd_x(s))
    e(barrier())

    LA = 6
    for f in range(LA):
        ext(rd_wq(f))
    kv_at = {2: dma_v(0), 6: dma_k(0), 10: dma_k(1), 23: dma_k(2), 25: dma_k(3)}
    for s in range(28):
        if STAMP and s in (0, 14):
            ext(stamp())
        slots = []
        for nt in range(16):
            f = 16 * s + nt
            sl = [mfma(Qacc(nt), Wf(f), Xf(s), Qacc(nt) if s > 0 else 0)]
            if f + LA < 448:
                sl += rd_wq(f + LA)
            if nt == 3 and s + 1 < 28:
                if s == 23:
                    sl += [WaitAll(vm=False, lgkm=True)]
                sl += [WaitVM(("wq", s + 1)), barrier()]
            slots.append(sl)
        fill = []
        if s + NP1 - 1 < 28:
            fill += dma_wq(s + NP1 - 1)
        if s in kv_at:
            fill += kv_at[s]
        if s % 4 == 1 and (s + 3) // 4 < 7:
            pc = (s + 3) // 4
            fill += [WaitVM(("x", pc))]
            for s2 in range(4):
                fill += rd_x(4 * pc + s2)
        if s % 4 == 0 and s // 4 + 2 < 7:
            fill += [WaitAll(vm=False, lgkm=True)] if s == 0 else []
            fill += dma_x(s // 4 + 2)
        ext(interleave(slots, fill, start=4, end=14))

    ext(stamp())
    e(WaitVM(("k", 0)))
    e(barrier())
    ext(dma_v(1))
    for s3 in range(3):
        ext(rd_k(0, s3))
    for qb in range(2):
        for s in range(16):
            acc = Qacc(qb * 8 + s // 2)
            for ee in range(8):
                e(valu("v_accvgpr_read_b32", vX[(s % 2) * 8 + ee], acc[(s % 2) * 8 + ee]))
            for jj in range(4):
                e(valu("v_cvt_pk_bf16_f32", Qf(qb, s)[jj], vX[(s % 2) * 8 + 2 * jj], vX[(s % 2) * 8 + 2 * jj + 1]))

    ext(stamp())
    for j in range(17):
        p = j % 2
        if j in (4, 12):
            ext(stamp())
        fillA = softmax2(j - 1) if j >= 1 else []
        if j < 16:
            slots = []
            for s in range(16):
                for qb in range(2):
                    sl = [mfma(Sb(p, qb), Kf(s), Qf(qb, s), Sb(p, qb) if s > 0 else 0)]
                    if qb == 0:
                        if s + 3 < 16:
                            sl += rd_k(j, s + 3)
                        elif j >= 1:
                            sl += rd_v(j - 1, s + 3 - 16)
                    slots.append(sl)
            ext(interleave(slots, fillA, start=0, end=30))
        else:
            for f in range(3):
                ext(rd_v(j - 1, f))
            ext(fillA)
        if j >= 2:
            ext(resc_check())
        waits = []
        if j + 1 < 16:
            waits.append(("k", j + 1))
        if j < 16:
            waits.append(("v", j))
        grp = []
        if j + 4 < 16:
            grp += dma_k(j + 4)
        if j + 2 < 16:
            grp += dma_v(j + 2)
        if j == 13:
            grp += dma_wo(0)
        if j == 15:
            grp += dma_wo(1) + dma_wo(2)
        sync = [WaitVM(waits), barrier()] if j < 16 else []
        fillB = softmax1(j) if j < 16 else []
        if j == 16:
            for qb in range(2):
                fillB.append(valu("v_mov_b32", vU[qb], vL[qb]))
            for qb in range(2):
                fillB.append(Ins(f"v_permlane32_swap_b32 {vL[qb]}, {vU[qb]}", "perm",
                                 defs=[vL[qb], vU[qb]], uses=[vL[qb], vU[qb]]))
            for qb in range(2):
                fillB.append(valu("v_add_f32", vL[qb], vL[qb], vU[qb]))
            for qb in range(2):
                fillB.append(valu("v_rcp_f32", vL[qb], vL[qb]))
        if j >= 1:
            slots = []
            for f in range(16):
                dt, ks = divmod(f, 2)
                for qb in range(2):
                    sl = [mfma(Oacc(dt, qb), Vf(f), Pf(1 - p, qb, ks),
                               Oacc(dt, qb) if (j > 1 or ks > 0) else 0)]
                    if qb == 0:
                        if f + 3 < 16:
                            sl += rd_v(j - 1, f + 3)
                        elif j + 1 < 16:
                            sl += rd_k(j + 1, f + 3 - 16)
                    if f == 0 and qb == 1:
                        sl += sync
                    slots.append(sl)
            ext(interleave(slots, grp + fillB, start=2, end=32))
        else:
            ext(sync)
            ext(grp)
            for s3 in range(3):
                ext(rd_k(1, s3))
            ext(fillB)

    ext(stamp())
    e(WaitVM(("wo", 0)))
    e(barrier())
    ext(dma_wo(3))
    for f in range(LA):
        ext(rd_wo(f))
    CLA = 2
    for ksg in range(CLA):
        ext(conv_o(ksg))

    ext(stamp())
    for sg in range(14):
        ps, hs = divmod(sg, 2)
        slots = []
        for r in range(32):
            f = 32 * sg + r
            ks, tt = divmod(r, 2)
            ksg = 16 * hs + ks
            acc = Wacc(ps % 2, tt)
            sl = [mfma(acc, Wf(f), Of(ksg), acc if ksg > 0 else 0)]
            if f + LA < 448:
                sl += rd_wo(f + LA)
            if ps == 0 and ksg + CLA < 32:
                cv = conv_o(ksg + CLA)
                sl += cv[:10] if tt == 0 else cv[10:]
            if r == 3 and sg + 1 < 14:
                sl += [WaitVM(("wo", sg + 1)), barrier()]
            slots.append(sl)
        fill = []
        if sg >= 1 and sg + 3 < 14:
            fill += dma_wo(sg + 3)
        if ps >= 1:
            sp_ = store_pass(ps - 1)
            for k in range(2):
                slots[10 + 12 * k] += sp_[2 * hs + k]
        ext(interleave(slots, fill, start=4, end=26))

    ext(stamp())
    for g_ in store_pass(6):
        ext(g_)
    if STAMP:
        e(WaitAll())
    ext(stamp())
    ext(stamp_store())
    e(label("L_end"))
    e(raw("s_endpgm"))

    lines = finalize(st)

    sub = []
    s_ = sub.append
    s_(label("L_slow"))
    s_(nop(2))
    for qb in range(2):
        s_(valu("v_max_f32", vMR[qb], vMR[qb], vT[qb]))
        s_(valu("v_mul_f32", vU[qb], sC, vMR[qb]))
        s_(valu("v_sub_f32", vAL[qb], vM[qb], vU[qb]))
        s_(valu("v_exp_f32", vAL[qb], vAL[qb]))
        s_(valu("v_mov_b32", vM[qb], vU[qb]))
        s_(valu("v_add_f32", vTHR[qb], sTRAW, vMR[qb]))
        s_(valu("v_mul_f32", vL[qb], vL[qb], vAL[qb]))
    s_(salu(f"s_mov_b32 {sFLAG}, 1"))
    s_(nop(2))
    s_(raw(f"s_setpc_b64 {sRET}"))
    s_(label("L_resc"))
    s_(nop(16))
    tt = [vU[0], vU[1], vT[0], vT[1]]
    for dt in range(8):
        for qb in range(2):
            acc = Oacc(dt, qb)
            for r0 in range(0, 16, 4):
                for k in range(4):
                    s_(valu("v_accvgpr_read_b32", tt[k], acc[r0 + k]))
                for k in range(4):
                    s_(valu("v_mul_f32", tt[k], tt[k], vAL[qb]))
                for k in range(4):
                    s_(valu("v_accvgpr_write_b32", acc[r0 + k], tt[k]))
    s_(salu(f"s_mov_b32 {sFLAG}, 0"))
    s_(nop(4))
    s_(raw(f"s_setpc_b64 {sRET}"))
    lines += finalize(sub)
    return lines


def gen_k2():
    st = []
    e = st.append
    e(salu("s_cmp_ge_u32 s2, 896"))
    e(salu("s_cbranch_scc1 L2_end"))
    e(salu("s_load_dwordx2 s[4:5], s[0:1], 80"))
    e(salu("s_load_dwordx2 s[6:7], s[0:1], 96"))
    e(salu("s_and_b32 s8, s2, 1"))
    e(salu("s_lshr_b32 s9, s2, 1"))
    e(salu("s_mul_i32 s10, s9, 4682"))
    e(salu("s_lshr_b32 s10, s10, 16"))
    e(salu("s_mul_i32 s11, s10, 14"))
    e(salu("s_sub_u32 s11, s9, s11"))
    lane, w, t1, t2 = V(1), V(2), V(3), V(4)
    e(valu("v_and_b32", lane, 63, V(0)))
    e(valu("v_lshrrev_b32", w, 6, V(0)))
    e(valu("v_mul_u32_u24", t1, 14 * 2048, w))
    e(valu("v_lshl_add_u32", t1, lane, 4, t1))
    e(salu("s_lshl_b32 s12, s11, 11"))
    e(salu("s_lshl_b32 s13, s8, 10"))
    e(salu("s_add_u32 s12, s12, s13"))
    e(valu("v_add_u32", t1, S(12), t1))
    e(salu("s_and_b32 s13, s10, 15"))
    e(salu("s_lshr_b32 s14, s10, 4"))
    e(salu("s_mul_i32 s13, s13, 229376"))
    e(salu("s_mul_i32 s14, s14, 896"))
    e(salu("s_add_u32 s13, s13, s14"))
    e(salu("s_lshl_b32 s14, s11, 6"))
    e(salu("s_add_u32 s13, s13, s14"))
    e(salu("s_lshl_b32 s14, s8, 5"))
    e(salu("s_add_u32 s13, s13, s14"))
    e(valu("v_and_b32", t2, 31, lane))
    e(valu("v_lshl_add_u32", t2, w, 5, t2))
    e(valu("v_mul_u32_u24", t2, 1792, t2))
    e(valu("v_lshrrev_b32", lane, 5, lane))
    e(valu("v_lshl_add_u32", t2, lane, 4, t2))
    e(valu("v_add_u32", t2, S(13), t2))
    e(raw("s_waitcnt lgkmcnt(0)", "wait"))
    e(salu("s_mov_b32 s16, s4"))
    e(salu("s_mov_b32 s17, s5"))
    e(salu(f"s_mov_b32 s18, {16 * 128 * 896 * 2}"))
    e(salu("s_mov_b32 s19, 0x00020000"))
    e(salu(f"s_mul_i32 s14, s10, {8 * PART}"))
    e(salu("s_add_u32 s20, s6, s14"))
    e(salu("s_addc_u32 s21, s7, 0"))
    e(salu(f"s_mov_b32 s22, {8 * PART}"))
    e(salu("s_mov_b32 s23, 0x00020000"))
    e(salu("s_mov_b32 s32, 0xffff0000"))
    so, sw = S(16, 4), S(20, 4)
    for g in range(8):
        e(salu(f"s_mov_b32 s{24 + g}, {g * PART}"))
    for g in range(8):
        e(bload(V(8 + g * 4, 4), t1, sw, S(24 + g), flags=K2F))
    acc = V(40, 8)
    tmp = V(48, 8)
    for g in range(8):
        for jj in range(4):
            src = V(8 + g * 4 + jj)
            dlo, dhi = (acc[2 * jj], acc[2 * jj + 1]) if g == 0 else (tmp[2 * jj], tmp[2 * jj + 1])
            e(valu("v_lshlrev_b32", dlo, 16, src))
            e(valu("v_and_b32", dhi, S(32), src))
        if g:
            for k in range(8):
                e(valu("v_add_f32", acc[k], acc[k], tmp[k]))
    for jj in range(4):
        e(valu("v_cvt_pk_bf16_f32", V(56 + jj), acc[2 * jj], acc[2 * jj + 1]))
    e(bstore(V(56, 4), t2, so, 0))
    e(label("L2_end"))
    e(raw("s_endpgm"))
    return finalize(st)


HEADER = open(os.path.join(os.path.dirname(os.path.abspath(__file__)), "header.txt")).read()


def kd(name, vgpr, accum, sgpr):
    return f""".amdhsa_kernel {name}
  .amdhsa_next_free_vgpr {vgpr}
  .amdhsa_next_free_sgpr {sgpr}
  .amdhsa_accum_offset {accum}
  .amdhsa_group_segment_fixed_size 0
  .amdhsa_kernarg_size 104
  .amdhsa_user_sgpr_count 2
  .amdhsa_user_sgpr_kernarg_segment_ptr 1
  .amdhsa_system_sgpr_workgroup_id_x 1
.end_amdhsa_kernel
"""


def main():
    out = HEADER
    out += f"; @launch kernel={K1} grid=(256,1,1) block=(256,1,1) lds={LDS_BYTES}\n"
    out += f"; @launch kernel={K2} grid=(896,1,1) block=(256,1,1) lds=0\n"
    out += '.amdgcn_target "amdgcn-amd-amdhsa--gfx950"\n.text\n'
    for name, gen in ((K1, gen_k1), (K2, gen_k2)):
        out += f".globl {name}\n.p2align 8\n.type {name},@function\n{name}:\n"
        out += "\n".join(gen()) + "\n"
    out += '.section .rodata,"a"\n.p2align 6\n'
    out += kd(K1, 512, 256, 102)
    out += ".p2align 6\n"
    out += kd(K2, 64, 64, 40)
    dst = sys.argv[1] if len(sys.argv) > 1 else f"cdna_kernels/{NAME}.s"
    open(dst, "w").write(out)
    print("wrote", dst, len(out), "bytes", out.count("\n"), "lines")


if __name__ == "__main__":
    main()
```

```python
class R:
    __slots__ = ("k", "b", "n")

    def __init__(self, k, b, n=1):
        self.k, self.b, self.n = k, b, n

    def __str__(self):
        if self.n == 1:
            return f"{self.k}{self.b}"
        return f"{self.k}[{self.b}:{self.b + self.n - 1}]"

    def regs(self):
        return {(self.k, self.b + i) for i in range(self.n)}

    def __getitem__(self, i):
        if isinstance(i, slice):
            st = i.start or 0
            return R(self.k, self.b + st, i.stop - st)
        assert 0 <= i < self.n
        return R(self.k, self.b + i, 1)


def V(b, n=1):
    return R("v", b, n)


def A(b, n=1):
    return R("a", b, n)


def S(b, n=1):
    return R("s", b, n)


def _regs(xs):
    out = set()
    for x in xs:
        if isinstance(x, R):
            out |= x.regs()
    return out


class Ins:
    __slots__ = ("text", "kind", "defs", "uses", "cuse", "tag", "cost", "abuse")

    def __init__(self, text, kind, defs=(), uses=(), cuse=(), tag=None, cost=4, abuse=()):
        self.text = text
        self.kind = kind
        self.defs = _regs(defs)
        self.uses = _regs(uses)
        self.cuse = _regs(cuse)
        self.abuse = _regs(abuse)
        self.tag = tag
        self.cost = cost


TRANS = {"v_exp_f32", "v_rcp_f32", "v_log_f32", "v_rsq_f32", "v_sqrt_f32"}


def valu(op, dst, *srcs, extra_defs=(), extra_uses=()):
    ops = ", ".join(str(x) for x in (dst,) + srcs)
    uses = []
    txt = [str(dst)]
    for s in srcs:
        if isinstance(s, tuple):
            txt.append(s[0] + str(s[1]))
            uses.append(s[1])
        else:
            txt.append(str(s))
            uses.append(s)
    kind = "trans" if op in TRANS else "valu"
    return Ins(f"{op} " + ", ".join(txt), kind, defs=[dst] + list(extra_defs),
               uses=uses + list(extra_uses), cost=8 if kind == "trans" else 4)


import os
_MF16 = int(os.environ.get("MF16", "0"))
_mfc = [0]


def mfma(D, Aop, Bop, C):
    cu = [C] if isinstance(C, R) else []
    if _MF16:
        _mfc[0] += 1
        o = 4 * (_mfc[0] % 2)
        t = []
        for b in (o, o + 8):
            c = C[b:b + 4] if isinstance(C, R) else C
            t.append(f"v_mfma_f32_16x16x32_bf16 {D[b:b + 4]}, {Aop}, {Bop}, {c}")
        return Ins("\n  ".join(t), "mfma", defs=[D], uses=[Aop, Bop] + cu, cuse=cu, abuse=[Aop, Bop], cost=16)
    return Ins(f"v_mfma_f32_32x32x16_bf16 {D}, {Aop}, {Bop}, {C}", "mfma", defs=[D],
               uses=[Aop, Bop] + cu, cuse=cu, abuse=[Aop, Bop], cost=8)


def ds_read_b128(dst, addr, off):
    assert 0 <= off < 65536, off
    return Ins(f"ds_read_b128 {dst}, {addr} offset:{off}", "ds", defs=[dst], uses=[addr])


def ds_read_tr(dst, addr, off):
    assert 0 <= off < 65536, off
    return Ins(f"ds_read_b64_tr_b16 {dst}, {addr} offset:{off}", "ds", defs=[dst], uses=[addr])


def salu(text, defs=(), uses=()):
    return Ins(text, "salu", defs=defs, uses=uses, cost=2)


def setm0(text):
    i = Ins(text, "salu", cost=2)
    i.defs = {("m0", 0)}
    return i


def dma(voff, srd, soff, off=0, tag=None, flags=""):
    assert 0 <= off < 4096
    t = f"buffer_load_dwordx4 {voff}, {srd}, {soff} offen"
    if off:
        t += f" offset:{off}"
    if flags:
        t += " " + flags
    t += " lds"
    i = Ins(t, "dma", uses=[voff, srd, soff], tag=tag, cost=16)
    i.uses |= {("m0", 0)}
    return i


def bload(dst, voff, srd, soff, off=0, tag=None, n=4, flags=""):
    assert 0 <= off < 4096
    op = {4: "buffer_load_dwordx4", 2: "buffer_load_dwordx2", 1: "buffer_load_dword"}[n]
    t = f"{op} {dst}, {voff}, {srd}, {soff} offen"
    if off:
        t += f" offset:{off}"
    if flags:
        t += " " + flags
    return Ins(t, "vmem", defs=[dst], uses=[voff, srd, soff], tag=tag, cost=8)


def bstore(src, voff, srd, soff, off=0, n=4, flags=""):
    assert 0 <= off < 4096
    op = {4: "buffer_store_dwordx4", 2: "buffer_store_dwordx2", 1: "buffer_store_dword"}[n]
    t = f"{op} {src}, {voff}, {srd}, {soff} offen"
    if off:
        t += f" offset:{off}"
    if flags:
        t += " " + flags
    return Ins(t, "store", uses=[src, voff, srd, soff], cost=8)


def raw(text, kind="other", **kw):
    return Ins(text, kind, **kw)


def label(name):
    return Ins(name + ":", "label", cost=0)


class Group:
    def __init__(self, items):
        self.items = items
        self.cost = sum(x.cost for x in items)
        self.kind = "group"


def flatten(stream):
    out = []
    for it in stream:
        if isinstance(it, Group):
            out.extend(flatten(it.items))
        else:
            out.append(it)
    return out


class WaitVM:
    def __init__(self, tag):
        self.tag = tag
        self.cost = 4
        self.kind = "pseudo"


class WaitAll:
    def __init__(self, vm=True, lgkm=True):
        self.vm, self.lgkm = vm, lgkm
        self.cost = 4
        self.kind = "pseudo"


def finalize(stream):
    stream = flatten(stream)
    if _MF16:
        ns = []
        i = 0
        while i < len(stream):
            it = stream[i]
            if isinstance(it, Ins) and it.kind == "mfma":
                j = i + 1
                while (j < len(stream) and isinstance(stream[j], Ins)
                       and stream[j].kind in ("ds", "valu", "trans", "dma", "perm")
                       and not (stream[j].defs & it.uses) and not ((stream[j].uses | stream[j].defs) & it.defs)):
                    j += 1
                mid = i + 1 + (j - i) // 2
                a, b = it.text.split("\n  ")
                ia = Ins(a, "mfma"); ib = Ins(b, "mfma")
                for x in (ia, ib):
                    x.defs, x.uses, x.cuse, x.abuse = it.defs, it.uses, it.cuse, it.abuse
                ns.append(ia)
                ns.extend(stream[i + 1: mid])
                ns.append(ib)
                i = mid
            else:
                ns.append(it)
                i += 1
        stream = ns
    out = []
    dsq = []
    vmq = []

    def emit_wait(vm=None, lg=None):
        parts = []
        if vm is not None:
            parts.append(f"vmcnt({min(vm, 63)})")
        if lg is not None:
            parts.append(f"lgkmcnt({min(lg, 15)})")
        out.append(Ins("s_waitcnt " + " ".join(parts), "wait"))

    for it in stream:
        if isinstance(it, WaitVM):
            idx = None
            for i, (tag, _) in enumerate(vmq):
                if tag == it.tag or (isinstance(it.tag, (tuple, list, set)) and tag in it.tag):
                    idx = i
            if idx is not None:
                cnt = len(vmq) - 1 - idx
                emit_wait(vm=cnt)
                del vmq[: idx + 1]
            continue
        if isinstance(it, WaitAll):
            emit_wait(vm=0 if it.vm else None, lg=0 if it.lgkm else None)
            if it.vm:
                vmq.clear()
            if it.lgkm:
                dsq.clear()
            continue
        touched = it.uses | it.defs
        idx = None
        for i, d in enumerate(dsq):
            if d & touched:
                idx = i
        lg = None
        if idx is not None:
            lg = len(dsq) - 1 - idx
            del dsq[: idx + 1]
        idx = None
        for i, (_, d) in enumerate(vmq):
            if d & touched:
                idx = i
        vm = None
        if idx is not None:
            vm = len(vmq) - 1 - idx
            del vmq[: idx + 1]
        if lg is not None or vm is not None:
            emit_wait(vm=vm, lg=lg)
        out.append(it)
        if it.kind == "ds":
            dsq.append(set(it.defs))
        elif it.kind == "vmem":
            vmq.append((it.tag, set(it.defs)))
        elif it.kind in ("dma", "store"):
            vmq.append((it.tag, set()))

    res = []
    hist = []
    pos = 0

    def need(it):
        req = 0
        isvalu = it.kind in ("valu", "trans", "perm")
        for prev, p in reversed(hist):
            dist = pos - p - 1
            if dist >= 20:
                break
            r = 0
            pk = prev.kind
            if pk in ("valu", "trans", "perm"):
                if it.kind == "mfma" and (prev.defs & it.uses):
                    r = max(r, 2)
                if pk == "trans" and isvalu and it.kind != "trans" and (prev.defs & it.uses):
                    r = max(r, 1)
                if pk == "trans" and it.kind == "trans" and (prev.defs & it.uses):
                    r = max(r, 1)
                if it.kind == "perm" and (prev.defs & (it.uses | it.defs)):
                    r = max(r, 2)
                sdefs = {x for x in prev.defs if x[0] in ("s", "vcc")}
                if sdefs:
                    if isvalu and (sdefs & it.uses):
                        r = max(r, 2)
                    if it.kind in ("vmem", "dma", "store") and (sdefs & it.uses):
                        r = max(r, 5)
                    if it.kind == "salu" and (sdefs & it.uses):
                        r = max(r, 2)
                if it.text.startswith("v_readfirstlane") and (prev.defs & it.uses):
                    r = max(r, 1)
            if pk == "mfma":
                if it.kind == "mfma":
                    if prev.defs & it.abuse:
                        r = max(r, 12)
                    if (prev.defs & it.cuse) and prev.defs != it.cuse:
                        r = max(r, 10)
                elif isvalu or it.kind in ("vmem", "dma", "store", "ds"):
                    if prev.defs & (it.uses | it.defs):
                        r = max(r, 12)
                    if isvalu and (prev.cuse & it.defs):
                        r = max(r, 7)
            if pk == "salu" and ("m0", 0) in prev.defs and it.kind == "dma":
                r = max(r, 1)
            if pk == "store" and (prev.uses & it.defs):
                r = max(r, 2)
            req = max(req, r - dist)
        return req

    for it in out:
        if it.kind == "label":
            res.append(it.text)
            continue
        n = need(it)
        while n > 0:
            k = min(n, 16)
            res.append(f"  s_nop {k - 1}")
            pos += k
            n -= k
        res.append("  " + it.text)
        hist.append((it, pos))
        if it.kind == "nop":
            pos += it.cost
        else:
            pos += 1
        if len(hist) > 40:
            del hist[:10]
    return res


def nop(n):
    return Ins(f"s_nop {n - 1}", "nop", cost=n)


def interleave(slots, fillers, cap=24, start=0, end=None):
    n = len(slots)
    if end is None:
        end = n
    free = []
    for i, sl in enumerate(slots):
        f = sum(x.cost for x in sl if x.kind != "mfma")
        free.append(max(cap - f, 2) if start <= i < end else 0)
    tot_free = sum(free)
    tot_fill = sum(x.cost for x in fillers)
    out = []
    cum_free = 0
    cum_fill = 0
    k = 0
    for i, sl in enumerate(slots):
        out.extend(sl)
        cum_free += free[i]
        target = tot_fill * cum_free / tot_free if tot_free else 0
        while k < len(fillers) and (cum_fill + fillers[k].cost / 2 <= target or (i == end - 1)):
            if free[i] == 0:
                break
            out.append(fillers[k])
            cum_fill += fillers[k].cost
            k += 1
    assert k == len(fillers), (k, len(fillers))
    return out
```

```python
import math
import struct
import sys
import os

sys.path.insert(0, os.path.dirname(os.path.abspath(__file__)))
from asmir import *

NAME = "concat_heads__gqa_block_cached__gqa_block_cached__near_ridge"
K1 = NAME + "_kernel"
K2 = "reduce_out_kernel"


def f32bits(x):
    return struct.unpack("<I", struct.pack("<f", x))[0]


def env(k, d):
    return type(d)(os.environ.get(k, d))


CSCALE = math.log2(math.e) / 16.0
TLOG2 = 8.0
TRAW = TLOG2 / CSCALE
KVF = env("KVF", "nt")
WQF = env("WQF", "")
XF = env("XF", "")
WOF = env("WOF", "")
STF = env("STF", "")
K2F = env("K2F", "")
STAMP = env("STAMP", 0)
WARM = env("WARM", 1)
MAP = env("MAP", 1)
KVAT = [int(x) for x in env("KVAT", "2,6,10,23,25").split(",")]
NG1 = env("NG1", 3)

SRD_X, SRD_K, SRD_V, SRD_WQ, SRD_WO, SRD_WS = (S(16, 4), S(20, 4), S(24, 4), S(28, 4), S(32, 4), S(36, 4))
sW, sG, sB, sBLK, sC = S(40), S(41), S(42), S(43), S(44)
sM0V, sOFFWQ, sM0K, sM0X, sOFFKV = S(45), S(46), S(47), S(48), S(49)
sT0, sT1 = S(50), S(51)
sMASK0, sMASK1 = S(52, 2), S(54, 2)
sFLAG = S(56)
sOFFX = S(57)
sRET = S(58, 2)
sM0WO = S(60)
sOFFWS = S(61)
sTRAW = S(62)
sOFFWO = S(63)
sT2 = S(100)


def Qf(qb, s):
    return V((qb * 16 + s) * 4, 4)


def Xf(s):
    return V(s * 4, 4)


def Of(ks):
    return V(ks * 4, 4)


def Sb(p, qb):
    return V(128 + p * 32 + qb * 16, 16)


def Kf(i):
    return V(192 + (i % 4) * 4, 4)


def Vf(i):
    return V(208 + (i % 4) * 4, 4)


def Wf(i):
    return V(192 + (i % 8) * 4, 4)


def Wacc(buf, tt):
    return V(128 + buf * 32 + tt * 16, 16)


vAK, vAV, vOFFKV, vL16 = V(224), V(225), V(226), V(227)
vM = [V(228), V(229)]
vTHR = [V(230), V(231)]
vL = [V(232), V(233)]
vAL = [V(234), V(235)]
vT = [V(236), V(237)]
vU = [V(238), V(239)]
vTMP = V(240, 8)
vMR = [V(248), V(249)]
vAWQ = V(250)
vOFFWO = V(251)
vAWO = [[V(252), V(253)], [V(254), V(255)]]
vXO = [V(128), V(129)]
vAX = V(130, 4)
vDUMMY, vPFWQ, vL128 = V(144), V(145), V(146)
vX = V(160, 16)

KSTR, VSTR = 1040, 1088
KSLOT, VSLOT = 16 * KSTR, 16 * VSTR
KS = [i * KSLOT for i in range(4)]
VBASE = 4 * KSLOT
VS = [i * VSLOT for i in range(4)]
P1BASE = VBASE + VSLOT
NP1 = 4
XBASE = 2 * KSLOT
assert XBASE + 32768 <= 4 * KSLOT
WOSLOT = 32768
LDS_BYTES = 163840
PART = 4 * 14 * 2048
assert P1BASE + NP1 * VSLOT <= LDS_BYTES


def Oacc(dt, qb):
    return A((dt * 2 + qb) * 16, 16)


def Qacc(nt):
    return A(nt * 16, 16)


def barrier():
    return raw("s_barrier", "other", cost=4)


_nst = 0


def stamp(real=False):
    global _nst
    if not STAMP:
        return []
    i = _nst
    _nst += 1
    assert i < 16
    op = "s_memrealtime" if (real or STAMP == 2) else "s_memtime"
    return [raw(f"{op} s[{64 + 2 * i}:{65 + 2 * i}]", "salu", cost=2)]


def stamp_store():
    if not STAMP:
        return []
    out = [raw("s_waitcnt lgkmcnt(0)", "wait"),
           salu(f"s_cmp_lg_u32 {sW}, 0"), salu("s_cbranch_scc1 L_end"),
           salu("s_lshl_b32 s3, s2, 7"), salu(f"s_add_u32 s3, s3, {64 << 20}"),
           salu("s_add_u32 s4, s14, s3"), salu("s_addc_u32 s5, s15, 0"),
           salu("s_mov_b32 s6, 128"), salu("s_mov_b32 s7, 0x00020000"),
           valu("v_mov_b32", V(2), 0)]
    for i in range(_nst):
        out.append(valu("v_mov_b32", V(4 + 2 * i), S(64 + 2 * i)))
        out.append(valu("v_mov_b32", V(5 + 2 * i), S(65 + 2 * i)))
        out.append(bstore(V(4 + 2 * i, 2), V(2), S(4, 4), 0, off=i * 8, n=2))
    return out


def dma_wq(s):
    out = []
    for i in range(4):
        out.append(setm0(f"s_add_u32 m0, {sM0V}, {P1BASE + (s % NP1) * VSLOT + i * VSTR}"))
        out.append(salu(f"s_add_u32 {sT0}, {sOFFWQ}, {(16 * s + i) * 8192}", defs=[sT0]))
        out.append(dma(vL16, SRD_WQ, sT0, tag=("wq", s), flags=WQF))
    return out


def dma_x(pc):
    out = []
    for i in range(4):
        out.append(setm0(f"s_add_u32 m0, {sM0X}, {(pc % 2) * 16384 + i * 1024}"))
        out.append(salu(f"s_add_u32 {sT1}, {sOFFX}, {pc * 128 + i * 8 * 896}", defs=[sT1]))
        out.append(dma(vXO[i % 2], SRD_X, sT1, tag=("x", pc), flags=XF))
    return out


def dma_k(j):
    out = [salu(f"s_add_u32 {sT1}, {sOFFKV}, {j * 16384}", defs=[sT1])]
    for i in range(4):
        out.append(setm0(f"s_add_u32 m0, {sM0K}, {KS[j % 4] + i * (KSTR - 512)}"))
        out.append(dma(vOFFKV, SRD_K, sT1, off=i * 512, tag=("k", j), flags=KVF))
    return out


def dma_v(j):
    out = [salu(f"s_add_u32 {sT1}, {sOFFKV}, {j * 16384}", defs=[sT1])]
    for i in range(4):
        out.append(setm0(f"s_add_u32 m0, {sM0V}, {VBASE + VS[j % 4] + i * (VSTR - 512)}"))
        out.append(dma(vOFFKV, SRD_V, sT1, off=i * 512, tag=("v", j), flags=KVF))
    return out


def dma_wo(sg):
    ps, hs = divmod(sg, 2)
    out = []
    for i in range(8):
        out.append(setm0(f"s_add_u32 m0, {sM0WO}, {(sg % 4) * WOSLOT + i * 1024}"))
        out.append(salu(f"s_add_u32 {sT1}, {sOFFWO}, {(256 * hs + 8 * i) * 896 + 128 * ps}", defs=[sT1]))
        out.append(dma(vOFFWO, SRD_WO, sT1, tag=("wo", sg), flags=WOF))
    return out


def pfload(*a, **kw):
    i = bload(*a, **kw)
    i.defs = set()
    return i


def rd_wq(f):
    s, nt = divmod(f, 16)
    d = Wf(f)
    off = (s % NP1) * VSLOT + nt * 64
    return [ds_read_tr(d[0:2], vAWQ, off), ds_read_tr(d[2:4], vAWQ, off + 4 * VSTR)]


def rd_x(s):
    pc, sp = divmod(s, 4)
    return [ds_read_b128(Xf(s), vAX[sp], (pc % 2) * 16384)]


def rd_k(j, s):
    return [ds_read_b128(Kf(s), vAK, KS[j % 4] + s * 32)]


def rd_v(j, f):
    dt, ks = divmod(f, 2)
    d = Vf(f)
    off = VS[j % 4] + ks * 512 + dt * 64
    return [ds_read_tr(d[0:2], vAV, off), ds_read_tr(d[2:4], vAV, off + 4 * VSTR)]


def rd_wo(f):
    sg, r = divmod(f, 32)
    ks, tt = divmod(r, 2)
    slot = sg % 4
    base = vAWO[slot // 2][tt]
    off = (slot % 2) * WOSLOT + ks * 2048
    d = Wf(f)
    return [ds_read_tr(d[0:2], base, off), ds_read_tr(d[2:4], base, off + 512)]


def sm_max(p):
    out = []
    for qb in range(2):
        s_ = Sb(p, qb)
        t = vT[qb]
        out.append(valu("v_max3_f32", t, s_[0], s_[1], s_[2]))
        for r in range(3, 15, 2):
            out.append(valu("v_max3_f32", t, t, s_[r], s_[r + 1]))
        out.append(valu("v_max_f32", t, t, s_[15]))
    for qb in range(2):
        out.append(valu("v_mov_b32", vU[qb], vT[qb]))
    for qb in range(2):
        out.append(Ins(f"v_permlane32_swap_b32 {vT[qb]}, {vU[qb]}", "perm", defs=[vT[qb], vU[qb]],
                       uses=[vT[qb], vU[qb]]))
    for qb in range(2):
        out.append(valu("v_max_f32", vT[qb], vT[qb], vU[qb]))
    return out


_lbl = 0


def sm_check(first):
    global _lbl
    out = []
    if first:
        for qb in range(2):
            out.append(valu("v_mov_b32", vMR[qb], vT[qb]))
            out.append(valu("v_mul_f32", vM[qb], sC, vT[qb]))
            out.append(valu("v_add_f32", vTHR[qb], sTRAW, vT[qb]))
            out.append(valu("v_mov_b32", vL[qb], 0))
        return out
    out.append(valu("v_cmp_gt_f32", sMASK0, vT[0], vTHR[0]))
    out.append(valu("v_cmp_gt_f32", sMASK1, vT[1], vTHR[1]))
    _lbl += 1
    out.append(Group([
        salu(f"s_or_b64 {sMASK0}, {sMASK0}, {sMASK1}", defs=[sMASK0], uses=[sMASK0, sMASK1]),
        salu(f"s_cbranch_scc0 L_noslow{_lbl}"),
        Ins(f"s_call_b64 {sRET}, L_slow", "salu", cost=2,
            defs=vM + vTHR + vL + vAL + vMR + vU, uses=vM + vTHR + vL + vT + vMR),
        label(f"L_noslow{_lbl}")]))
    return out


def sm_exp(p, qb, grp):
    s_ = Sb(p, qb)
    out = []
    rs = range(4 * grp, 4 * grp + 4)
    for r in rs:
        out.append(valu("v_fma_f32", s_[r], s_[r], sC, ("-", vM[qb])))
    for r in rs:
        out.append(valu("v_exp_f32", s_[r], s_[r]))
    for r in rs:
        out.append(valu("v_add_f32", vL[qb], vL[qb], s_[r]))
    ks, g2 = divmod(grp, 2)
    for jj in range(2):
        j = 2 * g2 + jj
        out.append(valu("v_cvt_pk_bf16_f32", s_[8 * ks + j], s_[8 * ks + 2 * j], s_[8 * ks + 2 * j + 1]))
    return out


def Pf(p, qb, ks):
    return Sb(p, qb)[8 * ks: 8 * ks + 4]


def resc_check():
    global _lbl
    _lbl += 1
    return [
        salu(f"s_cmp_eq_u32 {sFLAG}, 0", uses=[sFLAG]),
        salu(f"s_cbranch_scc1 L_nores{_lbl}"),
        Ins(f"s_call_b64 {sRET}, L_resc", "salu", cost=2),
        label(f"L_nores{_lbl}"),
    ]


def softmax1(j):
    p = j % 2
    out = sm_max(p) + sm_check(j == 0)
    for gi in range(NG1):
        out += sm_exp(p, gi // 4, gi % 4)
    return out


def softmax2(j):
    p = j % 2
    out = []
    for gi in range(NG1, 8):
        out += sm_exp(p, gi // 4, gi % 4)
    return out


def conv_o(ksg):
    qb, s = divmod(ksg, 16)
    dt, hf = divmod(s, 2)
    acc = Oacc(dt, qb)
    out = []
    for ee in range(8):
        out.append(valu("v_accvgpr_read_b32", vTMP[ee], acc[hf * 8 + ee]))
    for ee in range(8):
        out.append(valu("v_mul_f32", vTMP[ee], vTMP[ee], vL[qb]))
    for jj in range(4):
        out.append(valu("v_cvt_pk_bf16_f32", Of(ksg)[jj], vTMP[2 * jj], vTMP[2 * jj + 1]))
    return out


def store_pass(ps):
    out = []
    for tt in range(2):
        acc = Wacc(ps % 2, tt)
        for sp in range(2):
            g = []
            for jj in range(4):
                g.append(valu("v_cvt_pk_bf16_f32", acc[8 * sp + jj], acc[8 * sp + 2 * jj], acc[8 * sp + 2 * jj + 1]))
            g.append(salu(f"s_add_u32 {sT0}, {sOFFWS}, {ps * 4096}", defs=[sT0]))
            g.append(bstore(acc[8 * sp: 8 * sp + 4], vL16, SRD_WS, sT0, off=(2 * tt + sp) * 1024, flags=STF))
            out.append(g)
    return out


def gen_k1():
    st = []
    e = st.append
    ext = st.extend
    ext(stamp(True))
    ext(stamp())
    e(salu("s_cmp_ge_u32 s2, 256"))
    e(salu("s_cbranch_scc1 L_end"))
    if MAP == 0:
        e(salu(f"s_and_b32 {sG}, s2, 7"))
        e(salu(f"s_lshr_b32 s3, s2, 6"))
        e(salu(f"s_xor_b32 {sG}, {sG}, s3"))
        e(salu(f"s_lshr_b32 {sB}, s2, 3"))
        e(salu(f"s_and_b32 {sB}, {sB}, 15"))
        e(salu(f"s_lshr_b32 {sBLK}, s2, 7"))
    else:
        e(salu(f"s_bfe_u32 {sBLK}, s2, 0x10002"))
        e(salu(f"s_and_b32 {sG}, s2, 3"))
        e(salu(f"s_lshl_b32 {sG}, {sG}, 1"))
        e(salu(f"s_bfe_u32 s3, s2, 0x10003"))
        e(salu(f"s_or_b32 {sG}, {sG}, s3"))
        e(salu(f"s_lshr_b32 {sB}, s2, 4"))
    e(salu(f"s_load_dwordx2 s[14:15], s[0:1], 96"))
    e(salu(f"s_mul_i32 s3, {sBLK}, 40"))
    e(salu("s_add_u32 s0, s0, s3"))
    e(salu("s_addc_u32 s1, s1, 0"))
    e(salu("s_load_dwordx8 s[4:11], s[0:1], 0"))
    e(salu("s_load_dwordx2 s[12:13], s[0:1], 32"))
    lane, tA, tB, tC, tD, tE = (vTMP[i] for i in range(6))
    e(valu("v_and_b32", lane, 63, V(0)))
    e(valu("v_lshrrev_b32", tA, 6, V(0)))
    e(Ins(f"v_readfirstlane_b32 {sW}, {tA}", "valu", defs=[sW], uses=[tA]))
    e(valu("v_lshlrev_b32", vL16, 4, lane))
    e(valu("v_lshrrev_b32", tA, 3, lane))
    e(valu("v_mul_u32_u24", tA, 896, tA))
    e(valu("v_and_b32", tB, 7, lane))
    e(valu("v_lshrrev_b32", tC, 4, lane))
    e(valu("v_xor_b32", tB, tB, tC))
    e(valu("v_lshl_add_u32", vXO[0], tB, 4, tA))
    e(valu("v_xor_b32", vXO[1], 64, vXO[0]))
    e(salu(f"s_mul_i32 {sM0V}, {sW}, {4 * VSTR}", uses=[sW]))
    e(salu(f"s_lshl_b32 {sOFFWQ}, {sW}, 15"))
    e(salu(f"s_lshl_b32 {sM0X}, {sW}, 12"))
    e(salu(f"s_add_u32 {sM0X}, {sM0X}, {XBASE}"))
    e(salu(f"s_mul_i32 {sOFFX}, {sW}, {32 * 896}"))
    e(raw("s_waitcnt lgkmcnt(0)", "wait"))

    def srd(d, ptr_lo, off_expr_reg, size):
        e(salu(f"s_add_u32 s{d.b}, s{ptr_lo}, {off_expr_reg}"))
        e(salu(f"s_addc_u32 s{d.b + 1}, s{ptr_lo + 1}, 0"))
        e(salu(f"s_mov_b32 s{d.b + 2}, {size}"))
        e(salu(f"s_mov_b32 s{d.b + 3}, 0x00020000"))

    e(salu(f"s_lshl_b32 s3, {sG}, 10"))
    srd(SRD_WQ, 10, "s3", 447 * 8192 + 1024)
    e(salu(f"s_mul_i32 s3, {sB}, 114688"))
    srd(SRD_X, 4, "s3", 114688)
    ext(dma_wq(0))
    ext(dma_x(0))
    ext(dma_wq(1))
    ext(dma_x(1))
    ext(dma_wq(2))
    e(salu(f"s_lshl_b32 s3, {sB}, 3"))
    e(salu(f"s_add_u32 s3, s3, {sG}"))
    e(salu(f"s_lshl_b32 s3, s3, 18"))
    srd(SRD_K, 6, "s3", 262144)
    srd(SRD_V, 8, "s3", 262144)
    e(salu(f"s_mul_i32 s3, {sG}, 458752"))
    srd(SRD_WO, 12, "s3", 458752)
    e(salu(f"s_lshl_b32 s3, {sBLK}, 4"))
    e(salu(f"s_add_u32 s3, s3, {sB}"))
    e(salu(f"s_lshl_b32 s3, s3, 3"))
    e(salu(f"s_add_u32 s3, s3, {sG}"))
    e(salu(f"s_mul_i32 s3, s3, {PART}"))
    srd(SRD_WS, 14, "s3", PART)
    e(salu(f"s_mov_b32 {sC}, {f32bits(CSCALE):#x}"))
    e(salu(f"s_mov_b32 {sTRAW}, {f32bits(TRAW):#x}"))
    e(salu(f"s_mov_b32 {sFLAG}, 0"))
    e(salu(f"s_mul_i32 {sM0K}, {sW}, {4 * KSTR}"))
    e(salu(f"s_lshl_b32 {sOFFKV}, {sW}, 11"))
    e(salu(f"s_lshl_b32 {sM0WO}, {sW}, 13"))
    e(salu(f"s_mul_i32 {sOFFWO}, {sW}, {64 * 896}"))
    e(salu(f"s_mul_i32 {sOFFWS}, {sW}, {14 * 2048}"))
    e(valu("v_lshrrev_b32", tA, 5, lane))
    e(valu("v_and_b32", tB, 31, lane))
    e(valu("v_lshlrev_b32", tC, 13, tA))
    e(valu("v_lshl_add_u32", vOFFKV, tB, 4, tC))
    e(valu("v_bfe_u32", tC, tB, 1, 3))
    e(valu("v_xor_b32", tC, tC, tA))
    e(valu("v_lshlrev_b32", tC, 4, tC))
    e(valu("v_lshl_add_u32", tC, tB, 7, tC))
    e(valu("v_add_u32", vAX[0], sM0X, tC))
    for sp in range(1, 4):
        e(valu("v_xor_b32", vAX[sp], sp << 5, vAX[0]))
    e(valu("v_and_b32", tC, 3, tB))
    e(valu("v_and_b32", tD, 4, tB))
    e(valu("v_lshl_add_u32", tC, tD, 1, tC))
    e(valu("v_and_b32", tD, 8, tB))
    e(valu("v_lshrrev_b32", tD, 1, tD))
    e(valu("v_add_u32", tC, tC, tD))
    e(valu("v_mul_u32_u24", vAK, KSTR, tC))
    e(valu("v_lshrrev_b32", tD, 4, tB))
    e(valu("v_lshl_add_u32", vAK, tD, 9, vAK))
    e(valu("v_lshl_add_u32", vAK, tA, 4, vAK))
    e(valu("v_bfe_u32", tE, lane, 2, 2))
    e(valu("v_lshl_add_u32", tC, tA, 3, tE))
    e(valu("v_and_b32", tD, 1, lane))
    e(valu("v_lshlrev_b32", tD, 4, tD))
    e(valu("v_and_b32", tB, 2, lane))
    e(valu("v_lshl_add_u32", tD, tB, 2, tD))
    e(valu("v_bfe_u32", tB, lane, 4, 1))
    e(valu("v_lshl_add_u32", tD, tB, 5, tD))
    e(valu("v_mul_u32_u24", vAV, VSTR, tC))
    e(valu("v_add_u32", vAV, vAV, tD))
    e(valu("v_add_u32", vAWQ, P1BASE, vAV))
    e(valu("v_add_u32", vAV, VBASE, vAV))
    e(valu("v_lshl_add_u32", tC, tC, 7, tD))
    e(valu("v_lshrrev_b32", tE, 1, tE))
    e(valu("v_lshlrev_b32", tE, 6, tE))
    e(valu("v_add_u32", vAWO[0][0], tC, tE))
    e(valu("v_xor_b32", tE, 64, tE))
    e(valu("v_add_u32", vAWO[0][1], tC, tE))
    e(valu("v_add_u32", vAWO[1][0], 2 * WOSLOT, vAWO[0][0]))
    e(valu("v_add_u32", vAWO[1][1], 2 * WOSLOT, vAWO[0][1]))
    e(valu("v_lshrrev_b32", tC, 3, lane))
    e(valu("v_mul_u32_u24", tC, 896, tC))
    e(valu("v_and_b32", tD, 7, lane))
    e(valu("v_lshlrev_b32", tB, 2, tB))
    e(valu("v_xor_b32", tD, tD, tB))
    e(valu("v_lshl_add_u32", vOFFWO, tD, 4, tC))
    if WARM:
        e(valu("v_lshrrev_b32", tA, 3, lane))
        e(valu("v_and_b32", tB, 7, lane))
        e(valu("v_lshlrev_b32", tA, 13, tA))
        e(valu("v_lshl_add_u32", vPFWQ, tB, 7, tA))
        if MAP == 0:
            e(salu(f"s_and_b32 s3, {sB}, 7"))
            e(salu(f"s_mul_i32 s3, s3, {56 * 8192}"))
            e(salu(f"s_lshl_b32 {sT2}, {sW}, 16"))
            e(salu(f"s_add_u32 {sT2}, {sT2}, s3"))
            e(pfload(vDUMMY, vPFWQ, SRD_WQ, sT2, tag=("pfw", 0), n=1))
            e(salu(f"s_add_u32 {sT2}, {sT2}, {4 << 16}"))
            e(pfload(vDUMMY, vPFWQ, SRD_WQ, sT2, tag=("pfw", 1), n=1))
        else:
            e(salu(f"s_mul_i32 s3, {sB}, {28 * 8192}"))
            e(salu(f"s_lshl_b32 {sT2}, {sW}, 16"))
            e(salu(f"s_add_u32 {sT2}, {sT2}, s3"))
            e(pfload(vDUMMY, vPFWQ, SRD_WQ, sT2, tag=("pfw", 0), n=1))
    e(WaitVM(("x", 0)))
    for s in range(4):
        ext(rd_x(s))
    e(barrier())

    LA = 6
    for f in range(LA):
        ext(rd_wq(f))
    kv_at = dict(zip(KVAT, [dma_v(0), dma_k(0), dma_k(1), dma_k(2), dma_k(3)]))
    for s in range(28):
        if STAMP and s in (0, 14):
            ext(stamp())
        slots = []
        for nt in range(16):
            f = 16 * s + nt
            sl = [mfma(Qacc(nt), Wf(f), Xf(s), Qacc(nt) if s > 0 else 0)]
            if f + LA < 448:
                sl += rd_wq(f + LA)
            if nt == 3 and s + 1 < 28:
                if s == 23:
                    sl += [WaitAll(vm=False, lgkm=True)]
                sl += [WaitVM(("wq", s + 1)), barrier()]
            slots.append(sl)
        fill = []
        if s + NP1 - 1 < 28:
            fill += dma_wq(s + NP1 - 1)
        if s in kv_at:
            fill += kv_at[s]
        if s % 4 == 1 and (s + 3) // 4 < 7:
            pc = (s + 3) // 4
            fill += [WaitVM(("x", pc))]
            for s2 in range(4):
                fill += rd_x(4 * pc + s2)
        if s % 4 == 0 and s // 4 + 2 < 7:
            fill += [WaitAll(vm=False, lgkm=True)] if s == 0 else []
            fill += dma_x(s // 4 + 2)
        ext(interleave(slots, fill, start=4, end=14))

    ext(stamp())
    e(WaitVM(("k", 0)))
    e(barrier())
    ext(dma_v(1))
    for s3 in range(3):
        ext(rd_k(0, s3))
    for qb in range(2):
        for s in range(16):
            acc = Qacc(qb * 8 + s // 2)
            for ee in range(8):
                e(valu("v_accvgpr_read_b32", vX[(s % 2) * 8 + ee], acc[(s % 2) * 8 + ee]))
            for jj in range(4):
                e(valu("v_cvt_pk_bf16_f32", Qf(qb, s)[jj], vX[(s % 2) * 8 + 2 * jj], vX[(s % 2) * 8 + 2 * jj + 1]))

    ext(stamp())
    for j in range(17):
        p = j % 2
        if j in (4, 12):
            ext(stamp())
        fillA = softmax2(j - 1) if j >= 1 else []
        if j < 16:
            slots = []
            for s in range(16):
                for qb in range(2):
                    sl = [mfma(Sb(p, qb), Kf(s), Qf(qb, s), Sb(p, qb) if s > 0 else 0)]
                    if qb == 0:
                        if s + 3 < 16:
                            sl += rd_k(j, s + 3)
                        elif j >= 1:
                            sl += rd_v(j - 1, s + 3 - 16)
                    slots.append(sl)
            ext(interleave(slots, fillA, start=0, end=30))
        else:
            for f in range(3):
                ext(rd_v(j - 1, f))
            ext(fillA)
        if j >= 2:
            ext(resc_check())
        waits = []
        if j + 1 < 16:
            waits.append(("k", j + 1))
        if j < 16:
            waits.append(("v", j))
        grp = []
        if j + 4 < 16:
            grp += dma_k(j + 4)
        if j + 2 < 16:
            grp += dma_v(j + 2)
        if j == 13:
            grp += dma_wo(0)
        if j == 15:
            grp += dma_wo(1) + dma_wo(2)
        sync = [WaitVM(waits), barrier()] if j < 16 else []
        fillB = softmax1(j) if j < 16 else []
        if j == 16:
            for qb in range(2):
                fillB.append(valu("v_mov_b32", vU[qb], vL[qb]))
            for qb in range(2):
                fillB.append(Ins(f"v_permlane32_swap_b32 {vL[qb]}, {vU[qb]}", "perm",
                                 defs=[vL[qb], vU[qb]], uses=[vL[qb], vU[qb]]))
            for qb in range(2):
                fillB.append(valu("v_add_f32", vL[qb], vL[qb], vU[qb]))
            for qb in range(2):
                fillB.append(valu("v_rcp_f32", vL[qb], vL[qb]))
        if j >= 1:
            slots = []
            for f in range(16):
                dt, ks = divmod(f, 2)
                for qb in range(2):
                    sl = [mfma(Oacc(dt, qb), Vf(f), Pf(1 - p, qb, ks),
                               Oacc(dt, qb) if (j > 1 or ks > 0) else 0)]
                    if qb == 0:
                        if f + 3 < 16:
                            sl += rd_v(j - 1, f + 3)
                        elif j + 1 < 16:
                            sl += rd_k(j + 1, f + 3 - 16)
                    if f == 0 and qb == 1:
                        sl += sync
                    slots.append(sl)
            ext(interleave(slots, grp + fillB, start=2, end=32))
        else:
            ext(sync)
            ext(grp)
            for s3 in range(3):
                ext(rd_k(1, s3))
            ext(fillB)

    ext(stamp())
    e(WaitVM(("wo", 0)))
    e(barrier())
    ext(dma_wo(3))
    for f in range(LA):
        ext(rd_wo(f))
    CLA = 2
    for ksg in range(CLA):
        ext(conv_o(ksg))

    ext(stamp())
    for sg in range(14):
        ps, hs = divmod(sg, 2)
        if sg in (2, 8):
            ext(stamp())
        slots = []
        for r in range(32):
            f = 32 * sg + r
            ks, tt = divmod(r, 2)
            ksg = 16 * hs + ks
            acc = Wacc(ps % 2, tt)
            sl = [mfma(acc, Wf(f), Of(ksg), acc if ksg > 0 else 0)]
            if f + LA < 448:
                sl += rd_wo(f + LA)
            if ps == 0 and ksg + CLA < 32:
                cv = conv_o(ksg + CLA)
                sl += cv[:10] if tt == 0 else cv[10:]
            if r == 3 and sg + 1 < 14:
                sl += [WaitVM(("wo", sg + 1)), barrier()]
            slots.append(sl)
        fill = []
        if sg >= 1 and sg + 3 < 14:
            fill += dma_wo(sg + 3)
        if ps >= 1:
            sp_ = store_pass(ps - 1)
            for k in range(2):
                if not env("NOST", 0):
                    slots[10 + 12 * k] += sp_[2 * hs + k]
        ext(interleave(slots, fill, start=4, end=26))

    ext(stamp())
    for g_ in store_pass(6):
        ext(g_)
    if STAMP:
        e(WaitAll())
    ext(stamp())
    ext(stamp(True))
    ext(stamp_store())
    e(label("L_end"))
    e(raw("s_endpgm"))

    lines = finalize(st)

    sub = []
    s_ = sub.append
    s_(label("L_slow"))
    s_(nop(2))
    for qb in range(2):
        s_(valu("v_max_f32", vMR[qb], vMR[qb], vT[qb]))
        s_(valu("v_mul_f32", vU[qb], sC, vMR[qb]))
        s_(valu("v_sub_f32", vAL[qb], vM[qb], vU[qb]))
        s_(valu("v_exp_f32", vAL[qb], vAL[qb]))
        s_(valu("v_mov_b32", vM[qb], vU[qb]))
        s_(valu("v_add_f32", vTHR[qb], sTRAW, vMR[qb]))
        s_(valu("v_mul_f32", vL[qb], vL[qb], vAL[qb]))
    s_(salu(f"s_mov_b32 {sFLAG}, 1"))
    s_(nop(2))
    s_(raw(f"s_setpc_b64 {sRET}"))
    s_(label("L_resc"))
    s_(nop(16))
    tt = [vU[0], vU[1], vT[0], vT[1]]
    for dt in range(8):
        for qb in range(2):
            acc = Oacc(dt, qb)
            for r0 in range(0, 16, 4):
                for k in range(4):
                    s_(valu("v_accvgpr_read_b32", tt[k], acc[r0 + k]))
                for k in range(4):
                    s_(valu("v_mul_f32", tt[k], tt[k], vAL[qb]))
                for k in range(4):
                    s_(valu("v_accvgpr_write_b32", acc[r0 + k], tt[k]))
    s_(salu(f"s_mov_b32 {sFLAG}, 0"))
    s_(nop(4))
    s_(raw(f"s_setpc_b64 {sRET}"))
    lines += finalize(sub)
    return lines


def gen_k2():
    st = []
    e = st.append
    e(salu("s_cmp_ge_u32 s2, 896"))
    e(salu("s_cbranch_scc1 L2_end"))
    e(salu("s_load_dwordx2 s[4:5], s[0:1], 80"))
    e(salu("s_load_dwordx2 s[6:7], s[0:1], 96"))
    e(salu("s_and_b32 s8, s2, 1"))
    e(salu("s_lshr_b32 s9, s2, 1"))
    e(salu("s_mul_i32 s10, s9, 4682"))
    e(salu("s_lshr_b32 s10, s10, 16"))
    e(salu("s_mul_i32 s11, s10, 14"))
    e(salu("s_sub_u32 s11, s9, s11"))
    lane, w, t1, t2 = V(1), V(2), V(3), V(4)
    e(valu("v_and_b32", lane, 63, V(0)))
    e(valu("v_lshrrev_b32", w, 6, V(0)))
    e(valu("v_mul_u32_u24", t1, 14 * 2048, w))
    e(valu("v_lshl_add_u32", t1, lane, 4, t1))
    e(salu("s_lshl_b32 s12, s11, 11"))
    e(salu("s_lshl_b32 s13, s8, 10"))
    e(salu("s_add_u32 s12, s12, s13"))
    e(valu("v_add_u32", t1, S(12), t1))
    e(salu("s_and_b32 s13, s10, 15"))
    e(salu("s_lshr_b32 s14, s10, 4"))
    e(salu("s_mul_i32 s13, s13, 229376"))
    e(salu("s_mul_i32 s14, s14, 896"))
    e(salu("s_add_u32 s13, s13, s14"))
    e(salu("s_lshl_b32 s14, s11, 6"))
    e(salu("s_add_u32 s13, s13, s14"))
    e(salu("s_lshl_b32 s14, s8, 5"))
    e(salu("s_add_u32 s13, s13, s14"))
    e(valu("v_and_b32", t2, 31, lane))
    e(valu("v_lshl_add_u32", t2, w, 5, t2))
    e(valu("v_mul_u32_u24", t2, 1792, t2))
    e(valu("v_lshrrev_b32", lane, 5, lane))
    e(valu("v_lshl_add_u32", t2, lane, 4, t2))
    e(valu("v_add_u32", t2, S(13), t2))
    e(raw("s_waitcnt lgkmcnt(0)", "wait"))
    e(salu("s_mov_b32 s16, s4"))
    e(salu("s_mov_b32 s17, s5"))
    e(salu(f"s_mov_b32 s18, {16 * 128 * 896 * 2}"))
    e(salu("s_mov_b32 s19, 0x00020000"))
    e(salu(f"s_mul_i32 s14, s10, {8 * PART}"))
    e(salu("s_add_u32 s20, s6, s14"))
    e(salu("s_addc_u32 s21, s7, 0"))
    e(salu(f"s_mov_b32 s22, {8 * PART}"))
    e(salu("s_mov_b32 s23, 0x00020000"))
    e(salu("s_mov_b32 s32, 0xffff0000"))
    so, sw = S(16, 4), S(20, 4)
    for g in range(8):
        e(salu(f"s_mov_b32 s{24 + g}, {g * PART}"))
    for g in range(8):
        e(bload(V(8 + g * 4, 4), t1, sw, S(24 + g), flags=K2F))
    acc = V(40, 8)
    tmp = V(48, 8)
    for g in range(8):
        for jj in range(4):
            src = V(8 + g * 4 + jj)
            dlo, dhi = (acc[2 * jj], acc[2 * jj + 1]) if g == 0 else (tmp[2 * jj], tmp[2 * jj + 1])
            e(valu("v_lshlrev_b32", dlo, 16, src))
            e(valu("v_and_b32", dhi, S(32), src))
        if g:
            for k in range(8):
                e(valu("v_add_f32", acc[k], acc[k], tmp[k]))
    for jj in range(4):
        e(valu("v_cvt_pk_bf16_f32", V(56 + jj), acc[2 * jj], acc[2 * jj + 1]))
    e(bstore(V(56, 4), t2, so, 0))
    e(label("L2_end"))
    e(raw("s_endpgm"))
    return finalize(st)


HEADER = open(os.path.join(os.path.dirname(os.path.abspath(__file__)), "header.txt")).read()


def kd(name, vgpr, accum, sgpr):
    return f""".amdhsa_kernel {name}
  .amdhsa_next_free_vgpr {vgpr}
  .amdhsa_next_free_sgpr {sgpr}
  .amdhsa_accum_offset {accum}
  .amdhsa_group_segment_fixed_size 0
  .amdhsa_kernarg_size 104
  .amdhsa_user_sgpr_count 2
  .amdhsa_user_sgpr_kernarg_segment_ptr 1
  .amdhsa_system_sgpr_workgroup_id_x 1
.end_amdhsa_kernel
"""


def main():
    out = HEADER
    out += f"; @launch kernel={K1} grid=(256,1,1) block=(256,1,1) lds={LDS_BYTES}\n"
    out += f"; @launch kernel={K2} grid=(896,1,1) block=(256,1,1) lds=0\n"
    out += '.amdgcn_target "amdgcn-amd-amdhsa--gfx950"\n.text\n'
    for name, gen in ((K1, gen_k1), (K2, gen_k2)):
        out += f".globl {name}\n.p2align 8\n.type {name},@function\n{name}:\n"
        out += "\n".join(gen()) + "\n"
    out += '.section .rodata,"a"\n.p2align 6\n'
    out += kd(K1, 512, 256, 102)
    out += ".p2align 6\n"
    out += kd(K2, 64, 64, 40)
    dst = sys.argv[1] if len(sys.argv) > 1 else f"cdna_kernels/{NAME}.s"
    open(dst, "w").write(out)
    print("wrote", dst, len(out), "bytes", out.count("\n"), "lines")


if __name__ == "__main__":
    main()
```

```python
import math
import struct
import sys
import os

sys.path.insert(0, os.path.dirname(os.path.abspath(__file__)))
from asmir import *

NAME = "concat_heads__gqa_block_cached__gqa_block_cached__near_ridge"
K1 = NAME + "_kernel"
K2 = "reduce_out_kernel"


def f32bits(x):
    return struct.unpack("<I", struct.pack("<f", x))[0]


def env(k, d):
    return type(d)(os.environ.get(k, d))


CSCALE = math.log2(math.e) / 16.0
TLOG2 = 8.0
TRAW = TLOG2 / CSCALE
KVF = env("KVF", "nt")
WQF = env("WQF", "")
XF = env("XF", "")
WOF = env("WOF", "")
STF = env("STF", "")
K2F = env("K2F", "")
STAMP = env("STAMP", 0)
WARM = env("WARM", 1)
MAP = env("MAP", 1)
KVAT = [int(x) for x in env("KVAT", "2,6,10,23,25").split(",")]
NG1 = env("NG1", 3)

SRD_X, SRD_K, SRD_V, SRD_WQ, SRD_WO, SRD_WS = (S(16, 4), S(20, 4), S(24, 4), S(28, 4), S(32, 4), S(36, 4))
sW, sG, sB, sBLK, sC = S(40), S(41), S(42), S(43), S(44)
sM0V, sOFFWQ, sM0K, sM0X, sOFFKV = S(45), S(46), S(47), S(48), S(49)
sT0, sT1 = S(50), S(51)
sMASK0, sMASK1 = S(52, 2), S(54, 2)
sFLAG = S(56)
sOFFX = S(57)
sRET = S(58, 2)
sM0WO = S(60)
sOFFWS = S(61)
sTRAW = S(62)
sOFFWO = S(63)
sT2 = S(100)


def Qf(qb, s):
    return V((qb * 16 + s) * 4, 4)


def Xf(s):
    return V(s * 4, 4)


def Of(ks):
    return V(ks * 4, 4)


def Sb(p, qb):
    return V(128 + p * 32 + qb * 16, 16)


def Kf(i):
    return V(192 + (i % 4) * 4, 4)


def Vf(i):
    return V(208 + (i % 4) * 4, 4)


def Wf(i):
    return V(192 + (i % 8) * 4, 4)


def Wacc(buf, tt):
    return V(128 + buf * 32 + tt * 16, 16)


vAK, vAV, vOFFKV, vL16 = V(224), V(225), V(226), V(227)
vM = [V(228), V(229)]
vTHR = [V(230), V(231)]
vL = [V(232), V(233)]
vAL = [V(234), V(235)]
vT = [V(236), V(237)]
vU = [V(238), V(239)]
vTMP = V(240, 8)
vMR = [V(248), V(249)]
vAWQ = V(250)
vOFFWO = V(251)
vAWO = [[V(252), V(253)], [V(254), V(255)]]
vXO = [V(128), V(129)]
vAX = V(130, 4)
vDUMMY, vPFWQ, vL128 = V(144), V(145), V(146)
vX = V(160, 16)

KSTR, VSTR = 1040, 1088
KSLOT, VSLOT = 16 * KSTR, 16 * VSTR
KS = [i * KSLOT for i in range(4)]
VBASE = 4 * KSLOT
VS = [i * VSLOT for i in range(4)]
P1BASE = VBASE + VSLOT
NP1 = 4
XBASE = 2 * KSLOT
assert XBASE + 32768 <= 4 * KSLOT
WOSLOT = 32768
LDS_BYTES = 163840
PART = 4 * 14 * 2048
assert P1BASE + NP1 * VSLOT <= LDS_BYTES


def Oacc(dt, qb):
    return A((dt * 2 + qb) * 16, 16)


def Qacc(nt):
    return A(nt * 16, 16)


def barrier():
    return raw("s_barrier", "other", cost=4)


_nst = 0


def stamp(real=False):
    global _nst
    if not STAMP:
        return []
    i = _nst
    _nst += 1
    assert i < 16
    op = "s_memrealtime" if (real or STAMP >= 2) else "s_memtime"
    return [raw(f"{op} s[{64 + 2 * i}:{65 + 2 * i}]", "salu", cost=2)]


def stamp_store():
    if not STAMP:
        return []
    if STAMP == 3:
        out = [raw("s_waitcnt lgkmcnt(0)", "wait"),
               salu(f"s_cmp_lg_u32 {sW}, 0"), salu("s_cbranch_scc1 L_end"),
               salu(f"s_cmp_lg_u32 s2, 77"), salu("s_cbranch_scc1 L_end"),
               salu(f"s_mul_i32 s3, {sBLK}, 40"), salu("s_sub_u32 s0, s0, s3"), salu("s_subb_u32 s1, s1, 0"),
               salu("s_load_dwordx2 s[4:5], s[0:1], 88"), raw("s_waitcnt lgkmcnt(0)", "wait"),
               salu("s_mov_b32 s6, 256"), salu("s_mov_b32 s7, 0x00020000"),
               valu("v_mov_b32", V(2), 0)]
        for i in range(_nst):
            out.append(salu(f"s_sub_u32 s3, s{64 + 2 * i}, s64"))
            out.append(valu("v_mov_b32", V(4 + i), S(3)))
            out.append(bstore(V(4 + i), V(2), S(4, 4), 0, off=i * 4, n=1))
        return out
    out = [raw("s_waitcnt lgkmcnt(0)", "wait"),
           salu(f"s_cmp_lg_u32 {sW}, 0"), salu("s_cbranch_scc1 L_end"),
           salu("s_lshl_b32 s3, s2, 7"), salu(f"s_add_u32 s3, s3, {64 << 20}"),
           salu("s_add_u32 s4, s14, s3"), salu("s_addc_u32 s5, s15, 0"),
           salu("s_mov_b32 s6, 128"), salu("s_mov_b32 s7, 0x00020000"),
           valu("v_mov_b32", V(2), 0)]
    for i in range(_nst):
        out.append(valu("v_mov_b32", V(4 + 2 * i), S(64 + 2 * i)))
        out.append(valu("v_mov_b32", V(5 + 2 * i), S(65 + 2 * i)))
        out.append(bstore(V(4 + 2 * i, 2), V(2), S(4, 4), 0, off=i * 8, n=2))
    return out


def dma_wq(s):
    out = []
    for i in range(4):
        out.append(setm0(f"s_add_u32 m0, {sM0V}, {P1BASE + (s % NP1) * VSLOT + i * VSTR}"))
        out.append(salu(f"s_add_u32 {sT0}, {sOFFWQ}, {(16 * s + i) * 8192}", defs=[sT0]))
        out.append(dma(vL16, SRD_WQ, sT0, tag=("wq", s), flags=WQF))
    return out


def dma_x(pc):
    out = []
    for i in range(4):
        out.append(setm0(f"s_add_u32 m0, {sM0X}, {(pc % 2) * 16384 + i * 1024}"))
        out.append(salu(f"s_add_u32 {sT1}, {sOFFX}, {pc * 128 + i * 8 * 896}", defs=[sT1]))
        out.append(dma(vXO[i % 2], SRD_X, sT1, tag=("x", pc), flags=XF))
    return out


def dma_k(j):
    out = [salu(f"s_add_u32 {sT1}, {sOFFKV}, {j * 16384}", defs=[sT1])]
    for i in range(4):
        out.append(setm0(f"s_add_u32 m0, {sM0K}, {KS[j % 4] + i * (KSTR - 512)}"))
        out.append(dma(vOFFKV, SRD_K, sT1, off=i * 512, tag=("k", j), flags=KVF))
    return out


def dma_v(j):
    out = [salu(f"s_add_u32 {sT1}, {sOFFKV}, {j * 16384}", defs=[sT1])]
    for i in range(4):
        out.append(setm0(f"s_add_u32 m0, {sM0V}, {VBASE + VS[j % 4] + i * (VSTR - 512)}"))
        out.append(dma(vOFFKV, SRD_V, sT1, off=i * 512, tag=("v", j), flags=KVF))
    return out


def dma_wo(sg):
    ps, hs = divmod(sg, 2)
    out = []
    for i in range(8):
        out.append(setm0(f"s_add_u32 m0, {sM0WO}, {(sg % 4) * WOSLOT + i * 1024}"))
        out.append(salu(f"s_add_u32 {sT1}, {sOFFWO}, {(256 * hs + 8 * i) * 896 + 128 * ps}", defs=[sT1]))
        out.append(dma(vOFFWO, SRD_WO, sT1, tag=("wo", sg), flags=WOF))
    return out


def pfload(*a, **kw):
    i = bload(*a, **kw)
    i.defs = set()
    return i


def rd_wq(f):
    s, nt = divmod(f, 16)
    d = Wf(f)
    off = (s % NP1) * VSLOT + nt * 64
    return [ds_read_tr(d[0:2], vAWQ, off), ds_read_tr(d[2:4], vAWQ, off + 4 * VSTR)]


def rd_x(s):
    pc, sp = divmod(s, 4)
    return [ds_read_b128(Xf(s), vAX[sp], (pc % 2) * 16384)]


def rd_k(j, s):
    return [ds_read_b128(Kf(s), vAK, KS[j % 4] + s * 32)]


def rd_v(j, f):
    dt, ks = divmod(f, 2)
    d = Vf(f)
    off = VS[j % 4] + ks * 512 + dt * 64
    return [ds_read_tr(d[0:2], vAV, off), ds_read_tr(d[2:4], vAV, off + 4 * VSTR)]


def rd_wo(f):
    sg, r = divmod(f, 32)
    ks, tt = divmod(r, 2)
    slot = sg % 4
    base = vAWO[slot // 2][tt]
    off = (slot % 2) * WOSLOT + ks * 2048
    d = Wf(f)
    return [ds_read_tr(d[0:2], base, off), ds_read_tr(d[2:4], base, off + 512)]


def sm_max(p):
    out = []
    for qb in range(2):
        s_ = Sb(p, qb)
        t = vT[qb]
        out.append(valu("v_max3_f32", t, s_[0], s_[1], s_[2]))
        for r in range(3, 15, 2):
            out.append(valu("v_max3_f32", t, t, s_[r], s_[r + 1]))
        out.append(valu("v_max_f32", t, t, s_[15]))
    for qb in range(2):
        out.append(valu("v_mov_b32", vU[qb], vT[qb]))
    for qb in range(2):
        out.append(Ins(f"v_permlane32_swap_b32 {vT[qb]}, {vU[qb]}", "perm", defs=[vT[qb], vU[qb]],
                       uses=[vT[qb], vU[qb]]))
    for qb in range(2):
        out.append(valu("v_max_f32", vT[qb], vT[qb], vU[qb]))
    return out


_lbl = 0


def sm_check(first):
    global _lbl
    out = []
    if first:
        for qb in range(2):
            out.append(valu("v_mov_b32", vMR[qb], vT[qb]))
            out.append(valu("v_mul_f32", vM[qb], sC, vT[qb]))
            out.append(valu("v_add_f32", vTHR[qb], sTRAW, vT[qb]))
            out.append(valu("v_mov_b32", vL[qb], 0))
        return out
    out.append(valu("v_cmp_gt_f32", sMASK0, vT[0], vTHR[0]))
    out.append(valu("v_cmp_gt_f32", sMASK1, vT[1], vTHR[1]))
    _lbl += 1
    out.append(Group([
        salu(f"s_or_b64 {sMASK0}, {sMASK0}, {sMASK1}", defs=[sMASK0], uses=[sMASK0, sMASK1]),
        salu(f"s_cbranch_scc0 L_noslow{_lbl}"),
        Ins(f"s_call_b64 {sRET}, L_slow", "salu", cost=2,
            defs=vM + vTHR + vL + vAL + vMR + vU, uses=vM + vTHR + vL + vT + vMR),
        label(f"L_noslow{_lbl}")]))
    return out


def sm_exp(p, qb, grp):
    s_ = Sb(p, qb)
    out = []
    rs = range(4 * grp, 4 * grp + 4)
    for r in rs:
        out.append(valu("v_fma_f32", s_[r], s_[r], sC, ("-", vM[qb])))
    for r in rs:
        out.append(valu("v_exp_f32", s_[r], s_[r]))
    for r in rs:
        out.append(valu("v_add_f32", vL[qb], vL[qb], s_[r]))
    ks, g2 = divmod(grp, 2)
    for jj in range(2):
        j = 2 * g2 + jj
        out.append(valu("v_cvt_pk_bf16_f32", s_[8 * ks + j], s_[8 * ks + 2 * j], s_[8 * ks + 2 * j + 1]))
    return out


def Pf(p, qb, ks):
    return Sb(p, qb)[8 * ks: 8 * ks + 4]


def resc_check():
    global _lbl
    _lbl += 1
    return [
        salu(f"s_cmp_eq_u32 {sFLAG}, 0", uses=[sFLAG]),
        salu(f"s_cbranch_scc1 L_nores{_lbl}"),
        Ins(f"s_call_b64 {sRET}, L_resc", "salu", cost=2),
        label(f"L_nores{_lbl}"),
    ]


def softmax1(j):
    p = j % 2
    out = sm_max(p) + sm_check(j == 0)
    for gi in range(NG1):
        out += sm_exp(p, gi // 4, gi % 4)
    return out


def softmax2(j):
    p = j % 2
    out = []
    for gi in range(NG1, 8):
        out += sm_exp(p, gi // 4, gi % 4)
    return out


def conv_o(ksg):
    qb, s = divmod(ksg, 16)
    dt, hf = divmod(s, 2)
    acc = Oacc(dt, qb)
    out = []
    for ee in range(8):
        out.append(valu("v_accvgpr_read_b32", vTMP[ee], acc[hf * 8 + ee]))
    for ee in range(8):
        out.append(valu("v_mul_f32", vTMP[ee], vTMP[ee], vL[qb]))
    for jj in range(4):
        out.append(valu("v_cvt_pk_bf16_f32", Of(ksg)[jj], vTMP[2 * jj], vTMP[2 * jj + 1]))
    return out


def store_pass(ps):
    out = []
    for tt in range(2):
        acc = Wacc(ps % 2, tt)
        for sp in range(2):
            g = []
            for jj in range(4):
                g.append(valu("v_cvt_pk_bf16_f32", acc[8 * sp + jj], acc[8 * sp + 2 * jj], acc[8 * sp + 2 * jj + 1]))
            g.append(salu(f"s_add_u32 {sT0}, {sOFFWS}, {ps * 4096}", defs=[sT0]))
            g.append(bstore(acc[8 * sp: 8 * sp + 4], vL16, SRD_WS, sT0, off=(2 * tt + sp) * 1024, flags=STF))
            out.append(g)
    return out


def gen_k1():
    st = []
    e = st.append
    ext = st.extend
    ext(stamp(True))
    ext(stamp())
    e(salu("s_cmp_ge_u32 s2, 256"))
    e(salu("s_cbranch_scc1 L_end"))
    if MAP == 0:
        e(salu(f"s_and_b32 {sG}, s2, 7"))
        e(salu(f"s_lshr_b32 s3, s2, 6"))
        e(salu(f"s_xor_b32 {sG}, {sG}, s3"))
        e(salu(f"s_lshr_b32 {sB}, s2, 3"))
        e(salu(f"s_and_b32 {sB}, {sB}, 15"))
        e(salu(f"s_lshr_b32 {sBLK}, s2, 7"))
    else:
        e(salu(f"s_bfe_u32 {sBLK}, s2, 0x10002"))
        e(salu(f"s_and_b32 {sG}, s2, 3"))
        e(salu(f"s_lshl_b32 {sG}, {sG}, 1"))
        e(salu(f"s_bfe_u32 s3, s2, 0x10003"))
        e(salu(f"s_or_b32 {sG}, {sG}, s3"))
        e(salu(f"s_lshr_b32 {sB}, s2, 4"))
    e(salu(f"s_load_dwordx2 s[14:15], s[0:1], 96"))
    e(salu(f"s_mul_i32 s3, {sBLK}, 40"))
    e(salu("s_add_u32 s0, s0, s3"))
    e(salu("s_addc_u32 s1, s1, 0"))
    e(salu("s_load_dwordx8 s[4:11], s[0:1], 0"))
    e(salu("s_load_dwordx2 s[12:13], s[0:1], 32"))
    lane, tA, tB, tC, tD, tE = (vTMP[i] for i in range(6))
    e(valu("v_and_b32", lane, 63, V(0)))
    e(valu("v_lshrrev_b32", tA, 6, V(0)))
    e(Ins(f"v_readfirstlane_b32 {sW}, {tA}", "valu", defs=[sW], uses=[tA]))
    e(valu("v_lshlrev_b32", vL16, 4, lane))
    e(valu("v_lshrrev_b32", tA, 3, lane))
    e(valu("v_mul_u32_u24", tA, 896, tA))
    e(valu("v_and_b32", tB, 7, lane))
    e(valu("v_lshrrev_b32", tC, 4, lane))
    e(valu("v_xor_b32", tB, tB, tC))
    e(valu("v_lshl_add_u32", vXO[0], tB, 4, tA))
    e(valu("v_xor_b32", vXO[1], 64, vXO[0]))
    e(salu(f"s_mul_i32 {sM0V}, {sW}, {4 * VSTR}", uses=[sW]))
    e(salu(f"s_lshl_b32 {sOFFWQ}, {sW}, 15"))
    e(salu(f"s_lshl_b32 {sM0X}, {sW}, 12"))
    e(salu(f"s_add_u32 {sM0X}, {sM0X}, {XBASE}"))
    e(salu(f"s_mul_i32 {sOFFX}, {sW}, {32 * 896}"))
    e(raw("s_waitcnt lgkmcnt(0)", "wait"))

    def srd(d, ptr_lo, off_expr_reg, size):
        e(salu(f"s_add_u32 s{d.b}, s{ptr_lo}, {off_expr_reg}"))
        e(salu(f"s_addc_u32 s{d.b + 1}, s{ptr_lo + 1}, 0"))
        e(salu(f"s_mov_b32 s{d.b + 2}, {size}"))
        e(salu(f"s_mov_b32 s{d.b + 3}, 0x00020000"))

    e(salu(f"s_lshl_b32 s3, {sG}, 10"))
    srd(SRD_WQ, 10, "s3", 447 * 8192 + 1024)
    e(salu(f"s_mul_i32 s3, {sB}, 114688"))
    srd(SRD_X, 4, "s3", 114688)
    ext(dma_wq(0))
    ext(dma_x(0))
    ext(dma_wq(1))
    ext(dma_x(1))
    ext(dma_wq(2))
    e(salu(f"s_lshl_b32 s3, {sB}, 3"))
    e(salu(f"s_add_u32 s3, s3, {sG}"))
    e(salu(f"s_lshl_b32 s3, s3, 18"))
    srd(SRD_K, 6, "s3", 262144)
    srd(SRD_V, 8, "s3", 262144)
    e(salu(f"s_mul_i32 s3, {sG}, 458752"))
    srd(SRD_WO, 12, "s3", 458752)
    e(salu(f"s_lshl_b32 s3, {sBLK}, 4"))
    e(salu(f"s_add_u32 s3, s3, {sB}"))
    e(salu(f"s_lshl_b32 s3, s3, 3"))
    e(salu(f"s_add_u32 s3, s3, {sG}"))
    e(salu(f"s_mul_i32 s3, s3, {PART}"))
    srd(SRD_WS, 14, "s3", PART)
    e(salu(f"s_mov_b32 {sC}, {f32bits(CSCALE):#x}"))
    e(salu(f"s_mov_b32 {sTRAW}, {f32bits(TRAW):#x}"))
    e(salu(f"s_mov_b32 {sFLAG}, 0"))
    e(salu(f"s_mul_i32 {sM0K}, {sW}, {4 * KSTR}"))
    e(salu(f"s_lshl_b32 {sOFFKV}, {sW}, 11"))
    e(salu(f"s_lshl_b32 {sM0WO}, {sW}, 13"))
    e(salu(f"s_mul_i32 {sOFFWO}, {sW}, {64 * 896}"))
    e(salu(f"s_mul_i32 {sOFFWS}, {sW}, {14 * 2048}"))
    e(valu("v_lshrrev_b32", tA, 5, lane))
    e(valu("v_and_b32", tB, 31, lane))
    e(valu("v_lshlrev_b32", tC, 13, tA))
    e(valu("v_lshl_add_u32", vOFFKV, tB, 4, tC))
    e(valu("v_bfe_u32", tC, tB, 1, 3))
    e(valu("v_xor_b32", tC, tC, tA))
    e(valu("v_lshlrev_b32", tC, 4, tC))
    e(valu("v_lshl_add_u32", tC, tB, 7, tC))
    e(valu("v_add_u32", vAX[0], sM0X, tC))
    for sp in range(1, 4):
        e(valu("v_xor_b32", vAX[sp], sp << 5, vAX[0]))
    e(valu("v_and_b32", tC, 3, tB))
    e(valu("v_and_b32", tD, 4, tB))
    e(valu("v_lshl_add_u32", tC, tD, 1, tC))
    e(valu("v_and_b32", tD, 8, tB))
    e(valu("v_lshrrev_b32", tD, 1, tD))
    e(valu("v_add_u32", tC, tC, tD))
    e(valu("v_mul_u32_u24", vAK, KSTR, tC))
    e(valu("v_lshrrev_b32", tD, 4, tB))
    e(valu("v_lshl_add_u32", vAK, tD, 9, vAK))
    e(valu("v_lshl_add_u32", vAK, tA, 4, vAK))
    e(valu("v_bfe_u32", tE, lane, 2, 2))
    e(valu("v_lshl_add_u32", tC, tA, 3, tE))
    e(valu("v_and_b32", tD, 1, lane))
    e(valu("v_lshlrev_b32", tD, 4, tD))
    e(valu("v_and_b32", tB, 2, lane))
    e(valu("v_lshl_add_u32", tD, tB, 2, tD))
    e(valu("v_bfe_u32", tB, lane, 4, 1))
    e(valu("v_lshl_add_u32", tD, tB, 5, tD))
    e(valu("v_mul_u32_u24", vAV, VSTR, tC))
    e(valu("v_add_u32", vAV, vAV, tD))
    e(valu("v_add_u32", vAWQ, P1BASE, vAV))
    e(valu("v_add_u32", vAV, VBASE, vAV))
    e(valu("v_lshl_add_u32", tC, tC, 7, tD))
    e(valu("v_lshrrev_b32", tE, 1, tE))
    e(valu("v_lshlrev_b32", tE, 6, tE))
    e(valu("v_add_u32", vAWO[0][0], tC, tE))
    e(valu("v_xor_b32", tE, 64, tE))
    e(valu("v_add_u32", vAWO[0][1], tC, tE))
    e(valu("v_add_u32", vAWO[1][0], 2 * WOSLOT, vAWO[0][0]))
    e(valu("v_add_u32", vAWO[1][1], 2 * WOSLOT, vAWO[0][1]))
    e(valu("v_lshrrev_b32", tC, 3, lane))
    e(valu("v_mul_u32_u24", tC, 896, tC))
    e(valu("v_and_b32", tD, 7, lane))
    e(valu("v_lshlrev_b32", tB, 2, tB))
    e(valu("v_xor_b32", tD, tD, tB))
    e(valu("v_lshl_add_u32", vOFFWO, tD, 4, tC))
    if WARM:
        e(valu("v_lshrrev_b32", tA, 3, lane))
        e(valu("v_and_b32", tB, 7, lane))
        e(valu("v_lshlrev_b32", tA, 13, tA))
        e(valu("v_lshl_add_u32", vPFWQ, tB, 7, tA))
        if MAP == 0:
            e(salu(f"s_and_b32 s3, {sB}, 7"))
            e(salu(f"s_mul_i32 s3, s3, {56 * 8192}"))
            e(salu(f"s_lshl_b32 {sT2}, {sW}, 16"))
            e(salu(f"s_add_u32 {sT2}, {sT2}, s3"))
            e(pfload(vDUMMY, vPFWQ, SRD_WQ, sT2, tag=("pfw", 0), n=1))
            e(salu(f"s_add_u32 {sT2}, {sT2}, {4 << 16}"))
            e(pfload(vDUMMY, vPFWQ, SRD_WQ, sT2, tag=("pfw", 1), n=1))
        else:
            e(salu(f"s_mul_i32 s3, {sB}, {28 * 8192}"))
            e(salu(f"s_lshl_b32 {sT2}, {sW}, 16"))
            e(salu(f"s_add_u32 {sT2}, {sT2}, s3"))
            e(pfload(vDUMMY, vPFWQ, SRD_WQ, sT2, tag=("pfw", 0), n=1))
    e(WaitVM(("x", 0)))
    for s in range(4):
        ext(rd_x(s))
    e(barrier())

    LA = 6
    for f in range(LA):
        ext(rd_wq(f))
    kv_at = dict(zip(KVAT, [dma_v(0), dma_k(0), dma_k(1), dma_k(2), dma_k(3)]))
    for s in range(28):
        if STAMP and s in (0, 14):
            ext(stamp())
        slots = []
        for nt in range(16):
            f = 16 * s + nt
            sl = [mfma(Qacc(nt), Wf(f), Xf(s), Qacc(nt) if s > 0 else 0)]
            if f + LA < 448:
                sl += rd_wq(f + LA)
            if nt == 3 and s + 1 < 28:
                if s == 23:
                    sl += [WaitAll(vm=False, lgkm=True)]
                sl += [WaitVM(("wq", s + 1)), barrier()]
            slots.append(sl)
        fill = []
        if s + NP1 - 1 < 28:
            fill += dma_wq(s + NP1 - 1)
        if s in kv_at:
            fill += kv_at[s]
        if s % 4 == 1 and (s + 3) // 4 < 7:
            pc = (s + 3) // 4
            fill += [WaitVM(("x", pc))]
            for s2 in range(4):
                fill += rd_x(4 * pc + s2)
        if s % 4 == 0 and s // 4 + 2 < 7:
            fill += [WaitAll(vm=False, lgkm=True)] if s == 0 else []
            fill += dma_x(s // 4 + 2)
        ext(interleave(slots, fill, start=4, end=14))

    ext(stamp())
    e(WaitVM(("k", 0)))
    e(barrier())
    ext(dma_v(1))
    for s3 in range(3):
        ext(rd_k(0, s3))
    for qb in range(2):
        for s in range(16):
            acc = Qacc(qb * 8 + s // 2)
            for ee in range(8):
                e(valu("v_accvgpr_read_b32", vX[(s % 2) * 8 + ee], acc[(s % 2) * 8 + ee]))
            for jj in range(4):
                e(valu("v_cvt_pk_bf16_f32", Qf(qb, s)[jj], vX[(s % 2) * 8 + 2 * jj], vX[(s % 2) * 8 + 2 * jj + 1]))

    ext(stamp())
    for j in range(17):
        p = j % 2
        if j in (4, 12):
            ext(stamp())
        fillA = softmax2(j - 1) if j >= 1 else []
        if j < 16:
            slots = []
            for s in range(16):
                for qb in range(2):
                    sl = [mfma(Sb(p, qb), Kf(s), Qf(qb, s), Sb(p, qb) if s > 0 else 0)]
                    if qb == 0:
                        if s + 3 < 16:
                            sl += rd_k(j, s + 3)
                        elif j >= 1:
                            sl += rd_v(j - 1, s + 3 - 16)
                    slots.append(sl)
            ext(interleave(slots, fillA, start=0, end=30))
        else:
            for f in range(3):
                ext(rd_v(j - 1, f))
            ext(fillA)
        if j >= 2:
            ext(resc_check())
        waits = []
        if j + 1 < 16:
            waits.append(("k", j + 1))
        if j < 16:
            waits.append(("v", j))
        grp = []
        if j + 4 < 16:
            grp += dma_k(j + 4)
        if j + 2 < 16:
            grp += dma_v(j + 2)
        if j == 13:
            grp += dma_wo(0)
        if j == 15:
            grp += dma_wo(1) + dma_wo(2)
        sync = [WaitVM(waits), barrier()] if j < 16 else []
        fillB = softmax1(j) if j < 16 else []
        if j == 16:
            for qb in range(2):
                fillB.append(valu("v_mov_b32", vU[qb], vL[qb]))
            for qb in range(2):
                fillB.append(Ins(f"v_permlane32_swap_b32 {vL[qb]}, {vU[qb]}", "perm",
                                 defs=[vL[qb], vU[qb]], uses=[vL[qb], vU[qb]]))
            for qb in range(2):
                fillB.append(valu("v_add_f32", vL[qb], vL[qb], vU[qb]))
            for qb in range(2):
                fillB.append(valu("v_rcp_f32", vL[qb], vL[qb]))
        if j >= 1:
            slots = []
            for f in range(16):
                dt, ks = divmod(f, 2)
                for qb in range(2):
                    sl = [mfma(Oacc(dt, qb), Vf(f), Pf(1 - p, qb, ks),
                               Oacc(dt, qb) if (j > 1 or ks > 0) else 0)]
                    if qb == 0:
                        if f + 3 < 16:
                            sl += rd_v(j - 1, f + 3)
                        elif j + 1 < 16:
                            sl += rd_k(j + 1, f + 3 - 16)
                    if f == 0 and qb == 1:
                        sl += sync
                    slots.append(sl)
            ext(interleave(slots, grp + fillB, start=2, end=32))
        else:
            ext(sync)
            ext(grp)
            for s3 in range(3):
                ext(rd_k(1, s3))
            ext(fillB)

    ext(stamp())
    e(WaitVM(("wo", 0)))
    e(barrier())
    ext(dma_wo(3))
    for f in range(LA):
        ext(rd_wo(f))
    CLA = 2
    for ksg in range(CLA):
        ext(conv_o(ksg))

    ext(stamp())
    for sg in range(14):
        ps, hs = divmod(sg, 2)
        if sg in (2, 8):
            ext(stamp())
        slots = []
        for r in range(32):
            f = 32 * sg + r
            ks, tt = divmod(r, 2)
            ksg = 16 * hs + ks
            acc = Wacc(ps % 2, tt)
            sl = [mfma(acc, Wf(f), Of(ksg), acc if ksg > 0 else 0)]
            if f + LA < 448:
                sl += rd_wo(f + LA)
            if ps == 0 and ksg + CLA < 32:
                cv = conv_o(ksg + CLA)
                sl += cv[:10] if tt == 0 else cv[10:]
            if r == 3 and sg + 1 < 14:
                sl += [WaitVM(("wo", sg + 1)), barrier()]
            slots.append(sl)
        fill = []
        if sg >= 1 and sg + 3 < 14:
            fill += dma_wo(sg + 3)
        if ps >= 1:
            sp_ = store_pass(ps - 1)
            for k in range(2):
                if not env("NOST", 0):
                    slots[10 + 12 * k] += sp_[2 * hs + k]
        ext(interleave(slots, fill, start=4, end=26))

    ext(stamp())
    for g_ in store_pass(6):
        ext(g_)
    if STAMP:
        e(WaitAll())
    ext(stamp())
    ext(stamp(True))
    ext(stamp_store())
    e(label("L_end"))
    e(raw("s_endpgm"))

    lines = finalize(st)

    sub = []
    s_ = sub.append
    s_(label("L_slow"))
    s_(nop(2))
    for qb in range(2):
        s_(valu("v_max_f32", vMR[qb], vMR[qb], vT[qb]))
        s_(valu("v_mul_f32", vU[qb], sC, vMR[qb]))
        s_(valu("v_sub_f32", vAL[qb], vM[qb], vU[qb]))
        s_(valu("v_exp_f32", vAL[qb], vAL[qb]))
        s_(valu("v_mov_b32", vM[qb], vU[qb]))
        s_(valu("v_add_f32", vTHR[qb], sTRAW, vMR[qb]))
        s_(valu("v_mul_f32", vL[qb], vL[qb], vAL[qb]))
    s_(salu(f"s_mov_b32 {sFLAG}, 1"))
    s_(nop(2))
    s_(raw(f"s_setpc_b64 {sRET}"))
    s_(label("L_resc"))
    s_(nop(16))
    tt = [vU[0], vU[1], vT[0], vT[1]]
    for dt in range(8):
        for qb in range(2):
            acc = Oacc(dt, qb)
            for r0 in range(0, 16, 4):
                for k in range(4):
                    s_(valu("v_accvgpr_read_b32", tt[k], acc[r0 + k]))
                for k in range(4):
                    s_(valu("v_mul_f32", tt[k], tt[k], vAL[qb]))
                for k in range(4):
                    s_(valu("v_accvgpr_write_b32", acc[r0 + k], tt[k]))
    s_(salu(f"s_mov_b32 {sFLAG}, 0"))
    s_(nop(4))
    s_(raw(f"s_setpc_b64 {sRET}"))
    lines += finalize(sub)
    return lines


def gen_k2():
    st = []
    e = st.append
    e(salu("s_cmp_ge_u32 s2, 896"))
    e(salu("s_cbranch_scc1 L2_end"))
    e(salu("s_load_dwordx2 s[4:5], s[0:1], 80"))
    e(salu("s_load_dwordx2 s[6:7], s[0:1], 96"))
    e(salu("s_and_b32 s8, s2, 1"))
    e(salu("s_lshr_b32 s9, s2, 1"))
    e(salu("s_mul_i32 s10, s9, 4682"))
    e(salu("s_lshr_b32 s10, s10, 16"))
    e(salu("s_mul_i32 s11, s10, 14"))
    e(salu("s_sub_u32 s11, s9, s11"))
    lane, w, t1, t2 = V(1), V(2), V(3), V(4)
    e(valu("v_and_b32", lane, 63, V(0)))
    e(valu("v_lshrrev_b32", w, 6, V(0)))
    e(valu("v_mul_u32_u24", t1, 14 * 2048, w))
    e(valu("v_lshl_add_u32", t1, lane, 4, t1))
    e(salu("s_lshl_b32 s12, s11, 11"))
    e(salu("s_lshl_b32 s13, s8, 10"))
    e(salu("s_add_u32 s12, s12, s13"))
    e(valu("v_add_u32", t1, S(12), t1))
    e(salu("s_and_b32 s13, s10, 15"))
    e(salu("s_lshr_b32 s14, s10, 4"))
    e(salu("s_mul_i32 s13, s13, 229376"))
    e(salu("s_mul_i32 s14, s14, 896"))
    e(salu("s_add_u32 s13, s13, s14"))
    e(salu("s_lshl_b32 s14, s11, 6"))
    e(salu("s_add_u32 s13, s13, s14"))
    e(salu("s_lshl_b32 s14, s8, 5"))
    e(salu("s_add_u32 s13, s13, s14"))
    e(valu("v_and_b32", t2, 31, lane))
    e(valu("v_lshl_add_u32", t2, w, 5, t2))
    e(valu("v_mul_u32_u24", t2, 1792, t2))
    e(valu("v_lshrrev_b32", lane, 5, lane))
    e(valu("v_lshl_add_u32", t2, lane, 4, t2))
    e(valu("v_add_u32", t2, S(13), t2))
    e(raw("s_waitcnt lgkmcnt(0)", "wait"))
    e(salu("s_mov_b32 s16, s4"))
    e(salu("s_mov_b32 s17, s5"))
    e(salu(f"s_mov_b32 s18, {16 * 128 * 896 * 2}"))
    e(salu("s_mov_b32 s19, 0x00020000"))
    e(salu(f"s_mul_i32 s14, s10, {8 * PART}"))
    e(salu("s_add_u32 s20, s6, s14"))
    e(salu("s_addc_u32 s21, s7, 0"))
    e(salu(f"s_mov_b32 s22, {8 * PART}"))
    e(salu("s_mov_b32 s23, 0x00020000"))
    e(salu("s_mov_b32 s32, 0xffff0000"))
    so, sw = S(16, 4), S(20, 4)
    for g in range(8):
        e(salu(f"s_mov_b32 s{24 + g}, {g * PART}"))
    for g in range(8):
        e(bload(V(8 + g * 4, 4), t1, sw, S(24 + g), flags=K2F))
    acc = V(40, 8)
    tmp = V(48, 8)
    for g in range(8):
        for jj in range(4):
            src = V(8 + g * 4 + jj)
            dlo, dhi = (acc[2 * jj], acc[2 * jj + 1]) if g == 0 else (tmp[2 * jj], tmp[2 * jj + 1])
            e(valu("v_lshlrev_b32", dlo, 16, src))
            e(valu("v_and_b32", dhi, S(32), src))
        if g:
            for k in range(8):
                e(valu("v_add_f32", acc[k], acc[k], tmp[k]))
    for jj in range(4):
        e(valu("v_cvt_pk_bf16_f32", V(56 + jj), acc[2 * jj], acc[2 * jj + 1]))
    e(bstore(V(56, 4), t2, so, 0))
    e(label("L2_end"))
    e(raw("s_endpgm"))
    return finalize(st)


HEADER = open(os.path.join(os.path.dirname(os.path.abspath(__file__)), "header.txt")).read()


def kd(name, vgpr, accum, sgpr):
    return f""".amdhsa_kernel {name}
  .amdhsa_next_free_vgpr {vgpr}
  .amdhsa_next_free_sgpr {sgpr}
  .amdhsa_accum_offset {accum}
  .amdhsa_group_segment_fixed_size 0
  .amdhsa_kernarg_size 104
  .amdhsa_user_sgpr_count 2
  .amdhsa_user_sgpr_kernarg_segment_ptr 1
  .amdhsa_system_sgpr_workgroup_id_x 1
.end_amdhsa_kernel
"""


def main():
    out = HEADER
    out += f"; @launch kernel={K1} grid=(256,1,1) block=(256,1,1) lds={LDS_BYTES}\n"
    out += f"; @launch kernel={K2} grid=(896,1,1) block=(256,1,1) lds=0\n"
    out += '.amdgcn_target "amdgcn-amd-amdhsa--gfx950"\n.text\n'
    for name, gen in ((K1, gen_k1), (K2, gen_k2)):
        out += f".globl {name}\n.p2align 8\n.type {name},@function\n{name}:\n"
        out += "\n".join(gen()) + "\n"
    out += '.section .rodata,"a"\n.p2align 6\n'
    out += kd(K1, 512, 256, 102)
    out += ".p2align 6\n"
    out += kd(K2, 64, 64, 40)
    dst = sys.argv[1] if len(sys.argv) > 1 else f"cdna_kernels/{NAME}.s"
    open(dst, "w").write(out)
    print("wrote", dst, len(out), "bytes", out.count("\n"), "lines")


if __name__ == "__main__":
    main()
```

```python
import math
import struct
import sys
import os

sys.path.insert(0, os.path.dirname(os.path.abspath(__file__)))
from asmir import *

NAME = "concat_heads__gqa_block_cached__gqa_block_cached__near_ridge"
K1 = NAME + "_kernel"
K2 = "reduce_out_kernel"


def f32bits(x):
    return struct.unpack("<I", struct.pack("<f", x))[0]


def env(k, d):
    return type(d)(os.environ.get(k, d))


CSCALE = math.log2(math.e) / 16.0
TLOG2 = 8.0
TRAW = TLOG2 / CSCALE
KVF = env("KVF", "nt")
WQF = env("WQF", "")
XF = env("XF", "")
WOF = env("WOF", "")
STF = env("STF", "")
K2F = env("K2F", "")
STAMP = env("STAMP", 0)
WARM = env("WARM", 1)
MAP = env("MAP", 1)
KVAT = [int(x) for x in env("KVAT", "2,6,10,23,25").split(",")]
NG1 = env("NG1", 3)

SRD_X, SRD_K, SRD_V, SRD_WQ, SRD_WO, SRD_WS = (S(16, 4), S(20, 4), S(24, 4), S(28, 4), S(32, 4), S(36, 4))
sW, sG, sB, sBLK, sC = S(40), S(41), S(42), S(43), S(44)
sM0V, sOFFWQ, sM0K, sM0X, sOFFKV = S(45), S(46), S(47), S(48), S(49)
sT0, sT1 = S(50), S(51)
sMASK0, sMASK1 = S(52, 2), S(54, 2)
sFLAG = S(56)
sOFFX = S(57)
sRET = S(58, 2)
sM0WO = S(60)
sOFFWS = S(61)
sTRAW = S(62)
sOFFWO = S(63)
sT2 = S(100)


def Qf(qb, s):
    return V((qb * 16 + s) * 4, 4)


def Xf(s):
    return V(s * 4, 4)


def Of(ks):
    return V(ks * 4, 4)


def Sb(p, qb):
    return V(128 + p * 32 + qb * 16, 16)


def Kf(i):
    return V(192 + (i % 4) * 4, 4)


def Vf(i):
    return V(208 + (i % 4) * 4, 4)


def Wf(i):
    return V(192 + (i % 8) * 4, 4)


def Wacc(buf, tt):
    return V(128 + buf * 32 + tt * 16, 16)


vAK, vAV, vOFFKV, vL16 = V(224), V(225), V(226), V(227)
vM = [V(228), V(229)]
vTHR = [V(230), V(231)]
vL = [V(232), V(233)]
vAL = [V(234), V(235)]
vT = [V(236), V(237)]
vU = [V(238), V(239)]
vTMP = V(240, 8)
vMR = [V(248), V(249)]
vAWQ = V(250)
vOFFWO = V(251)
vAWO = [[V(252), V(253)], [V(254), V(255)]]
vXO = [V(128), V(129)]
vAX = V(130, 4)
vDUMMY, vPFWQ, vL128 = V(144), V(145), V(146)
vX = V(160, 16)

KSTR, VSTR = 1040, 1088
KSLOT, VSLOT = 16 * KSTR, 16 * VSTR
KS = [i * KSLOT for i in range(4)]
VBASE = 4 * KSLOT
VS = [i * VSLOT for i in range(4)]
P1BASE = VBASE + VSLOT
NP1 = 4
XBASE = 2 * KSLOT
assert XBASE + 32768 <= 4 * KSLOT
WOSLOT = 32768
LDS_BYTES = 163840
PART = 4 * 14 * 2048
assert P1BASE + NP1 * VSLOT <= LDS_BYTES


def Oacc(dt, qb):
    return A((dt * 2 + qb) * 16, 16)


def Qacc(nt):
    return A(nt * 16, 16)


def barrier():
    return raw("s_barrier", "other", cost=4)


_nst = 0


def stamp(real=False):
    global _nst
    if not STAMP:
        return []
    i = _nst
    _nst += 1
    assert i < 16
    op = "s_memrealtime" if (real or STAMP >= 2) else "s_memtime"
    return [raw(f"{op} s[{64 + 2 * i}:{65 + 2 * i}]", "salu", cost=2)]


def stamp_store():
    if not STAMP:
        return []
    if STAMP == 3:
        out = [raw("s_waitcnt lgkmcnt(0)", "wait"),
               salu(f"s_cmp_lg_u32 {sW}, 0"), salu("s_cbranch_scc1 L_end"),
               salu(f"s_cmp_lg_u32 s2, 77"), salu("s_cbranch_scc1 L_end"),
               salu(f"s_add_u32 s4, s14, {64 << 20}"), salu("s_addc_u32 s5, s15, 0"),
               salu("s_mov_b32 s6, 256"), salu("s_mov_b32 s7, 0x00020000"),
               valu("v_mov_b32", V(2), 0)]
        for i in range(_nst):
            out.append(salu(f"s_sub_u32 s3, s{64 + 2 * i}, s64"))
            out.append(valu("v_mov_b32", V(4 + i), S(3)))
            out.append(bstore(V(4 + i), V(2), S(4, 4), 0, off=i * 4, n=1))
        return out
    out = [raw("s_waitcnt lgkmcnt(0)", "wait"),
           salu(f"s_cmp_lg_u32 {sW}, 0"), salu("s_cbranch_scc1 L_end"),
           salu("s_lshl_b32 s3, s2, 7"), salu(f"s_add_u32 s3, s3, {64 << 20}"),
           salu("s_add_u32 s4, s14, s3"), salu("s_addc_u32 s5, s15, 0"),
           salu("s_mov_b32 s6, 128"), salu("s_mov_b32 s7, 0x00020000"),
           valu("v_mov_b32", V(2), 0)]
    for i in range(_nst):
        out.append(valu("v_mov_b32", V(4 + 2 * i), S(64 + 2 * i)))
        out.append(valu("v_mov_b32", V(5 + 2 * i), S(65 + 2 * i)))
        out.append(bstore(V(4 + 2 * i, 2), V(2), S(4, 4), 0, off=i * 8, n=2))
    return out


def dma_wq(s):
    out = []
    for i in range(4):
        out.append(setm0(f"s_add_u32 m0, {sM0V}, {P1BASE + (s % NP1) * VSLOT + i * VSTR}"))
        out.append(salu(f"s_add_u32 {sT0}, {sOFFWQ}, {(16 * s + i) * 8192}", defs=[sT0]))
        out.append(dma(vL16, SRD_WQ, sT0, tag=("wq", s), flags=WQF))
    return out


def dma_x(pc):
    out = []
    for i in range(4):
        out.append(setm0(f"s_add_u32 m0, {sM0X}, {(pc % 2) * 16384 + i * 1024}"))
        out.append(salu(f"s_add_u32 {sT1}, {sOFFX}, {pc * 128 + i * 8 * 896}", defs=[sT1]))
        out.append(dma(vXO[i % 2], SRD_X, sT1, tag=("x", pc), flags=XF))
    return out


def dma_k(j):
    out = [salu(f"s_add_u32 {sT1}, {sOFFKV}, {j * 16384}", defs=[sT1])]
    for i in range(4):
        out.append(setm0(f"s_add_u32 m0, {sM0K}, {KS[j % 4] + i * (KSTR - 512)}"))
        out.append(dma(vOFFKV, SRD_K, sT1, off=i * 512, tag=("k", j), flags=KVF))
    return out


def dma_v(j):
    out = [salu(f"s_add_u32 {sT1}, {sOFFKV}, {j * 16384}", defs=[sT1])]
    for i in range(4):
        out.append(setm0(f"s_add_u32 m0, {sM0V}, {VBASE + VS[j % 4] + i * (VSTR - 512)}"))
        out.append(dma(vOFFKV, SRD_V, sT1, off=i * 512, tag=("v", j), flags=KVF))
    return out


def dma_wo(sg):
    ps, hs = divmod(sg, 2)
    out = []
    for i in range(8):
        out.append(setm0(f"s_add_u32 m0, {sM0WO}, {(sg % 4) * WOSLOT + i * 1024}"))
        out.append(salu(f"s_add_u32 {sT1}, {sOFFWO}, {(256 * hs + 8 * i) * 896 + 128 * ps}", defs=[sT1]))
        out.append(dma(vOFFWO, SRD_WO, sT1, tag=("wo", sg), flags=WOF))
    return out


def pfload(*a, **kw):
    i = bload(*a, **kw)
    i.defs = set()
    return i


def rd_wq(f):
    s, nt = divmod(f, 16)
    d = Wf(f)
    off = (s % NP1) * VSLOT + nt * 64
    return [ds_read_tr(d[0:2], vAWQ, off), ds_read_tr(d[2:4], vAWQ, off + 4 * VSTR)]


def rd_x(s):
    pc, sp = divmod(s, 4)
    return [ds_read_b128(Xf(s), vAX[sp], (pc % 2) * 16384)]


def rd_k(j, s):
    return [ds_read_b128(Kf(s), vAK, KS[j % 4] + s * 32)]


def rd_v(j, f):
    dt, ks = divmod(f, 2)
    d = Vf(f)
    off = VS[j % 4] + ks * 512 + dt * 64
    return [ds_read_tr(d[0:2], vAV, off), ds_read_tr(d[2:4], vAV, off + 4 * VSTR)]


def rd_wo(f):
    sg, r = divmod(f, 32)
    ks, tt = divmod(r, 2)
    slot = sg % 4
    base = vAWO[slot // 2][tt]
    off = (slot % 2) * WOSLOT + ks * 2048
    d = Wf(f)
    return [ds_read_tr(d[0:2], base, off), ds_read_tr(d[2:4], base, off + 512)]


def sm_max(p):
    out = []
    for qb in range(2):
        s_ = Sb(p, qb)
        t = vT[qb]
        out.append(valu("v_max3_f32", t, s_[0], s_[1], s_[2]))
        for r in range(3, 15, 2):
            out.append(valu("v_max3_f32", t, t, s_[r], s_[r + 1]))
        out.append(valu("v_max_f32", t, t, s_[15]))
    for qb in range(2):
        out.append(valu("v_mov_b32", vU[qb], vT[qb]))
    for qb in range(2):
        out.append(Ins(f"v_permlane32_swap_b32 {vT[qb]}, {vU[qb]}", "perm", defs=[vT[qb], vU[qb]],
                       uses=[vT[qb], vU[qb]]))
    for qb in range(2):
        out.append(valu("v_max_f32", vT[qb], vT[qb], vU[qb]))
    return out


_lbl = 0


def sm_check(first):
    global _lbl
    out = []
    if first:
        for qb in range(2):
            out.append(valu("v_mov_b32", vMR[qb], vT[qb]))
            out.append(valu("v_mul_f32", vM[qb], sC, vT[qb]))
            out.append(valu("v_add_f32", vTHR[qb], sTRAW, vT[qb]))
            out.append(valu("v_mov_b32", vL[qb], 0))
        return out
    out.append(valu("v_cmp_gt_f32", sMASK0, vT[0], vTHR[0]))
    out.append(valu("v_cmp_gt_f32", sMASK1, vT[1], vTHR[1]))
    _lbl += 1
    out.append(Group([
        salu(f"s_or_b64 {sMASK0}, {sMASK0}, {sMASK1}", defs=[sMASK0], uses=[sMASK0, sMASK1]),
        salu(f"s_cbranch_scc0 L_noslow{_lbl}"),
        Ins(f"s_call_b64 {sRET}, L_slow", "salu", cost=2,
            defs=vM + vTHR + vL + vAL + vMR + vU, uses=vM + vTHR + vL + vT + vMR),
        label(f"L_noslow{_lbl}")]))
    return out


def sm_exp(p, qb, grp):
    s_ = Sb(p, qb)
    out = []
    rs = range(4 * grp, 4 * grp + 4)
    for r in rs:
        out.append(valu("v_fma_f32", s_[r], s_[r], sC, ("-", vM[qb])))
    for r in rs:
        out.append(valu("v_exp_f32", s_[r], s_[r]))
    for r in rs:
        out.append(valu("v_add_f32", vL[qb], vL[qb], s_[r]))
    ks, g2 = divmod(grp, 2)
    for jj in range(2):
        j = 2 * g2 + jj
        out.append(valu("v_cvt_pk_bf16_f32", s_[8 * ks + j], s_[8 * ks + 2 * j], s_[8 * ks + 2 * j + 1]))
    return out


def Pf(p, qb, ks):
    return Sb(p, qb)[8 * ks: 8 * ks + 4]


def resc_check():
    global _lbl
    _lbl += 1
    return [
        salu(f"s_cmp_eq_u32 {sFLAG}, 0", uses=[sFLAG]),
        salu(f"s_cbranch_scc1 L_nores{_lbl}"),
        Ins(f"s_call_b64 {sRET}, L_resc", "salu", cost=2),
        label(f"L_nores{_lbl}"),
    ]


def softmax1(j):
    p = j % 2
    out = sm_max(p) + sm_check(j == 0)
    for gi in range(NG1):
        out += sm_exp(p, gi // 4, gi % 4)
    return out


def softmax2(j):
    p = j % 2
    out = []
    for gi in range(NG1, 8):
        out += sm_exp(p, gi // 4, gi % 4)
    return out


def conv_o(ksg):
    qb, s = divmod(ksg, 16)
    dt, hf = divmod(s, 2)
    acc = Oacc(dt, qb)
    out = []
    for ee in range(8):
        out.append(valu("v_accvgpr_read_b32", vTMP[ee], acc[hf * 8 + ee]))
    for ee in range(8):
        out.append(valu("v_mul_f32", vTMP[ee], vTMP[ee], vL[qb]))
    for jj in range(4):
        out.append(valu("v_cvt_pk_bf16_f32", Of(ksg)[jj], vTMP[2 * jj], vTMP[2 * jj + 1]))
    return out


def store_pass(ps):
    out = []
    for tt in range(2):
        acc = Wacc(ps % 2, tt)
        for sp in range(2):
            g = []
            for jj in range(4):
                g.append(valu("v_cvt_pk_bf16_f32", acc[8 * sp + jj], acc[8 * sp + 2 * jj], acc[8 * sp + 2 * jj + 1]))
            g.append(salu(f"s_add_u32 {sT0}, {sOFFWS}, {ps * 4096}", defs=[sT0]))
            g.append(bstore(acc[8 * sp: 8 * sp + 4], vL16, SRD_WS, sT0, off=(2 * tt + sp) * 1024, flags=STF))
            out.append(g)
    return out


def gen_k1():
    st = []
    e = st.append
    ext = st.extend
    ext(stamp(True))
    ext(stamp())
    e(salu("s_cmp_ge_u32 s2, 256"))
    e(salu("s_cbranch_scc1 L_end"))
    if MAP == 0:
        e(salu(f"s_and_b32 {sG}, s2, 7"))
        e(salu(f"s_lshr_b32 s3, s2, 6"))
        e(salu(f"s_xor_b32 {sG}, {sG}, s3"))
        e(salu(f"s_lshr_b32 {sB}, s2, 3"))
        e(salu(f"s_and_b32 {sB}, {sB}, 15"))
        e(salu(f"s_lshr_b32 {sBLK}, s2, 7"))
    else:
        e(salu(f"s_bfe_u32 {sBLK}, s2, 0x10002"))
        e(salu(f"s_and_b32 {sG}, s2, 3"))
        e(salu(f"s_lshl_b32 {sG}, {sG}, 1"))
        e(salu(f"s_bfe_u32 s3, s2, 0x10003"))
        e(salu(f"s_or_b32 {sG}, {sG}, s3"))
        e(salu(f"s_lshr_b32 {sB}, s2, 4"))
    e(salu(f"s_load_dwordx2 s[14:15], s[0:1], 96"))
    e(salu(f"s_mul_i32 s3, {sBLK}, 40"))
    e(salu("s_add_u32 s0, s0, s3"))
    e(salu("s_addc_u32 s1, s1, 0"))
    e(salu("s_load_dwordx8 s[4:11], s[0:1], 0"))
    e(salu("s_load_dwordx2 s[12:13], s[0:1], 32"))
    lane, tA, tB, tC, tD, tE = (vTMP[i] for i in range(6))
    e(valu("v_and_b32", lane, 63, V(0)))
    e(valu("v_lshrrev_b32", tA, 6, V(0)))
    e(Ins(f"v_readfirstlane_b32 {sW}, {tA}", "valu", defs=[sW], uses=[tA]))
    e(valu("v_lshlrev_b32", vL16, 4, lane))
    e(valu("v_lshrrev_b32", tA, 3, lane))
    e(valu("v_mul_u32_u24", tA, 896, tA))
    e(valu("v_and_b32", tB, 7, lane))
    e(valu("v_lshrrev_b32", tC, 4, lane))
    e(valu("v_xor_b32", tB, tB, tC))
    e(valu("v_lshl_add_u32", vXO[0], tB, 4, tA))
    e(valu("v_xor_b32", vXO[1], 64, vXO[0]))
    e(salu(f"s_mul_i32 {sM0V}, {sW}, {4 * VSTR}", uses=[sW]))
    e(salu(f"s_lshl_b32 {sOFFWQ}, {sW}, 15"))
    e(salu(f"s_lshl_b32 {sM0X}, {sW}, 12"))
    e(salu(f"s_add_u32 {sM0X}, {sM0X}, {XBASE}"))
    e(salu(f"s_mul_i32 {sOFFX}, {sW}, {32 * 896}"))
    e(raw("s_waitcnt lgkmcnt(0)", "wait"))

    def srd(d, ptr_lo, off_expr_reg, size):
        e(salu(f"s_add_u32 s{d.b}, s{ptr_lo}, {off_expr_reg}"))
        e(salu(f"s_addc_u32 s{d.b + 1}, s{ptr_lo + 1}, 0"))
        e(salu(f"s_mov_b32 s{d.b + 2}, {size}"))
        e(salu(f"s_mov_b32 s{d.b + 3}, 0x00020000"))

    e(salu(f"s_lshl_b32 s3, {sG}, 10"))
    srd(SRD_WQ, 10, "s3", 447 * 8192 + 1024)
    e(salu(f"s_mul_i32 s3, {sB}, 114688"))
    srd(SRD_X, 4, "s3", 114688)
    ext(dma_wq(0))
    ext(dma_x(0))
    ext(dma_wq(1))
    ext(dma_x(1))
    ext(dma_wq(2))
    e(salu(f"s_lshl_b32 s3, {sB}, 3"))
    e(salu(f"s_add_u32 s3, s3, {sG}"))
    e(salu(f"s_lshl_b32 s3, s3, 18"))
    srd(SRD_K, 6, "s3", 262144)
    srd(SRD_V, 8, "s3", 262144)
    e(salu(f"s_mul_i32 s3, {sG}, 458752"))
    srd(SRD_WO, 12, "s3", 458752)
    e(salu(f"s_lshl_b32 s3, {sBLK}, 4"))
    e(salu(f"s_add_u32 s3, s3, {sB}"))
    e(salu(f"s_lshl_b32 s3, s3, 3"))
    e(salu(f"s_add_u32 s3, s3, {sG}"))
    e(salu(f"s_mul_i32 s3, s3, {PART}"))
    srd(SRD_WS, 14, "s3", PART)
    e(salu(f"s_mov_b32 {sC}, {f32bits(CSCALE):#x}"))
    e(salu(f"s_mov_b32 {sTRAW}, {f32bits(TRAW):#x}"))
    e(salu(f"s_mov_b32 {sFLAG}, 0"))
    e(salu(f"s_mul_i32 {sM0K}, {sW}, {4 * KSTR}"))
    e(salu(f"s_lshl_b32 {sOFFKV}, {sW}, 11"))
    e(salu(f"s_lshl_b32 {sM0WO}, {sW}, 13"))
    e(salu(f"s_mul_i32 {sOFFWO}, {sW}, {64 * 896}"))
    e(salu(f"s_mul_i32 {sOFFWS}, {sW}, {14 * 2048}"))
    e(valu("v_lshrrev_b32", tA, 5, lane))
    e(valu("v_and_b32", tB, 31, lane))
    e(valu("v_lshlrev_b32", tC, 13, tA))
    e(valu("v_lshl_add_u32", vOFFKV, tB, 4, tC))
    e(valu("v_bfe_u32", tC, tB, 1, 3))
    e(valu("v_xor_b32", tC, tC, tA))
    e(valu("v_lshlrev_b32", tC, 4, tC))
    e(valu("v_lshl_add_u32", tC, tB, 7, tC))
    e(valu("v_add_u32", vAX[0], sM0X, tC))
    for sp in range(1, 4):
        e(valu("v_xor_b32", vAX[sp], sp << 5, vAX[0]))
    e(valu("v_and_b32", tC, 3, tB))
    e(valu("v_and_b32", tD, 4, tB))
    e(valu("v_lshl_add_u32", tC, tD, 1, tC))
    e(valu("v_and_b32", tD, 8, tB))
    e(valu("v_lshrrev_b32", tD, 1, tD))
    e(valu("v_add_u32", tC, tC, tD))
    e(valu("v_mul_u32_u24", vAK, KSTR, tC))
    e(valu("v_lshrrev_b32", tD, 4, tB))
    e(valu("v_lshl_add_u32", vAK, tD, 9, vAK))
    e(valu("v_lshl_add_u32", vAK, tA, 4, vAK))
    e(valu("v_bfe_u32", tE, lane, 2, 2))
    e(valu("v_lshl_add_u32", tC, tA, 3, tE))
    e(valu("v_and_b32", tD, 1, lane))
    e(valu("v_lshlrev_b32", tD, 4, tD))
    e(valu("v_and_b32", tB, 2, lane))
    e(valu("v_lshl_add_u32", tD, tB, 2, tD))
    e(valu("v_bfe_u32", tB, lane, 4, 1))
    e(valu("v_lshl_add_u32", tD, tB, 5, tD))
    e(valu("v_mul_u32_u24", vAV, VSTR, tC))
    e(valu("v_add_u32", vAV, vAV, tD))
    e(valu("v_add_u32", vAWQ, P1BASE, vAV))
    e(valu("v_add_u32", vAV, VBASE, vAV))
    e(valu("v_lshl_add_u32", tC, tC, 7, tD))
    e(valu("v_lshrrev_b32", tE, 1, tE))
    e(valu("v_lshlrev_b32", tE, 6, tE))
    e(valu("v_add_u32", vAWO[0][0], tC, tE))
    e(valu("v_xor_b32", tE, 64, tE))
    e(valu("v_add_u32", vAWO[0][1], tC, tE))
    e(valu("v_add_u32", vAWO[1][0], 2 * WOSLOT, vAWO[0][0]))
    e(valu("v_add_u32", vAWO[1][1], 2 * WOSLOT, vAWO[0][1]))
    e(valu("v_lshrrev_b32", tC, 3, lane))
    e(valu("v_mul_u32_u24", tC, 896, tC))
    e(valu("v_and_b32", tD, 7, lane))
    e(valu("v_lshlrev_b32", tB, 2, tB))
    e(valu("v_xor_b32", tD, tD, tB))
    e(valu("v_lshl_add_u32", vOFFWO, tD, 4, tC))
    if WARM:
        e(valu("v_lshrrev_b32", tA, 3, lane))
        e(valu("v_and_b32", tB, 7, lane))
        e(valu("v_lshlrev_b32", tA, 13, tA))
        e(valu("v_lshl_add_u32", vPFWQ, tB, 7, tA))
        if MAP == 0:
            e(salu(f"s_and_b32 s3, {sB}, 7"))
            e(salu(f"s_mul_i32 s3, s3, {56 * 8192}"))
            e(salu(f"s_lshl_b32 {sT2}, {sW}, 16"))
            e(salu(f"s_add_u32 {sT2}, {sT2}, s3"))
            e(pfload(vDUMMY, vPFWQ, SRD_WQ, sT2, tag=("pfw", 0), n=1))
            e(salu(f"s_add_u32 {sT2}, {sT2}, {4 << 16}"))
            e(pfload(vDUMMY, vPFWQ, SRD_WQ, sT2, tag=("pfw", 1), n=1))
        else:
            e(salu(f"s_mul_i32 s3, {sB}, {28 * 8192}"))
            e(salu(f"s_lshl_b32 {sT2}, {sW}, 16"))
            e(salu(f"s_add_u32 {sT2}, {sT2}, s3"))
            e(pfload(vDUMMY, vPFWQ, SRD_WQ, sT2, tag=("pfw", 0), n=1))
    e(WaitVM(("x", 0)))
    for s in range(4):
        ext(rd_x(s))
    e(barrier())

    LA = 6
    for f in range(LA):
        ext(rd_wq(f))
    kv_at = dict(zip(KVAT, [dma_v(0), dma_k(0), dma_k(1), dma_k(2), dma_k(3)]))
    for s in range(28):
        if STAMP and s in (0, 14):
            ext(stamp())
        slots = []
        for nt in range(16):
            f = 16 * s + nt
            sl = [mfma(Qacc(nt), Wf(f), Xf(s), Qacc(nt) if s > 0 else 0)]
            if f + LA < 448:
                sl += rd_wq(f + LA)
            if nt == 3 and s + 1 < 28:
                if s == 23:
                    sl += [WaitAll(vm=False, lgkm=True)]
                sl += [WaitVM(("wq", s + 1)), barrier()]
            slots.append(sl)
        fill = []
        if s + NP1 - 1 < 28:
            fill += dma_wq(s + NP1 - 1)
        if s in kv_at:
            fill += kv_at[s]
        if s % 4 == 1 and (s + 3) // 4 < 7:
            pc = (s + 3) // 4
            fill += [WaitVM(("x", pc))]
            for s2 in range(4):
                fill += rd_x(4 * pc + s2)
        if s % 4 == 0 and s // 4 + 2 < 7:
            fill += [WaitAll(vm=False, lgkm=True)] if s == 0 else []
            fill += dma_x(s // 4 + 2)
        ext(interleave(slots, fill, start=4, end=14))

    ext(stamp())
    e(WaitVM(("k", 0)))
    e(barrier())
    ext(dma_v(1))
    for s3 in range(3):
        ext(rd_k(0, s3))
    for qb in range(2):
        for s in range(16):
            acc = Qacc(qb * 8 + s // 2)
            for ee in range(8):
                e(valu("v_accvgpr_read_b32", vX[(s % 2) * 8 + ee], acc[(s % 2) * 8 + ee]))
            for jj in range(4):
                e(valu("v_cvt_pk_bf16_f32", Qf(qb, s)[jj], vX[(s % 2) * 8 + 2 * jj], vX[(s % 2) * 8 + 2 * jj + 1]))

    ext(stamp())
    for j in range(17):
        p = j % 2
        if j in (4, 12):
            ext(stamp())
        fillA = softmax2(j - 1) if j >= 1 else []
        if j < 16:
            slots = []
            for s in range(16):
                for qb in range(2):
                    sl = [mfma(Sb(p, qb), Kf(s), Qf(qb, s), Sb(p, qb) if s > 0 else 0)]
                    if qb == 0:
                        if s + 3 < 16:
                            sl += rd_k(j, s + 3)
                        elif j >= 1:
                            sl += rd_v(j - 1, s + 3 - 16)
                    slots.append(sl)
            ext(interleave(slots, fillA, start=0, end=30))
        else:
            for f in range(3):
                ext(rd_v(j - 1, f))
            ext(fillA)
        if j >= 2:
            ext(resc_check())
        waits = []
        if j + 1 < 16:
            waits.append(("k", j + 1))
        if j < 16:
            waits.append(("v", j))
        grp = []
        if j + 4 < 16:
            grp += dma_k(j + 4)
        if j + 2 < 16:
            grp += dma_v(j + 2)
        if j == 13:
            grp += dma_wo(0)
        if j == 15:
            grp += dma_wo(1) + dma_wo(2)
        sync = [WaitVM(waits), barrier()] if j < 16 else []
        fillB = softmax1(j) if j < 16 else []
        if j == 16:
            for qb in range(2):
                fillB.append(valu("v_mov_b32", vU[qb], vL[qb]))
            for qb in range(2):
                fillB.append(Ins(f"v_permlane32_swap_b32 {vL[qb]}, {vU[qb]}", "perm",
                                 defs=[vL[qb], vU[qb]], uses=[vL[qb], vU[qb]]))
            for qb in range(2):
                fillB.append(valu("v_add_f32", vL[qb], vL[qb], vU[qb]))
            for qb in range(2):
                fillB.append(valu("v_rcp_f32", vL[qb], vL[qb]))
        if j >= 1:
            slots = []
            for f in range(16):
                dt, ks = divmod(f, 2)
                for qb in range(2):
                    sl = [mfma(Oacc(dt, qb), Vf(f), Pf(1 - p, qb, ks),
                               Oacc(dt, qb) if (j > 1 or ks > 0) else 0)]
                    if qb == 0:
                        if f + 3 < 16:
                            sl += rd_v(j - 1, f + 3)
                        elif j + 1 < 16:
                            sl += rd_k(j + 1, f + 3 - 16)
                    if f == 0 and qb == 1:
                        sl += sync
                    slots.append(sl)
            ext(interleave(slots, grp + fillB, start=2, end=32))
        else:
            ext(sync)
            ext(grp)
            for s3 in range(3):
                ext(rd_k(1, s3))
            ext(fillB)

    ext(stamp())
    e(WaitVM(("wo", 0)))
    e(barrier())
    ext(dma_wo(3))
    for f in range(LA):
        ext(rd_wo(f))
    CLA = 2
    for ksg in range(CLA):
        ext(conv_o(ksg))

    ext(stamp())
    for sg in range(14):
        ps, hs = divmod(sg, 2)
        if sg in (2, 8):
            ext(stamp())
        slots = []
        for r in range(32):
            f = 32 * sg + r
            ks, tt = divmod(r, 2)
            ksg = 16 * hs + ks
            acc = Wacc(ps % 2, tt)
            sl = [mfma(acc, Wf(f), Of(ksg), acc if ksg > 0 else 0)]
            if f + LA < 448:
                sl += rd_wo(f + LA)
            if ps == 0 and ksg + CLA < 32:
                cv = conv_o(ksg + CLA)
                sl += cv[:10] if tt == 0 else cv[10:]
            if r == 3 and sg + 1 < 14:
                sl += [WaitVM(("wo", sg + 1)), barrier()]
            slots.append(sl)
        fill = []
        if sg >= 1 and sg + 3 < 14:
            fill += dma_wo(sg + 3)
        if ps >= 1:
            sp_ = store_pass(ps - 1)
            for k in range(2):
                if not env("NOST", 0):
                    slots[10 + 12 * k] += sp_[2 * hs + k]
        ext(interleave(slots, fill, start=4, end=26))

    ext(stamp())
    for g_ in store_pass(6):
        ext(g_)
    if STAMP:
        e(WaitAll())
    ext(stamp())
    ext(stamp(True))
    ext(stamp_store())
    e(label("L_end"))
    e(raw("s_endpgm"))

    lines = finalize(st)

    sub = []
    s_ = sub.append
    s_(label("L_slow"))
    s_(nop(2))
    for qb in range(2):
        s_(valu("v_max_f32", vMR[qb], vMR[qb], vT[qb]))
        s_(valu("v_mul_f32", vU[qb], sC, vMR[qb]))
        s_(valu("v_sub_f32", vAL[qb], vM[qb], vU[qb]))
        s_(valu("v_exp_f32", vAL[qb], vAL[qb]))
        s_(valu("v_mov_b32", vM[qb], vU[qb]))
        s_(valu("v_add_f32", vTHR[qb], sTRAW, vMR[qb]))
        s_(valu("v_mul_f32", vL[qb], vL[qb], vAL[qb]))
    s_(salu(f"s_mov_b32 {sFLAG}, 1"))
    s_(nop(2))
    s_(raw(f"s_setpc_b64 {sRET}"))
    s_(label("L_resc"))
    s_(nop(16))
    tt = [vU[0], vU[1], vT[0], vT[1]]
    for dt in range(8):
        for qb in range(2):
            acc = Oacc(dt, qb)
            for r0 in range(0, 16, 4):
                for k in range(4):
                    s_(valu("v_accvgpr_read_b32", tt[k], acc[r0 + k]))
                for k in range(4):
                    s_(valu("v_mul_f32", tt[k], tt[k], vAL[qb]))
                for k in range(4):
                    s_(valu("v_accvgpr_write_b32", acc[r0 + k], tt[k]))
    s_(salu(f"s_mov_b32 {sFLAG}, 0"))
    s_(nop(4))
    s_(raw(f"s_setpc_b64 {sRET}"))
    lines += finalize(sub)
    return lines


def gen_k2():
    st = []
    e = st.append
    e(salu("s_cmp_ge_u32 s2, 896"))
    e(salu("s_cbranch_scc1 L2_end"))
    e(salu("s_load_dwordx2 s[4:5], s[0:1], 80"))
    e(salu("s_load_dwordx2 s[6:7], s[0:1], 96"))
    e(salu("s_and_b32 s8, s2, 1"))
    e(salu("s_lshr_b32 s9, s2, 1"))
    e(salu("s_mul_i32 s10, s9, 4682"))
    e(salu("s_lshr_b32 s10, s10, 16"))
    e(salu("s_mul_i32 s11, s10, 14"))
    e(salu("s_sub_u32 s11, s9, s11"))
    lane, w, t1, t2 = V(1), V(2), V(3), V(4)
    e(valu("v_and_b32", lane, 63, V(0)))
    e(valu("v_lshrrev_b32", w, 6, V(0)))
    e(valu("v_mul_u32_u24", t1, 14 * 2048, w))
    e(valu("v_lshl_add_u32", t1, lane, 4, t1))
    e(salu("s_lshl_b32 s12, s11, 11"))
    e(salu("s_lshl_b32 s13, s8, 10"))
    e(salu("s_add_u32 s12, s12, s13"))
    e(valu("v_add_u32", t1, S(12), t1))
    e(salu("s_and_b32 s13, s10, 15"))
    e(salu("s_lshr_b32 s14, s10, 4"))
    e(salu("s_mul_i32 s13, s13, 229376"))
    e(salu("s_mul_i32 s14, s14, 896"))
    e(salu("s_add_u32 s13, s13, s14"))
    e(salu("s_lshl_b32 s14, s11, 6"))
    e(salu("s_add_u32 s13, s13, s14"))
    e(salu("s_lshl_b32 s14, s8, 5"))
    e(salu("s_add_u32 s13, s13, s14"))
    e(valu("v_and_b32", t2, 31, lane))
    e(valu("v_lshl_add_u32", t2, w, 5, t2))
    e(valu("v_mul_u32_u24", t2, 1792, t2))
    e(valu("v_lshrrev_b32", lane, 5, lane))
    e(valu("v_lshl_add_u32", t2, lane, 4, t2))
    e(valu("v_add_u32", t2, S(13), t2))
    e(raw("s_waitcnt lgkmcnt(0)", "wait"))
    e(salu("s_mov_b32 s16, s4"))
    e(salu("s_mov_b32 s17, s5"))
    e(salu(f"s_mov_b32 s18, {16 * 128 * 896 * 2}"))
    e(salu("s_mov_b32 s19, 0x00020000"))
    e(salu(f"s_mul_i32 s14, s10, {8 * PART}"))
    e(salu("s_add_u32 s20, s6, s14"))
    e(salu("s_addc_u32 s21, s7, 0"))
    e(salu(f"s_mov_b32 s22, {8 * PART}"))
    e(salu("s_mov_b32 s23, 0x00020000"))
    e(salu("s_mov_b32 s32, 0xffff0000"))
    so, sw = S(16, 4), S(20, 4)
    for g in range(8):
        e(salu(f"s_mov_b32 s{24 + g}, {g * PART}"))
    for g in range(8):
        e(bload(V(8 + g * 4, 4), t1, sw, S(24 + g), flags=K2F))
    acc = V(40, 8)
    tmp = V(48, 8)
    for g in range(8):
        for jj in range(4):
            src = V(8 + g * 4 + jj)
            dlo, dhi = (acc[2 * jj], acc[2 * jj + 1]) if g == 0 else (tmp[2 * jj], tmp[2 * jj + 1])
            e(valu("v_lshlrev_b32", dlo, 16, src))
            e(valu("v_and_b32", dhi, S(32), src))
        if g:
            for k in range(8):
                e(valu("v_add_f32", acc[k], acc[k], tmp[k]))
    for jj in range(4):
        e(valu("v_cvt_pk_bf16_f32", V(56 + jj), acc[2 * jj], acc[2 * jj + 1]))
    e(bstore(V(56, 4), t2, so, 0))
    if STAMP == 3:
        e(salu("s_cmp_lg_u32 s2, 0"))
        e(salu("s_cbranch_scc1 L2_end"))
        e(salu("s_load_dwordx2 s[16:17], s[0:1], 88"))
        e(salu(f"s_add_u32 s20, s6, {64 << 20}"))
        e(salu("s_addc_u32 s21, s7, 0"))
        e(salu("s_mov_b32 s22, 64"))
        e(salu("s_mov_b32 s18, 64"))
        e(valu("v_lshlrev_b32", V(3), 2, V(0)))
        e(raw("s_waitcnt lgkmcnt(0)", "wait"))
        e(bload(V(5), V(3), sw, 0, n=1))
        e(bstore(V(5), V(3), so, 0, n=1))
    e(label("L2_end"))
    e(raw("s_endpgm"))
    return finalize(st)


HEADER = open(os.path.join(os.path.dirname(os.path.abspath(__file__)), "header.txt")).read()


def kd(name, vgpr, accum, sgpr):
    return f""".amdhsa_kernel {name}
  .amdhsa_next_free_vgpr {vgpr}
  .amdhsa_next_free_sgpr {sgpr}
  .amdhsa_accum_offset {accum}
  .amdhsa_group_segment_fixed_size 0
  .amdhsa_kernarg_size 104
  .amdhsa_user_sgpr_count 2
  .amdhsa_user_sgpr_kernarg_segment_ptr 1
  .amdhsa_system_sgpr_workgroup_id_x 1
.end_amdhsa_kernel
"""


def main():
    out = HEADER
    out += f"; @launch kernel={K1} grid=(256,1,1) block=(256,1,1) lds={LDS_BYTES}\n"
    out += f"; @launch kernel={K2} grid=(896,1,1) block=(256,1,1) lds=0\n"
    out += '.amdgcn_target "amdgcn-amd-amdhsa--gfx950"\n.text\n'
    for name, gen in ((K1, gen_k1), (K2, gen_k2)):
        out += f".globl {name}\n.p2align 8\n.type {name},@function\n{name}:\n"
        out += "\n".join(gen()) + "\n"
    out += '.section .rodata,"a"\n.p2align 6\n'
    out += kd(K1, 512, 256, 102)
    out += ".p2align 6\n"
    out += kd(K2, 64, 64, 40)
    dst = sys.argv[1] if len(sys.argv) > 1 else f"cdna_kernels/{NAME}.s"
    open(dst, "w").write(out)
    print("wrote", dst, len(out), "bytes", out.count("\n"), "lines")


if __name__ == "__main__":
    main()
```

```python
class R:
    __slots__ = ("k", "b", "n")

    def __init__(self, k, b, n=1):
        self.k, self.b, self.n = k, b, n

    def __str__(self):
        if self.n == 1:
            return f"{self.k}{self.b}"
        return f"{self.k}[{self.b}:{self.b + self.n - 1}]"

    def regs(self):
        return {(self.k, self.b + i) for i in range(self.n)}

    def __getitem__(self, i):
        if isinstance(i, slice):
            st = i.start or 0
            return R(self.k, self.b + st, i.stop - st)
        assert 0 <= i < self.n
        return R(self.k, self.b + i, 1)


def V(b, n=1):
    return R("v", b, n)


def A(b, n=1):
    return R("a", b, n)


def S(b, n=1):
    return R("s", b, n)


def _regs(xs):
    out = set()
    for x in xs:
        if isinstance(x, R):
            out |= x.regs()
    return out


class Ins:
    __slots__ = ("text", "kind", "defs", "uses", "cuse", "tag", "cost", "abuse")

    def __init__(self, text, kind, defs=(), uses=(), cuse=(), tag=None, cost=4, abuse=()):
        self.text = text
        self.kind = kind
        self.defs = _regs(defs)
        self.uses = _regs(uses)
        self.cuse = _regs(cuse)
        self.abuse = _regs(abuse)
        self.tag = tag
        self.cost = cost


TRANS = {"v_exp_f32", "v_rcp_f32", "v_log_f32", "v_rsq_f32", "v_sqrt_f32"}


def valu(op, dst, *srcs, extra_defs=(), extra_uses=()):
    ops = ", ".join(str(x) for x in (dst,) + srcs)
    uses = []
    txt = [str(dst)]
    for s in srcs:
        if isinstance(s, tuple):
            txt.append(s[0] + str(s[1]))
            uses.append(s[1])
        else:
            txt.append(str(s))
            uses.append(s)
    kind = "trans" if op in TRANS else "valu"
    return Ins(f"{op} " + ", ".join(txt), kind, defs=[dst] + list(extra_defs),
               uses=uses + list(extra_uses), cost=8 if kind == "trans" else 4)


import os
_MF16 = int(os.environ.get("MF16", "0"))
_mfc = [0]


def mfma(D, Aop, Bop, C):
    cu = [C] if isinstance(C, R) else []
    if _MF16:
        _mfc[0] += 1
        o = 4 * (_mfc[0] % 2)
        t = []
        for b in (o, o + 8):
            c = C[b:b + 4] if isinstance(C, R) else C
            t.append(f"v_mfma_f32_16x16x32_bf16 {D[b:b + 4]}, {Aop}, {Bop}, {c}")
        return Ins("\n  ".join(t), "mfma", defs=[D], uses=[Aop, Bop] + cu, cuse=cu, abuse=[Aop, Bop], cost=16)
    return Ins(f"v_mfma_f32_32x32x16_bf16 {D}, {Aop}, {Bop}, {C}", "mfma", defs=[D],
               uses=[Aop, Bop] + cu, cuse=cu, abuse=[Aop, Bop], cost=8)


def ds_read_b128(dst, addr, off):
    assert 0 <= off < 65536, off
    return Ins(f"ds_read_b128 {dst}, {addr} offset:{off}", "ds", defs=[dst], uses=[addr])


def ds_read_tr(dst, addr, off):
    assert 0 <= off < 65536, off
    return Ins(f"ds_read_b64_tr_b16 {dst}, {addr} offset:{off}", "ds", defs=[dst], uses=[addr])


def ds_write_b128(addr, src, off):
    assert 0 <= off < 65536, off
    return Ins(f"ds_write_b128 {addr}, {src} offset:{off}", "ds", defs=[], uses=[addr, src], cost=8)


def salu(text, defs=(), uses=()):
    return Ins(text, "salu", defs=defs, uses=uses, cost=2)


def setm0(text):
    i = Ins(text, "salu", cost=2)
    i.defs = {("m0", 0)}
    return i


def dma(voff, srd, soff, off=0, tag=None, flags=""):
    assert 0 <= off < 4096
    t = f"buffer_load_dwordx4 {voff}, {srd}, {soff} offen"
    if off:
        t += f" offset:{off}"
    if flags:
        t += " " + flags
    t += " lds"
    i = Ins(t, "dma", uses=[voff, srd, soff], tag=tag, cost=16)
    i.uses |= {("m0", 0)}
    return i


def bload(dst, voff, srd, soff, off=0, tag=None, n=4, flags=""):
    assert 0 <= off < 4096
    op = {4: "buffer_load_dwordx4", 2: "buffer_load_dwordx2", 1: "buffer_load_dword"}[n]
    t = f"{op} {dst}, {voff}, {srd}, {soff} offen"
    if off:
        t += f" offset:{off}"
    if flags:
        t += " " + flags
    return Ins(t, "vmem", defs=[dst], uses=[voff, srd, soff], tag=tag, cost=8)


def bstore(src, voff, srd, soff, off=0, n=4, flags=""):
    assert 0 <= off < 4096
    op = {4: "buffer_store_dwordx4", 2: "buffer_store_dwordx2", 1: "buffer_store_dword"}[n]
    t = f"{op} {src}, {voff}, {srd}, {soff} offen"
    if off:
        t += f" offset:{off}"
    if flags:
        t += " " + flags
    return Ins(t, "store", uses=[src, voff, srd, soff], cost=8)


def raw(text, kind="other", **kw):
    return Ins(text, kind, **kw)


def label(name):
    return Ins(name + ":", "label", cost=0)


class Group:
    def __init__(self, items):
        self.items = items
        self.cost = sum(x.cost for x in items)
        self.kind = "group"


def flatten(stream):
    out = []
    for it in stream:
        if isinstance(it, Group):
            out.extend(flatten(it.items))
        else:
            out.append(it)
    return out


class WaitVM:
    def __init__(self, tag):
        self.tag = tag
        self.cost = 4
        self.kind = "pseudo"


class WaitAll:
    def __init__(self, vm=True, lgkm=True):
        self.vm, self.lgkm = vm, lgkm
        self.cost = 4
        self.kind = "pseudo"


def finalize(stream):
    stream = flatten(stream)
    if _MF16:
        ns = []
        i = 0
        while i < len(stream):
            it = stream[i]
            if isinstance(it, Ins) and it.kind == "mfma":
                j = i + 1
                while (j < len(stream) and isinstance(stream[j], Ins)
                       and stream[j].kind in ("ds", "valu", "trans", "dma", "perm")
                       and not (stream[j].defs & it.uses) and not ((stream[j].uses | stream[j].defs) & it.defs)):
                    j += 1
                mid = i + 1 + (j - i) // 2
                a, b = it.text.split("\n  ")
                ia = Ins(a, "mfma"); ib = Ins(b, "mfma")
                for x in (ia, ib):
                    x.defs, x.uses, x.cuse, x.abuse = it.defs, it.uses, it.cuse, it.abuse
                ns.append(ia)
                ns.extend(stream[i + 1: mid])
                ns.append(ib)
                i = mid
            else:
                ns.append(it)
                i += 1
        stream = ns
    out = []
    dsq = []
    vmq = []

    def emit_wait(vm=None, lg=None):
        parts = []
        if vm is not None:
            parts.append(f"vmcnt({min(vm, 63)})")
        if lg is not None:
            parts.append(f"lgkmcnt({min(lg, 15)})")
        out.append(Ins("s_waitcnt " + " ".join(parts), "wait"))

    for it in stream:
        if isinstance(it, WaitVM):
            idx = None
            for i, (tag, _) in enumerate(vmq):
                if tag == it.tag or (isinstance(it.tag, (tuple, list, set)) and tag in it.tag):
                    idx = i
            if idx is not None:
                cnt = len(vmq) - 1 - idx
                emit_wait(vm=cnt)
                del vmq[: idx + 1]
            continue
        if isinstance(it, WaitAll):
            emit_wait(vm=0 if it.vm else None, lg=0 if it.lgkm else None)
            if it.vm:
                vmq.clear()
            if it.lgkm:
                dsq.clear()
            continue
        touched = it.uses | it.defs
        idx = None
        for i, d in enumerate(dsq):
            if d & touched:
                idx = i
        lg = None
        if idx is not None:
            lg = len(dsq) - 1 - idx
            del dsq[: idx + 1]
        idx = None
        for i, (_, d) in enumerate(vmq):
            if d & touched:
                idx = i
        vm = None
        if idx is not None:
            vm = len(vmq) - 1 - idx
            del vmq[: idx + 1]
        if lg is not None or vm is not None:
            emit_wait(vm=vm, lg=lg)
        out.append(it)
        if it.kind == "ds":
            dsq.append(set(it.defs))
        elif it.kind == "vmem":
            vmq.append((it.tag, set(it.defs)))
        elif it.kind in ("dma", "store"):
            vmq.append((it.tag, set()))

    res = []
    hist = []
    pos = 0

    def need(it):
        req = 0
        isvalu = it.kind in ("valu", "trans", "perm")
        for prev, p in reversed(hist):
            dist = pos - p - 1
            if dist >= 20:
                break
            r = 0
            pk = prev.kind
            if pk in ("valu", "trans", "perm"):
                if it.kind == "mfma" and (prev.defs & it.uses):
                    r = max(r, 2)
                if pk == "trans" and isvalu and it.kind != "trans" and (prev.defs & it.uses):
                    r = max(r, 1)
                if pk == "trans" and it.kind == "trans" and (prev.defs & it.uses):
                    r = max(r, 1)
                if it.kind == "perm" and (prev.defs & (it.uses | it.defs)):
                    r = max(r, 2)
                sdefs = {x for x in prev.defs if x[0] in ("s", "vcc")}
                if sdefs:
                    if isvalu and (sdefs & it.uses):
                        r = max(r, 2)
                    if it.kind in ("vmem", "dma", "store") and (sdefs & it.uses):
                        r = max(r, 5)
                    if it.kind == "salu" and (sdefs & it.uses):
                        r = max(r, 2)
                if it.text.startswith("v_readfirstlane") and (prev.defs & it.uses):
                    r = max(r, 1)
            if pk == "mfma":
                if it.kind == "mfma":
                    if prev.defs & it.abuse:
                        r = max(r, 12)
                    if (prev.defs & it.cuse) and prev.defs != it.cuse:
                        r = max(r, 10)
                elif isvalu or it.kind in ("vmem", "dma", "store", "ds"):
                    if prev.defs & (it.uses | it.defs):
                        r = max(r, 12)
                    if isvalu and (prev.cuse & it.defs):
                        r = max(r, 7)
            if pk == "salu" and ("m0", 0) in prev.defs and it.kind == "dma":
                r = max(r, 1)
            if pk == "store" and (prev.uses & it.defs):
                r = max(r, 2)
            req = max(req, r - dist)
        return req

    for it in out:
        if it.kind == "label":
            res.append(it.text)
            continue
        n = need(it)
        while n > 0:
            k = min(n, 16)
            res.append(f"  s_nop {k - 1}")
            pos += k
            n -= k
        res.append("  " + it.text)
        hist.append((it, pos))
        if it.kind == "nop":
            pos += it.cost
        else:
            pos += 1
        if len(hist) > 40:
            del hist[:10]
    return res


def nop(n):
    return Ins(f"s_nop {n - 1}", "nop", cost=n)


def interleave(slots, fillers, cap=24, start=0, end=None):
    n = len(slots)
    if end is None:
        end = n
    free = []
    for i, sl in enumerate(slots):
        f = sum(x.cost for x in sl if x.kind != "mfma")
        free.append(max(cap - f, 2) if start <= i < end else 0)
    tot_free = sum(free)
    tot_fill = sum(x.cost for x in fillers)
    out = []
    cum_free = 0
    cum_fill = 0
    k = 0
    for i, sl in enumerate(slots):
        out.extend(sl)
        cum_free += free[i]
        target = tot_fill * cum_free / tot_free if tot_free else 0
        while k < len(fillers) and (cum_fill + fillers[k].cost / 2 <= target or (i == end - 1)):
            if free[i] == 0:
                break
            out.append(fillers[k])
            cum_fill += fillers[k].cost
            k += 1
    assert k == len(fillers), (k, len(fillers))
    return out
```

```python
import math
import struct
import sys
import os

sys.path.insert(0, os.path.dirname(os.path.abspath(__file__)))
from asmir import *

NAME = "concat_heads__gqa_block_cached__gqa_block_cached__near_ridge"
K1 = NAME + "_kernel"
K2 = "reduce_out_kernel"


def f32bits(x):
    return struct.unpack("<I", struct.pack("<f", x))[0]


def env(k, d):
    return type(d)(os.environ.get(k, d))


CSCALE = math.log2(math.e) / 16.0
TLOG2 = 8.0
TRAW = TLOG2 / CSCALE
KVF = env("KVF", "nt")
WQF = env("WQF", "")
XF = env("XF", "")
WOF = env("WOF", "")
STF = env("STF", "")
K2F = env("K2F", "")
STAMP = env("STAMP", 0)
WARM = env("WARM", 1)
MAP = env("MAP", 1)
KVAT = [int(x) for x in env("KVAT", "2,4,6,8,10,12,14,23,25").split(",")]
NG1 = env("NG1", 3)

SRD_X, SRD_K, SRD_V, SRD_WQ, SRD_WO, SRD_WS = (S(16, 4), S(20, 4), S(24, 4), S(28, 4), S(32, 4), S(36, 4))
sW, sG, sB, sBLK, sC = S(40), S(41), S(42), S(43), S(44)
sM0V, sOFFWQ, sM0K, sM0X, sOFFKV = S(45), S(46), S(47), S(48), S(49)
sT0, sT1 = S(50), S(51)
sMASK0, sMASK1 = S(52, 2), S(54, 2)
sFLAG = S(56)
sOFFX = S(57)
sRET = S(58, 2)
sM0WO = S(60)
sOFFWS = S(61)
sTRAW = S(62)
sOFFWO = S(63)
sT2 = S(100)


def Qf(qb, s):
    return V((qb * 16 + s) * 4, 4)


def Xf(s):
    return V(s * 4, 4)


def Of(ks):
    return V(ks * 4, 4)


def Sb(p, qb):
    return V(128 + p * 32 + qb * 16, 16)


def Kf(i):
    return V(192 + (i % 4) * 4, 4)


def Vf(i):
    return V(208 + (i % 4) * 4, 4)


def Wf(i):
    return V(192 + (i % 8) * 4, 4)


def Wacc(buf, tt):
    return V(128 + buf * 32 + tt * 16, 16)


vAK, vAV, vOFFKV, vL16 = V(224), V(225), V(226), V(227)
vM = [V(228), V(229)]
vTHR = [V(230), V(231)]
vL = [V(232), V(233)]
vAL = [V(234), V(235)]
vT = [V(236), V(237)]
vU = [V(238), V(239)]
vTMP = V(240, 8)
vMR = [V(248), V(249)]
vAWQ = V(250)
vOFFWO = V(251)
vAWO = [[V(252), V(253)], [V(254), V(255)]]
vXO = [V(112), V(113)]
vAX = V(114, 4)
vDUMMY, vPFWQ = V(118), V(119)
vAK2 = vAWQ


def STG(t):
    return V(128 + 16 * t, 16)

KSTR, VSTR = 1040, 1088
KSLOT, VSLOT = 16 * KSTR, 16 * VSTR
VBASE = 4 * KSLOT
NK = 5
KS = [i * KSLOT for i in range(4)] + [VBASE + 4 * VSLOT]
VS = [i * VSLOT for i in range(4)]
P1BASE = VBASE + VSLOT
NP1 = 4
XBASE = 2 * KSLOT
assert XBASE + 32768 <= 4 * KSLOT
WOSLOT = 32768
LDS_BYTES = 163840
PART = 4 * 14 * 2048
assert P1BASE + NP1 * VSLOT <= LDS_BYTES


def Oacc(dt, qb):
    return A((dt * 2 + qb) * 16, 16)


def Qacc(nt):
    return A(nt * 16, 16)


def barrier():
    return raw("s_barrier", "other", cost=4)


_nst = 0


def stamp(real=False):
    global _nst
    if not STAMP:
        return []
    i = _nst
    _nst += 1
    assert i < 16
    op = "s_memrealtime" if (real or STAMP >= 2) else "s_memtime"
    return [raw(f"{op} s[{64 + 2 * i}:{65 + 2 * i}]", "salu", cost=2)]


def stamp_store():
    if not STAMP:
        return []
    if STAMP == 3:
        out = [raw("s_waitcnt lgkmcnt(0)", "wait"),
               salu(f"s_cmp_lg_u32 {sW}, 0"), salu("s_cbranch_scc1 L_end"),
               salu(f"s_cmp_lg_u32 s2, 77"), salu("s_cbranch_scc1 L_end"),
               salu(f"s_add_u32 s4, s14, {64 << 20}"), salu("s_addc_u32 s5, s15, 0"),
               salu("s_mov_b32 s6, 256"), salu("s_mov_b32 s7, 0x00020000"),
               valu("v_mov_b32", V(2), 0)]
        for i in range(_nst):
            out.append(salu(f"s_sub_u32 s3, s{64 + 2 * i}, s64"))
            out.append(valu("v_mov_b32", V(4 + i), S(3)))
            out.append(bstore(V(4 + i), V(2), S(4, 4), 0, off=i * 4, n=1))
        return out
    out = [raw("s_waitcnt lgkmcnt(0)", "wait"),
           salu(f"s_cmp_lg_u32 {sW}, 0"), salu("s_cbranch_scc1 L_end"),
           salu("s_lshl_b32 s3, s2, 7"), salu(f"s_add_u32 s3, s3, {64 << 20}"),
           salu("s_add_u32 s4, s14, s3"), salu("s_addc_u32 s5, s15, 0"),
           salu("s_mov_b32 s6, 128"), salu("s_mov_b32 s7, 0x00020000"),
           valu("v_mov_b32", V(2), 0)]
    for i in range(_nst):
        out.append(valu("v_mov_b32", V(4 + 2 * i), S(64 + 2 * i)))
        out.append(valu("v_mov_b32", V(5 + 2 * i), S(65 + 2 * i)))
        out.append(bstore(V(4 + 2 * i, 2), V(2), S(4, 4), 0, off=i * 8, n=2))
    return out


def dma_wq(s):
    out = []
    for i in range(4):
        out.append(setm0(f"s_add_u32 m0, {sM0V}, {P1BASE + (s % NP1) * VSLOT + i * VSTR}"))
        out.append(salu(f"s_add_u32 {sT0}, {sOFFWQ}, {(16 * s + i) * 8192}", defs=[sT0]))
        out.append(dma(vL16, SRD_WQ, sT0, tag=("wq", s), flags=WQF))
    return out


def dma_x(pc):
    out = []
    for i in range(4):
        out.append(setm0(f"s_add_u32 m0, {sM0X}, {(pc % 2) * 16384 + i * 1024}"))
        out.append(salu(f"s_add_u32 {sT1}, {sOFFX}, {pc * 128 + i * 8 * 896}", defs=[sT1]))
        out.append(dma(vXO[i % 2], SRD_X, sT1, tag=("x", pc), flags=XF))
    return out


def dma_k(j):
    out = [salu(f"s_add_u32 {sT1}, {sOFFKV}, {j * 16384}", defs=[sT1])]
    for i in range(4):
        out.append(setm0(f"s_add_u32 m0, {sM0K}, {KS[j % NK] + i * (KSTR - 512)}"))
        out.append(dma(vOFFKV, SRD_K, sT1, off=i * 512, tag=("k", j), flags=KVF))
    return out


def dma_v(j):
    out = [salu(f"s_add_u32 {sT1}, {sOFFKV}, {j * 16384}", defs=[sT1])]
    for i in range(4):
        out.append(setm0(f"s_add_u32 m0, {sM0V}, {VBASE + VS[j % 4] + i * (VSTR - 512)}"))
        out.append(dma(vOFFKV, SRD_V, sT1, off=i * 512, tag=("v", j), flags=KVF))
    return out


def dma_wo(sg):
    ps, hs = divmod(sg, 2)
    out = []
    for i in range(8):
        out.append(setm0(f"s_add_u32 m0, {sM0WO}, {((sg + 1) % 4) * WOSLOT + i * 1024}"))
        out.append(salu(f"s_add_u32 {sT1}, {sOFFWO}, {(256 * hs + 8 * i) * 896 + 128 * ps}", defs=[sT1]))
        out.append(dma(vOFFWO, SRD_WO, sT1, tag=("wo", sg), flags=WOF))
    return out


def pfload(*a, **kw):
    i = bload(*a, **kw)
    i.defs = set()
    return i


def rd_wq(f):
    s, nt = divmod(f, 16)
    d = Wf(f)
    off = (s % NP1) * VSLOT + nt * 64
    return [ds_read_tr(d[0:2], vAWQ, off), ds_read_tr(d[2:4], vAWQ, off + 4 * VSTR)]


def rd_x(s):
    pc, sp = divmod(s, 4)
    return [ds_read_b128(Xf(s), vAX[sp], (pc % 2) * 16384)]


def rd_k(j, s):
    if j % NK == 4:
        return [ds_read_b128(Kf(s), vAK2, s * 32)]
    return [ds_read_b128(Kf(s), vAK, KS[j % NK] + s * 32)]


def stage_ld(t, kind, j):
    out = [salu(f"s_add_u32 {sT1}, {sOFFKV}, {j * 16384}", defs=[sT1])]
    for i in range(4):
        out.append(bload(STG(t)[4 * i: 4 * i + 4], vOFFKV, SRD_K if kind == "k" else SRD_V, sT1,
                         off=i * 512, tag=("stg", t), flags=KVF))
    return out


def rd_v(j, f):
    dt, ks = divmod(f, 2)
    d = Vf(f)
    off = VS[j % 4] + ks * 512 + dt * 64
    return [ds_read_tr(d[0:2], vAV, off), ds_read_tr(d[2:4], vAV, off + 4 * VSTR)]


def rd_wo(f):
    sg, r = divmod(f, 32)
    ks, tt = divmod(r, 2)
    slot = (sg + 1) % 4
    base = vAWO[slot // 2][tt]
    off = (slot % 2) * WOSLOT + ks * 2048
    d = Wf(f)
    return [ds_read_tr(d[0:2], base, off), ds_read_tr(d[2:4], base, off + 512)]


def sm_max(p):
    out = []
    for qb in range(2):
        s_ = Sb(p, qb)
        t = vT[qb]
        out.append(valu("v_max3_f32", t, s_[0], s_[1], s_[2]))
        for r in range(3, 15, 2):
            out.append(valu("v_max3_f32", t, t, s_[r], s_[r + 1]))
        out.append(valu("v_max_f32", t, t, s_[15]))
    for qb in range(2):
        out.append(valu("v_mov_b32", vU[qb], vT[qb]))
    for qb in range(2):
        out.append(Ins(f"v_permlane32_swap_b32 {vT[qb]}, {vU[qb]}", "perm", defs=[vT[qb], vU[qb]],
                       uses=[vT[qb], vU[qb]]))
    for qb in range(2):
        out.append(valu("v_max_f32", vT[qb], vT[qb], vU[qb]))
    return out


_lbl = 0


def sm_check(first):
    global _lbl
    out = []
    if first:
        for qb in range(2):
            out.append(valu("v_mov_b32", vMR[qb], vT[qb]))
            out.append(valu("v_mul_f32", vM[qb], sC, vT[qb]))
            out.append(valu("v_add_f32", vTHR[qb], sTRAW, vT[qb]))
            out.append(valu("v_mov_b32", vL[qb], 0))
        return out
    out.append(valu("v_cmp_gt_f32", sMASK0, vT[0], vTHR[0]))
    out.append(valu("v_cmp_gt_f32", sMASK1, vT[1], vTHR[1]))
    _lbl += 1
    out.append(Group([
        salu(f"s_or_b64 {sMASK0}, {sMASK0}, {sMASK1}", defs=[sMASK0], uses=[sMASK0, sMASK1]),
        salu(f"s_cbranch_scc0 L_noslow{_lbl}"),
        Ins(f"s_call_b64 {sRET}, L_slow", "salu", cost=2,
            defs=vM + vTHR + vL + vAL + vMR + vU, uses=vM + vTHR + vL + vT + vMR),
        label(f"L_noslow{_lbl}")]))
    return out


def sm_exp(p, qb, grp):
    s_ = Sb(p, qb)
    out = []
    rs = range(4 * grp, 4 * grp + 4)
    for r in rs:
        out.append(valu("v_fma_f32", s_[r], s_[r], sC, ("-", vM[qb])))
    for r in rs:
        out.append(valu("v_exp_f32", s_[r], s_[r]))
    for r in rs:
        out.append(valu("v_add_f32", vL[qb], vL[qb], s_[r]))
    ks, g2 = divmod(grp, 2)
    for jj in range(2):
        j = 2 * g2 + jj
        out.append(valu("v_cvt_pk_bf16_f32", s_[8 * ks + j], s_[8 * ks + 2 * j], s_[8 * ks + 2 * j + 1]))
    return out


def Pf(p, qb, ks):
    return Sb(p, qb)[8 * ks: 8 * ks + 4]


def resc_check():
    global _lbl
    _lbl += 1
    return [
        salu(f"s_cmp_eq_u32 {sFLAG}, 0", uses=[sFLAG]),
        salu(f"s_cbranch_scc1 L_nores{_lbl}"),
        Ins(f"s_call_b64 {sRET}, L_resc", "salu", cost=2),
        label(f"L_nores{_lbl}"),
    ]


def softmax1(j):
    p = j % 2
    out = sm_max(p) + sm_check(j == 0)
    for gi in range(NG1):
        out += sm_exp(p, gi // 4, gi % 4)
    return out


def softmax2(j):
    p = j % 2
    out = []
    for gi in range(NG1, 8):
        out += sm_exp(p, gi // 4, gi % 4)
    return out


def conv_o(ksg):
    qb, s = divmod(ksg, 16)
    dt, hf = divmod(s, 2)
    acc = Oacc(dt, qb)
    out = []
    for ee in range(8):
        out.append(valu("v_accvgpr_read_b32", vTMP[ee], acc[hf * 8 + ee]))
    for ee in range(8):
        out.append(valu("v_mul_f32", vTMP[ee], vTMP[ee], vL[qb]))
    for jj in range(4):
        out.append(valu("v_cvt_pk_bf16_f32", Of(ksg)[jj], vTMP[2 * jj], vTMP[2 * jj + 1]))
    return out


def store_pass(ps):
    out = []
    for tt in range(2):
        acc = Wacc(ps % 2, tt)
        for sp in range(2):
            g = []
            for jj in range(4):
                g.append(valu("v_cvt_pk_bf16_f32", acc[8 * sp + jj], acc[8 * sp + 2 * jj], acc[8 * sp + 2 * jj + 1]))
            g.append(salu(f"s_add_u32 {sT0}, {sOFFWS}, {ps * 4096}", defs=[sT0]))
            g.append(bstore(acc[8 * sp: 8 * sp + 4], vL16, SRD_WS, sT0, off=(2 * tt + sp) * 1024, flags=STF))
            out.append(g)
    return out


def gen_k1():
    st = []
    e = st.append
    ext = st.extend
    ext(stamp(True))
    ext(stamp())
    e(salu("s_cmp_ge_u32 s2, 256"))
    e(salu("s_cbranch_scc1 L_end"))
    if MAP == 0:
        e(salu(f"s_and_b32 {sG}, s2, 7"))
        e(salu(f"s_lshr_b32 s3, s2, 6"))
        e(salu(f"s_xor_b32 {sG}, {sG}, s3"))
        e(salu(f"s_lshr_b32 {sB}, s2, 3"))
        e(salu(f"s_and_b32 {sB}, {sB}, 15"))
        e(salu(f"s_lshr_b32 {sBLK}, s2, 7"))
    else:
        e(salu(f"s_bfe_u32 {sBLK}, s2, 0x10002"))
        e(salu(f"s_and_b32 {sG}, s2, 3"))
        e(salu(f"s_lshl_b32 {sG}, {sG}, 1"))
        e(salu(f"s_bfe_u32 s3, s2, 0x10003"))
        e(salu(f"s_or_b32 {sG}, {sG}, s3"))
        e(salu(f"s_lshr_b32 {sB}, s2, 4"))
    e(salu(f"s_load_dwordx2 s[14:15], s[0:1], 96"))
    e(salu(f"s_mul_i32 s3, {sBLK}, 40"))
    e(salu("s_add_u32 s0, s0, s3"))
    e(salu("s_addc_u32 s1, s1, 0"))
    e(salu("s_load_dwordx8 s[4:11], s[0:1], 0"))
    e(salu("s_load_dwordx2 s[12:13], s[0:1], 32"))
    lane, tA, tB, tC, tD, tE = (vTMP[i] for i in range(6))
    e(valu("v_and_b32", lane, 63, V(0)))
    e(valu("v_lshrrev_b32", tA, 6, V(0)))
    e(Ins(f"v_readfirstlane_b32 {sW}, {tA}", "valu", defs=[sW], uses=[tA]))
    e(valu("v_lshlrev_b32", vL16, 4, lane))
    e(valu("v_lshrrev_b32", tA, 3, lane))
    e(valu("v_mul_u32_u24", tA, 896, tA))
    e(valu("v_and_b32", tB, 7, lane))
    e(valu("v_lshrrev_b32", tC, 4, lane))
    e(valu("v_xor_b32", tB, tB, tC))
    e(valu("v_lshl_add_u32", vXO[0], tB, 4, tA))
    e(valu("v_xor_b32", vXO[1], 64, vXO[0]))
    e(salu(f"s_mul_i32 {sM0V}, {sW}, {4 * VSTR}", uses=[sW]))
    e(salu(f"s_lshl_b32 {sOFFWQ}, {sW}, 15"))
    e(salu(f"s_lshl_b32 {sM0X}, {sW}, 12"))
    e(salu(f"s_add_u32 {sM0X}, {sM0X}, {XBASE}"))
    e(salu(f"s_mul_i32 {sOFFX}, {sW}, {32 * 896}"))
    e(raw("s_waitcnt lgkmcnt(0)", "wait"))

    def srd(d, ptr_lo, off_expr_reg, size):
        e(salu(f"s_add_u32 s{d.b}, s{ptr_lo}, {off_expr_reg}"))
        e(salu(f"s_addc_u32 s{d.b + 1}, s{ptr_lo + 1}, 0"))
        e(salu(f"s_mov_b32 s{d.b + 2}, {size}"))
        e(salu(f"s_mov_b32 s{d.b + 3}, 0x00020000"))

    e(salu(f"s_lshl_b32 s3, {sG}, 10"))
    srd(SRD_WQ, 10, "s3", 447 * 8192 + 1024)
    e(salu(f"s_mul_i32 s3, {sB}, 114688"))
    srd(SRD_X, 4, "s3", 114688)
    ext(dma_wq(0))
    ext(dma_x(0))
    ext(dma_wq(1))
    ext(dma_x(1))
    ext(dma_wq(2))
    e(salu(f"s_lshl_b32 s3, {sB}, 3"))
    e(salu(f"s_add_u32 s3, s3, {sG}"))
    e(salu(f"s_lshl_b32 s3, s3, 18"))
    srd(SRD_K, 6, "s3", 262144)
    srd(SRD_V, 8, "s3", 262144)
    e(salu(f"s_mul_i32 s3, {sG}, 458752"))
    srd(SRD_WO, 12, "s3", 458752)
    e(salu(f"s_lshl_b32 s3, {sBLK}, 4"))
    e(salu(f"s_add_u32 s3, s3, {sB}"))
    e(salu(f"s_lshl_b32 s3, s3, 3"))
    e(salu(f"s_add_u32 s3, s3, {sG}"))
    e(salu(f"s_mul_i32 s3, s3, {PART}"))
    srd(SRD_WS, 14, "s3", PART)
    e(salu(f"s_mov_b32 {sC}, {f32bits(CSCALE):#x}"))
    e(salu(f"s_mov_b32 {sTRAW}, {f32bits(TRAW):#x}"))
    e(salu(f"s_mov_b32 {sFLAG}, 0"))
    e(salu(f"s_mul_i32 {sM0K}, {sW}, {4 * KSTR}"))
    e(salu(f"s_lshl_b32 {sOFFKV}, {sW}, 11"))
    e(salu(f"s_lshl_b32 {sM0WO}, {sW}, 13"))
    e(salu(f"s_mul_i32 {sOFFWO}, {sW}, {64 * 896}"))
    e(salu(f"s_mul_i32 {sOFFWS}, {sW}, {14 * 2048}"))
    e(valu("v_lshrrev_b32", tA, 5, lane))
    e(valu("v_and_b32", tB, 31, lane))
    e(valu("v_lshlrev_b32", tC, 13, tA))
    e(valu("v_lshl_add_u32", vOFFKV, tB, 4, tC))
    e(valu("v_bfe_u32", tC, tB, 1, 3))
    e(valu("v_xor_b32", tC, tC, tA))
    e(valu("v_lshlrev_b32", tC, 4, tC))
    e(valu("v_lshl_add_u32", tC, tB, 7, tC))
    e(valu("v_add_u32", vAX[0], sM0X, tC))
    for sp in range(1, 4):
        e(valu("v_xor_b32", vAX[sp], sp << 5, vAX[0]))
    e(valu("v_and_b32", tC, 3, tB))
    e(valu("v_and_b32", tD, 4, tB))
    e(valu("v_lshl_add_u32", tC, tD, 1, tC))
    e(valu("v_and_b32", tD, 8, tB))
    e(valu("v_lshrrev_b32", tD, 1, tD))
    e(valu("v_add_u32", tC, tC, tD))
    e(valu("v_mul_u32_u24", vAK, KSTR, tC))
    e(valu("v_lshrrev_b32", tD, 4, tB))
    e(valu("v_lshl_add_u32", vAK, tD, 9, vAK))
    e(valu("v_lshl_add_u32", vAK, tA, 4, vAK))
    e(valu("v_bfe_u32", tE, lane, 2, 2))
    e(valu("v_lshl_add_u32", tC, tA, 3, tE))
    e(valu("v_and_b32", tD, 1, lane))
    e(valu("v_lshlrev_b32", tD, 4, tD))
    e(valu("v_and_b32", tB, 2, lane))
    e(valu("v_lshl_add_u32", tD, tB, 2, tD))
    e(valu("v_bfe_u32", tB, lane, 4, 1))
    e(valu("v_lshl_add_u32", tD, tB, 5, tD))
    e(valu("v_mul_u32_u24", vAV, VSTR, tC))
    e(valu("v_add_u32", vAV, vAV, tD))
    e(valu("v_add_u32", vAWQ, P1BASE, vAV))
    e(valu("v_add_u32", vAV, VBASE, vAV))
    e(valu("v_lshl_add_u32", tC, tC, 7, tD))
    e(valu("v_lshrrev_b32", tE, 1, tE))
    e(valu("v_lshlrev_b32", tE, 6, tE))
    e(valu("v_add_u32", vAWO[0][0], tC, tE))
    e(valu("v_xor_b32", tE, 64, tE))
    e(valu("v_add_u32", vAWO[0][1], tC, tE))
    e(valu("v_add_u32", vAWO[1][0], 2 * WOSLOT, vAWO[0][0]))
    e(valu("v_add_u32", vAWO[1][1], 2 * WOSLOT, vAWO[0][1]))
    e(valu("v_lshrrev_b32", tC, 3, lane))
    e(valu("v_mul_u32_u24", tC, 896, tC))
    e(valu("v_and_b32", tD, 7, lane))
    e(valu("v_lshlrev_b32", tB, 2, tB))
    e(valu("v_xor_b32", tD, tD, tB))
    e(valu("v_lshl_add_u32", vOFFWO, tD, 4, tC))
    if WARM:
        e(valu("v_lshrrev_b32", tA, 3, lane))
        e(valu("v_and_b32", tB, 7, lane))
        e(valu("v_lshlrev_b32", tA, 13, tA))
        e(valu("v_lshl_add_u32", vPFWQ, tB, 7, tA))
        if MAP == 0:
            e(salu(f"s_and_b32 s3, {sB}, 7"))
            e(salu(f"s_mul_i32 s3, s3, {56 * 8192}"))
            e(salu(f"s_lshl_b32 {sT2}, {sW}, 16"))
            e(salu(f"s_add_u32 {sT2}, {sT2}, s3"))
            e(pfload(vDUMMY, vPFWQ, SRD_WQ, sT2, tag=("pfw", 0), n=1))
            e(salu(f"s_add_u32 {sT2}, {sT2}, {4 << 16}"))
            e(pfload(vDUMMY, vPFWQ, SRD_WQ, sT2, tag=("pfw", 1), n=1))
        else:
            e(salu(f"s_mul_i32 s3, {sB}, {28 * 8192}"))
            e(salu(f"s_lshl_b32 {sT2}, {sW}, 16"))
            e(salu(f"s_add_u32 {sT2}, {sT2}, s3"))
            e(pfload(vDUMMY, vPFWQ, SRD_WQ, sT2, tag=("pfw", 0), n=1))
    e(WaitVM(("x", 0)))
    for s in range(4):
        ext(rd_x(s))
    e(barrier())

    LA = 6
    for f in range(LA):
        ext(rd_wq(f))
    pre = [dma_k(0), dma_k(1), dma_v(0), stage_ld(0, "v", 1), stage_ld(1, "v", 2), stage_ld(3, "k", 4),
           stage_ld(2, "v", 3), dma_k(2), dma_k(3)]
    kv_at = dict(zip(KVAT, pre))
    for s in range(28):
        if STAMP and s in (0, 14):
            ext(stamp())
        slots = []
        for nt in range(16):
            f = 16 * s + nt
            sl = [mfma(Qacc(nt), Wf(f), Xf(s), Qacc(nt) if s > 0 else 0)]
            if f + LA < 448:
                sl += rd_wq(f + LA)
            if nt == 3 and s + 1 < 28:
                if s == 23:
                    sl += [WaitAll(vm=False, lgkm=True)]
                sl += [WaitVM(("wq", s + 1)), barrier()]
            slots.append(sl)
        fill = []
        if s + NP1 - 1 < 28:
            fill += dma_wq(s + NP1 - 1)
        if s in kv_at:
            fill += kv_at[s]
        if s % 4 == 1 and (s + 3) // 4 < 7:
            pc = (s + 3) // 4
            fill += [WaitVM(("x", pc))]
            for s2 in range(4):
                fill += rd_x(4 * pc + s2)
        if s % 4 == 0 and s // 4 + 2 < 7:
            fill += [WaitAll(vm=False, lgkm=True)] if s == 0 else []
            fill += dma_x(s // 4 + 2)
        ext(interleave(slots, fill, start=4, end=14))

    ext(stamp())
    e(WaitVM(("k", 0)))
    e(barrier())
    for s3 in range(3):
        ext(rd_k(0, s3))
    e(valu("v_add_u32", vT[0], sM0V, vL16))
    e(valu("v_add_u32", vT[0], VBASE, vT[0]))
    e(valu("v_add_u32", vT[1], sM0K, vL16))
    e(valu("v_add_u32", vT[1], KS[4], vT[1]))
    e(valu("v_add_u32", vAK2, KS[4], vAK))
    drain = []
    for t in range(4):
        for i in range(4):
            if t < 3:
                drain.append(ds_write_b128(vT[0], STG(t)[4 * i: 4 * i + 4], VS[t + 1] + i * VSTR))
            else:
                drain.append(ds_write_b128(vT[1], STG(t)[4 * i: 4 * i + 4], i * KSTR))
    for qb in range(2):
        for s in range(16):
            acc = Qacc(qb * 8 + s // 2)
            for ee in range(8):
                e(valu("v_accvgpr_read_b32", vTMP[ee], acc[(s % 2) * 8 + ee]))
            for jj in range(4):
                e(valu("v_cvt_pk_bf16_f32", Qf(qb, s)[jj], vTMP[2 * jj], vTMP[2 * jj + 1]))
            if qb == 0:
                e(drain[s])
    e(WaitAll(vm=False, lgkm=True))

    ext(stamp())
    for j in range(17):
        p = j % 2
        if j in (4, 12):
            ext(stamp())
        fillA = softmax2(j - 1) if j >= 1 else []
        if j < 16:
            slots = []
            for s in range(16):
                for qb in range(2):
                    sl = [mfma(Sb(p, qb), Kf(s), Qf(qb, s), Sb(p, qb) if s > 0 else 0)]
                    if qb == 0:
                        if s + 3 < 16:
                            sl += rd_k(j, s + 3)
                        elif j >= 1:
                            sl += rd_v(j - 1, s + 3 - 16)
                    slots.append(sl)
            ext(interleave(slots, fillA, start=0, end=30))
        else:
            for f in range(3):
                ext(rd_v(j - 1, f))
            ext(fillA)
        if j >= 2:
            ext(resc_check())
        waits = []
        if j + 1 < 16:
            waits.append(("k", j + 1))
        if j < 16:
            waits.append(("v", j))
        grp = []
        if j + NK < 16:
            grp += dma_k(j + NK)
        if 4 <= j + 2 < 16:
            grp += dma_v(j + 2)
        if j == 13:
            grp += dma_wo(0)
        if j == 15:
            grp += dma_wo(1) + dma_wo(3)
        sync = [WaitVM(waits), barrier()] if j < 16 else []
        fillB = softmax1(j) if j < 16 else []
        if j == 16:
            for qb in range(2):
                fillB.append(valu("v_mov_b32", vU[qb], vL[qb]))
            for qb in range(2):
                fillB.append(Ins(f"v_permlane32_swap_b32 {vL[qb]}, {vU[qb]}", "perm",
                                 defs=[vL[qb], vU[qb]], uses=[vL[qb], vU[qb]]))
            for qb in range(2):
                fillB.append(valu("v_add_f32", vL[qb], vL[qb], vU[qb]))
            for qb in range(2):
                fillB.append(valu("v_rcp_f32", vL[qb], vL[qb]))
        if j >= 1:
            slots = []
            for f in range(16):
                dt, ks = divmod(f, 2)
                for qb in range(2):
                    sl = [mfma(Oacc(dt, qb), Vf(f), Pf(1 - p, qb, ks),
                               Oacc(dt, qb) if (j > 1 or ks > 0) else 0)]
                    if qb == 0:
                        if f + 3 < 16:
                            sl += rd_v(j - 1, f + 3)
                        elif j + 1 < 16:
                            sl += rd_k(j + 1, f + 3 - 16)
                    if f == 0 and qb == 1:
                        sl += sync
                    slots.append(sl)
            ext(interleave(slots, grp + fillB, start=2, end=32))
        else:
            ext(sync)
            ext(grp)
            for s3 in range(3):
                ext(rd_k(1, s3))
            ext(fillB)

    ext(stamp())
    e(WaitVM(("wo", 0)))
    e(barrier())
    ext(dma_wo(2))
    for f in range(LA):
        ext(rd_wo(f))
    CLA = 2
    for ksg in range(CLA):
        ext(conv_o(ksg))

    ext(stamp())
    for sg in range(14):
        ps, hs = divmod(sg, 2)
        if sg in (2, 8):
            ext(stamp())
        slots = []
        for r in range(32):
            f = 32 * sg + r
            ks, tt = divmod(r, 2)
            ksg = 16 * hs + ks
            acc = Wacc(ps % 2, tt)
            sl = [mfma(acc, Wf(f), Of(ksg), acc if ksg > 0 else 0)]
            if f + LA < 448:
                sl += rd_wo(f + LA)
            if ps == 0 and ksg + CLA < 32:
                cv = conv_o(ksg + CLA)
                sl += cv[:10] if tt == 0 else cv[10:]
            if r == 3 and sg + 1 < 14:
                sl += [WaitVM(("wo", sg + 1)), barrier()]
            slots.append(sl)
        fill = []
        if sg >= 1 and sg + 3 < 14:
            fill += dma_wo(sg + 3)
        if ps >= 1:
            sp_ = store_pass(ps - 1)
            for k in range(2):
                if not env("NOST", 0):
                    slots[10 + 12 * k] += sp_[2 * hs + k]
        ext(interleave(slots, fill, start=4, end=26))

    ext(stamp())
    for g_ in store_pass(6):
        ext(g_)
    if STAMP:
        e(WaitAll())
    ext(stamp())
    ext(stamp(True))
    ext(stamp_store())
    e(label("L_end"))
    e(raw("s_endpgm"))

    lines = finalize(st)

    sub = []
    s_ = sub.append
    s_(label("L_slow"))
    s_(nop(2))
    for qb in range(2):
        s_(valu("v_max_f32", vMR[qb], vMR[qb], vT[qb]))
        s_(valu("v_mul_f32", vU[qb], sC, vMR[qb]))
        s_(valu("v_sub_f32", vAL[qb], vM[qb], vU[qb]))
        s_(valu("v_exp_f32", vAL[qb], vAL[qb]))
        s_(valu("v_mov_b32", vM[qb], vU[qb]))
        s_(valu("v_add_f32", vTHR[qb], sTRAW, vMR[qb]))
        s_(valu("v_mul_f32", vL[qb], vL[qb], vAL[qb]))
    s_(salu(f"s_mov_b32 {sFLAG}, 1"))
    s_(nop(2))
    s_(raw(f"s_setpc_b64 {sRET}"))
    s_(label("L_resc"))
    s_(nop(16))
    tt = [vU[0], vU[1], vT[0], vT[1]]
    for dt in range(8):
        for qb in range(2):
            acc = Oacc(dt, qb)
            for r0 in range(0, 16, 4):
                for k in range(4):
                    s_(valu("v_accvgpr_read_b32", tt[k], acc[r0 + k]))
                for k in range(4):
                    s_(valu("v_mul_f32", tt[k], tt[k], vAL[qb]))
                for k in range(4):
                    s_(valu("v_accvgpr_write_b32", acc[r0 + k], tt[k]))
    s_(salu(f"s_mov_b32 {sFLAG}, 0"))
    s_(nop(4))
    s_(raw(f"s_setpc_b64 {sRET}"))
    lines += finalize(sub)
    return lines


def gen_k2():
    st = []
    e = st.append
    e(salu("s_cmp_ge_u32 s2, 896"))
    e(salu("s_cbranch_scc1 L2_end"))
    e(salu("s_load_dwordx2 s[4:5], s[0:1], 80"))
    e(salu("s_load_dwordx2 s[6:7], s[0:1], 96"))
    e(salu("s_and_b32 s8, s2, 1"))
    e(salu("s_lshr_b32 s9, s2, 1"))
    e(salu("s_mul_i32 s10, s9, 4682"))
    e(salu("s_lshr_b32 s10, s10, 16"))
    e(salu("s_mul_i32 s11, s10, 14"))
    e(salu("s_sub_u32 s11, s9, s11"))
    lane, w, t1, t2 = V(1), V(2), V(3), V(4)
    e(valu("v_and_b32", lane, 63, V(0)))
    e(valu("v_lshrrev_b32", w, 6, V(0)))
    e(valu("v_mul_u32_u24", t1, 14 * 2048, w))
    e(valu("v_lshl_add_u32", t1, lane, 4, t1))
    e(salu("s_lshl_b32 s12, s11, 11"))
    e(salu("s_lshl_b32 s13, s8, 10"))
    e(salu("s_add_u32 s12, s12, s13"))
    e(valu("v_add_u32", t1, S(12), t1))
    e(salu("s_and_b32 s13, s10, 15"))
    e(salu("s_lshr_b32 s14, s10, 4"))
    e(salu("s_mul_i32 s13, s13, 229376"))
    e(salu("s_mul_i32 s14, s14, 896"))
    e(salu("s_add_u32 s13, s13, s14"))
    e(salu("s_lshl_b32 s14, s11, 6"))
    e(salu("s_add_u32 s13, s13, s14"))
    e(salu("s_lshl_b32 s14, s8, 5"))
    e(salu("s_add_u32 s13, s13, s14"))
    e(valu("v_and_b32", t2, 31, lane))
    e(valu("v_lshl_add_u32", t2, w, 5, t2))
    e(valu("v_mul_u32_u24", t2, 1792, t2))
    e(valu("v_lshrrev_b32", lane, 5, lane))
    e(valu("v_lshl_add_u32", t2, lane, 4, t2))
    e(valu("v_add_u32", t2, S(13), t2))
    e(raw("s_waitcnt lgkmcnt(0)", "wait"))
    e(salu("s_mov_b32 s16, s4"))
    e(salu("s_mov_b32 s17, s5"))
    e(salu(f"s_mov_b32 s18, {16 * 128 * 896 * 2}"))
    e(salu("s_mov_b32 s19, 0x00020000"))
    e(salu(f"s_mul_i32 s14, s10, {8 * PART}"))
    e(salu("s_add_u32 s20, s6, s14"))
    e(salu("s_addc_u32 s21, s7, 0"))
    e(salu(f"s_mov_b32 s22, {8 * PART}"))
    e(salu("s_mov_b32 s23, 0x00020000"))
    e(salu("s_mov_b32 s32, 0xffff0000"))
    so, sw = S(16, 4), S(20, 4)
    for g in range(8):
        e(salu(f"s_mov_b32 s{24 + g}, {g * PART}"))
    for g in range(8):
        e(bload(V(8 + g * 4, 4), t1, sw, S(24 + g), flags=K2F))
    acc = V(40, 8)
    tmp = V(48, 8)
    for g in range(8):
        for jj in range(4):
            src = V(8 + g * 4 + jj)
            dlo, dhi = (acc[2 * jj], acc[2 * jj + 1]) if g == 0 else (tmp[2 * jj], tmp[2 * jj + 1])
            e(valu("v_lshlrev_b32", dlo, 16, src))
            e(valu("v_and_b32", dhi, S(32), src))
        if g:
            for k in range(8):
                e(valu("v_add_f32", acc[k], acc[k], tmp[k]))
    for jj in range(4):
        e(valu("v_cvt_pk_bf16_f32", V(56 + jj), acc[2 * jj], acc[2 * jj + 1]))
    e(bstore(V(56, 4), t2, so, 0))
    if STAMP == 3:
        e(salu("s_cmp_lg_u32 s2, 0"))
        e(salu("s_cbranch_scc1 L2_end"))
        e(salu("s_load_dwordx2 s[16:17], s[0:1], 88"))
        e(salu(f"s_add_u32 s20, s6, {64 << 20}"))
        e(salu("s_addc_u32 s21, s7, 0"))
        e(salu("s_mov_b32 s22, 64"))
        e(salu("s_mov_b32 s18, 64"))
        e(valu("v_lshlrev_b32", V(3), 2, V(0)))
        e(raw("s_waitcnt lgkmcnt(0)", "wait"))
        e(bload(V(5), V(3), sw, 0, n=1))
        e(bstore(V(5), V(3), so, 0, n=1))
    e(label("L2_end"))
    e(raw("s_endpgm"))
    return finalize(st)


HEADER = open(os.path.join(os.path.dirname(os.path.abspath(__file__)), "header.txt")).read()


def kd(name, vgpr, accum, sgpr):
    return f""".amdhsa_kernel {name}
  .amdhsa_next_free_vgpr {vgpr}
  .amdhsa_next_free_sgpr {sgpr}
  .amdhsa_accum_offset {accum}
  .amdhsa_group_segment_fixed_size 0
  .amdhsa_kernarg_size 104
  .amdhsa_user_sgpr_count 2
  .amdhsa_user_sgpr_kernarg_segment_ptr 1
  .amdhsa_system_sgpr_workgroup_id_x 1
.end_amdhsa_kernel
"""


def main():
    out = HEADER
    out += f"; @launch kernel={K1} grid=(256,1,1) block=(256,1,1) lds={LDS_BYTES}\n"
    out += f"; @launch kernel={K2} grid=(896,1,1) block=(256,1,1) lds=0\n"
    out += '.amdgcn_target "amdgcn-amd-amdhsa--gfx950"\n.text\n'
    for name, gen in ((K1, gen_k1), (K2, gen_k2)):
        out += f".globl {name}\n.p2align 8\n.type {name},@function\n{name}:\n"
        out += "\n".join(gen()) + "\n"
    out += '.section .rodata,"a"\n.p2align 6\n'
    out += kd(K1, 512, 256, 102)
    out += ".p2align 6\n"
    out += kd(K2, 64, 64, 40)
    dst = sys.argv[1] if len(sys.argv) > 1 else f"cdna_kernels/{NAME}.s"
    open(dst, "w").write(out)
    print("wrote", dst, len(out), "bytes", out.count("\n"), "lines")


if __name__ == "__main__":
    main()
```

```python
import math
import struct
import sys
import os

sys.path.insert(0, os.path.dirname(os.path.abspath(__file__)))
from asmir import *

NAME = "concat_heads__gqa_block_cached__gqa_block_cached__near_ridge"
K1 = NAME + "_kernel"
K2 = "reduce_out_kernel"


def f32bits(x):
    return struct.unpack("<I", struct.pack("<f", x))[0]


def env(k, d):
    return type(d)(os.environ.get(k, d))


CSCALE = math.log2(math.e) / 16.0
TLOG2 = 8.0
TRAW = TLOG2 / CSCALE
KVF = env("KVF", "nt")
WQF = env("WQF", "")
XF = env("XF", "")
WOF = env("WOF", "")
STF = env("STF", "")
K2F = env("K2F", "")
STAMP = env("STAMP", 0)
WARM = env("WARM", 1)
MAP = env("MAP", 1)
KVAT = [int(x) for x in env("KVAT", "2,4,6,8,10,12,14,23,25").split(",")]
NG1 = env("NG1", 3)

SRD_X, SRD_K, SRD_V, SRD_WQ, SRD_WO, SRD_WS = (S(16, 4), S(20, 4), S(24, 4), S(28, 4), S(32, 4), S(36, 4))
sW, sG, sB, sBLK, sC = S(40), S(41), S(42), S(43), S(44)
sM0V, sOFFWQ, sM0K, sM0X, sOFFKV = S(45), S(46), S(47), S(48), S(49)
sT0, sT1 = S(50), S(51)
sMASK0, sMASK1 = S(52, 2), S(54, 2)
sFLAG = S(56)
sOFFX = S(57)
sRET = S(58, 2)
sM0WO = S(60)
sOFFWS = S(61)
sTRAW = S(62)
sOFFWO = S(63)
sT2 = S(100)


def Qf(qb, s):
    return V((qb * 16 + s) * 4, 4)


def Xf(s):
    return V(s * 4, 4)


def Of(ks):
    return V(ks * 4, 4)


def Sb(p, qb):
    return V(128 + p * 32 + qb * 16, 16)


def Kf(i):
    return V(192 + (i % 4) * 4, 4)


def Vf(i):
    return V(208 + (i % 4) * 4, 4)


def Wf(i):
    return V(192 + (i % 8) * 4, 4)


def Wacc(buf, tt):
    return V(128 + buf * 32 + tt * 16, 16)


vAK, vAV, vOFFKV, vL16 = V(224), V(225), V(226), V(227)
vM = [V(228), V(229)]
vTHR = [V(230), V(231)]
vL = [V(232), V(233)]
vAL = [V(234), V(235)]
vT = [V(236), V(237)]
vU = [V(238), V(239)]
vTMP = V(240, 8)
vMR = [V(248), V(249)]
vAWQ = V(250)
vOFFWO = V(251)
vAWO = [[V(252), V(253)], [V(254), V(255)]]
vXO = [V(112), V(113)]
vAX = V(114, 4)
vDUMMY, vPFWQ, vL128 = V(118), V(119), V(120)
SRD_PF = S(96, 4)
sPFOFF = S(101)
PFN = env("PFN", 0)
PFF = env("PFF", "")
PFAT = env("PFAT", 16)
vAK2 = vAWQ


def STG(t):
    return V(128 + 16 * t, 16)

KSTR, VSTR = 1040, 1088
KSLOT, VSLOT = 16 * KSTR, 16 * VSTR
VBASE = 4 * KSLOT
NK = 5
KS = [i * KSLOT for i in range(4)] + [VBASE + 4 * VSLOT]
VS = [i * VSLOT for i in range(4)]
P1BASE = VBASE + VSLOT
NP1 = 4
XBASE = 2 * KSLOT
assert XBASE + 32768 <= 4 * KSLOT
WOSLOT = 32768
LDS_BYTES = 163840
PART = 4 * 14 * 2048
assert P1BASE + NP1 * VSLOT <= LDS_BYTES


def Oacc(dt, qb):
    return A((dt * 2 + qb) * 16, 16)


def Qacc(nt):
    return A(nt * 16, 16)


def barrier():
    return raw("s_barrier", "other", cost=4)


_nst = 0


def stamp(real=False):
    global _nst
    if not STAMP:
        return []
    i = _nst
    _nst += 1
    assert i < 16
    op = "s_memrealtime" if (real or STAMP >= 2) else "s_memtime"
    return [raw(f"{op} s[{64 + 2 * i}:{65 + 2 * i}]", "salu", cost=2)]


def stamp_store():
    if not STAMP:
        return []
    if STAMP == 3:
        out = [raw("s_waitcnt lgkmcnt(0)", "wait"),
               salu(f"s_cmp_lg_u32 {sW}, 0"), salu("s_cbranch_scc1 L_end"),
               salu(f"s_cmp_lg_u32 s2, 77"), salu("s_cbranch_scc1 L_end"),
               salu(f"s_add_u32 s4, s14, {64 << 20}"), salu("s_addc_u32 s5, s15, 0"),
               salu("s_mov_b32 s6, 256"), salu("s_mov_b32 s7, 0x00020000"),
               valu("v_mov_b32", V(2), 0)]
        for i in range(_nst):
            out.append(salu(f"s_sub_u32 s3, s{64 + 2 * i}, s64"))
            out.append(valu("v_mov_b32", V(4 + i), S(3)))
            out.append(bstore(V(4 + i), V(2), S(4, 4), 0, off=i * 4, n=1))
        return out
    out = [raw("s_waitcnt lgkmcnt(0)", "wait"),
           salu(f"s_cmp_lg_u32 {sW}, 0"), salu("s_cbranch_scc1 L_end"),
           salu("s_lshl_b32 s3, s2, 7"), salu(f"s_add_u32 s3, s3, {64 << 20}"),
           salu("s_add_u32 s4, s14, s3"), salu("s_addc_u32 s5, s15, 0"),
           salu("s_mov_b32 s6, 128"), salu("s_mov_b32 s7, 0x00020000"),
           valu("v_mov_b32", V(2), 0)]
    for i in range(_nst):
        out.append(valu("v_mov_b32", V(4 + 2 * i), S(64 + 2 * i)))
        out.append(valu("v_mov_b32", V(5 + 2 * i), S(65 + 2 * i)))
        out.append(bstore(V(4 + 2 * i, 2), V(2), S(4, 4), 0, off=i * 8, n=2))
    return out


def dma_wq(s):
    out = []
    for i in range(4):
        out.append(setm0(f"s_add_u32 m0, {sM0V}, {P1BASE + (s % NP1) * VSLOT + i * VSTR}"))
        out.append(salu(f"s_add_u32 {sT0}, {sOFFWQ}, {(16 * s + i) * 8192}", defs=[sT0]))
        out.append(dma(vL16, SRD_WQ, sT0, tag=("wq", s), flags=WQF))
    return out


def dma_x(pc):
    out = []
    for i in range(4):
        out.append(setm0(f"s_add_u32 m0, {sM0X}, {(pc % 2) * 16384 + i * 1024}"))
        out.append(salu(f"s_add_u32 {sT1}, {sOFFX}, {pc * 128 + i * 8 * 896}", defs=[sT1]))
        out.append(dma(vXO[i % 2], SRD_X, sT1, tag=("x", pc), flags=XF))
    return out


def dma_k(j):
    out = [salu(f"s_add_u32 {sT1}, {sOFFKV}, {j * 16384}", defs=[sT1])]
    for i in range(4):
        out.append(setm0(f"s_add_u32 m0, {sM0K}, {KS[j % NK] + i * (KSTR - 512)}"))
        out.append(dma(vOFFKV, SRD_K, sT1, off=i * 512, tag=("k", j), flags=KVF))
    return out


def dma_v(j):
    out = [salu(f"s_add_u32 {sT1}, {sOFFKV}, {j * 16384}", defs=[sT1])]
    for i in range(4):
        out.append(setm0(f"s_add_u32 m0, {sM0V}, {VBASE + VS[j % 4] + i * (VSTR - 512)}"))
        out.append(dma(vOFFKV, SRD_V, sT1, off=i * 512, tag=("v", j), flags=KVF))
    return out


def dma_wo(sg):
    ps, hs = divmod(sg, 2)
    out = []
    for i in range(8):
        out.append(setm0(f"s_add_u32 m0, {sM0WO}, {((sg + 1) % 4) * WOSLOT + i * 1024}"))
        out.append(salu(f"s_add_u32 {sT1}, {sOFFWO}, {(256 * hs + 8 * i) * 896 + 128 * ps}", defs=[sT1]))
        out.append(dma(vOFFWO, SRD_WO, sT1, tag=("wo", sg), flags=WOF))
    return out


def pfload(*a, **kw):
    i = bload(*a, **kw)
    i.defs = set()
    return i


def rd_wq(f):
    s, nt = divmod(f, 16)
    d = Wf(f)
    off = (s % NP1) * VSLOT + nt * 64
    return [ds_read_tr(d[0:2], vAWQ, off), ds_read_tr(d[2:4], vAWQ, off + 4 * VSTR)]


def rd_x(s):
    pc, sp = divmod(s, 4)
    return [ds_read_b128(Xf(s), vAX[sp], (pc % 2) * 16384)]


def rd_k(j, s):
    if j % NK == 4:
        return [ds_read_b128(Kf(s), vAK2, s * 32)]
    return [ds_read_b128(Kf(s), vAK, KS[j % NK] + s * 32)]


def stage_ld(t, kind, j):
    out = [salu(f"s_add_u32 {sT1}, {sOFFKV}, {j * 16384}", defs=[sT1])]
    for i in range(4):
        out.append(bload(STG(t)[4 * i: 4 * i + 4], vOFFKV, SRD_K if kind == "k" else SRD_V, sT1,
                         off=i * 512, tag=("stg", t), flags=KVF))
    return out


def rd_v(j, f):
    dt, ks = divmod(f, 2)
    d = Vf(f)
    off = VS[j % 4] + ks * 512 + dt * 64
    return [ds_read_tr(d[0:2], vAV, off), ds_read_tr(d[2:4], vAV, off + 4 * VSTR)]


def rd_wo(f):
    sg, r = divmod(f, 32)
    ks, tt = divmod(r, 2)
    slot = (sg + 1) % 4
    base = vAWO[slot // 2][tt]
    off = (slot % 2) * WOSLOT + ks * 2048
    d = Wf(f)
    return [ds_read_tr(d[0:2], base, off), ds_read_tr(d[2:4], base, off + 512)]


def sm_max(p):
    out = []
    for qb in range(2):
        s_ = Sb(p, qb)
        t = vT[qb]
        out.append(valu("v_max3_f32", t, s_[0], s_[1], s_[2]))
        for r in range(3, 15, 2):
            out.append(valu("v_max3_f32", t, t, s_[r], s_[r + 1]))
        out.append(valu("v_max_f32", t, t, s_[15]))
    for qb in range(2):
        out.append(valu("v_mov_b32", vU[qb], vT[qb]))
    for qb in range(2):
        out.append(Ins(f"v_permlane32_swap_b32 {vT[qb]}, {vU[qb]}", "perm", defs=[vT[qb], vU[qb]],
                       uses=[vT[qb], vU[qb]]))
    for qb in range(2):
        out.append(valu("v_max_f32", vT[qb], vT[qb], vU[qb]))
    return out


_lbl = 0


def sm_check(first):
    global _lbl
    out = []
    if first:
        for qb in range(2):
            out.append(valu("v_mov_b32", vMR[qb], vT[qb]))
            out.append(valu("v_mul_f32", vM[qb], sC, vT[qb]))
            out.append(valu("v_add_f32", vTHR[qb], sTRAW, vT[qb]))
            out.append(valu("v_mov_b32", vL[qb], 0))
        return out
    out.append(valu("v_cmp_gt_f32", sMASK0, vT[0], vTHR[0]))
    out.append(valu("v_cmp_gt_f32", sMASK1, vT[1], vTHR[1]))
    _lbl += 1
    out.append(Group([
        salu(f"s_or_b64 {sMASK0}, {sMASK0}, {sMASK1}", defs=[sMASK0], uses=[sMASK0, sMASK1]),
        salu(f"s_cbranch_scc0 L_noslow{_lbl}"),
        Ins(f"s_call_b64 {sRET}, L_slow", "salu", cost=2,
            defs=vM + vTHR + vL + vAL + vMR + vU, uses=vM + vTHR + vL + vT + vMR),
        label(f"L_noslow{_lbl}")]))
    return out


def sm_exp(p, qb, grp):
    s_ = Sb(p, qb)
    out = []
    rs = range(4 * grp, 4 * grp + 4)
    for r in rs:
        out.append(valu("v_fma_f32", s_[r], s_[r], sC, ("-", vM[qb])))
    for r in rs:
        out.append(valu("v_exp_f32", s_[r], s_[r]))
    for r in rs:
        out.append(valu("v_add_f32", vL[qb], vL[qb], s_[r]))
    ks, g2 = divmod(grp, 2)
    for jj in range(2):
        j = 2 * g2 + jj
        out.append(valu("v_cvt_pk_bf16_f32", s_[8 * ks + j], s_[8 * ks + 2 * j], s_[8 * ks + 2 * j + 1]))
    return out


def Pf(p, qb, ks):
    return Sb(p, qb)[8 * ks: 8 * ks + 4]


def resc_check():
    global _lbl
    _lbl += 1
    return [
        salu(f"s_cmp_eq_u32 {sFLAG}, 0", uses=[sFLAG]),
        salu(f"s_cbranch_scc1 L_nores{_lbl}"),
        Ins(f"s_call_b64 {sRET}, L_resc", "salu", cost=2),
        label(f"L_nores{_lbl}"),
    ]


def softmax1(j):
    p = j % 2
    out = sm_max(p) + sm_check(j == 0)
    for gi in range(NG1):
        out += sm_exp(p, gi // 4, gi % 4)
    return out


def softmax2(j):
    p = j % 2
    out = []
    for gi in range(NG1, 8):
        out += sm_exp(p, gi // 4, gi % 4)
    return out


def conv_o(ksg):
    qb, s = divmod(ksg, 16)
    dt, hf = divmod(s, 2)
    acc = Oacc(dt, qb)
    out = []
    for ee in range(8):
        out.append(valu("v_accvgpr_read_b32", vTMP[ee], acc[hf * 8 + ee]))
    for ee in range(8):
        out.append(valu("v_mul_f32", vTMP[ee], vTMP[ee], vL[qb]))
    for jj in range(4):
        out.append(valu("v_cvt_pk_bf16_f32", Of(ksg)[jj], vTMP[2 * jj], vTMP[2 * jj + 1]))
    return out


def store_pass(ps):
    out = []
    for tt in range(2):
        acc = Wacc(ps % 2, tt)
        for sp in range(2):
            g = []
            for jj in range(4):
                g.append(valu("v_cvt_pk_bf16_f32", acc[8 * sp + jj], acc[8 * sp + 2 * jj], acc[8 * sp + 2 * jj + 1]))
            g.append(salu(f"s_add_u32 {sT0}, {sOFFWS}, {ps * 4096}", defs=[sT0]))
            g.append(bstore(acc[8 * sp: 8 * sp + 4], vL16, SRD_WS, sT0, off=(2 * tt + sp) * 1024, flags=STF))
            out.append(g)
    return out


def gen_k1():
    st = []
    e = st.append
    ext = st.extend
    ext(stamp(True))
    ext(stamp())
    e(salu("s_cmp_ge_u32 s2, 256"))
    e(salu("s_cbranch_scc1 L_end"))
    if MAP == 0:
        e(salu(f"s_and_b32 {sG}, s2, 7"))
        e(salu(f"s_lshr_b32 s3, s2, 6"))
        e(salu(f"s_xor_b32 {sG}, {sG}, s3"))
        e(salu(f"s_lshr_b32 {sB}, s2, 3"))
        e(salu(f"s_and_b32 {sB}, {sB}, 15"))
        e(salu(f"s_lshr_b32 {sBLK}, s2, 7"))
    else:
        e(salu(f"s_bfe_u32 {sBLK}, s2, 0x10002"))
        e(salu(f"s_and_b32 {sG}, s2, 3"))
        e(salu(f"s_lshl_b32 {sG}, {sG}, 1"))
        e(salu(f"s_bfe_u32 s3, s2, 0x10003"))
        e(salu(f"s_or_b32 {sG}, {sG}, s3"))
        e(salu(f"s_lshr_b32 {sB}, s2, 4"))
    e(salu(f"s_load_dwordx2 s[14:15], s[0:1], 96"))
    e(salu(f"s_mul_i32 s3, {sBLK}, 40"))
    e(salu("s_add_u32 s0, s0, s3"))
    e(salu("s_addc_u32 s1, s1, 0"))
    e(salu("s_load_dwordx8 s[4:11], s[0:1], 0"))
    e(salu("s_load_dwordx2 s[12:13], s[0:1], 32"))
    lane, tA, tB, tC, tD, tE = (vTMP[i] for i in range(6))
    e(valu("v_and_b32", lane, 63, V(0)))
    e(valu("v_lshrrev_b32", tA, 6, V(0)))
    e(Ins(f"v_readfirstlane_b32 {sW}, {tA}", "valu", defs=[sW], uses=[tA]))
    e(valu("v_lshlrev_b32", vL16, 4, lane))
    e(valu("v_lshrrev_b32", tA, 3, lane))
    e(valu("v_mul_u32_u24", tA, 896, tA))
    e(valu("v_and_b32", tB, 7, lane))
    e(valu("v_lshrrev_b32", tC, 4, lane))
    e(valu("v_xor_b32", tB, tB, tC))
    e(valu("v_lshl_add_u32", vXO[0], tB, 4, tA))
    e(valu("v_xor_b32", vXO[1], 64, vXO[0]))
    e(salu(f"s_mul_i32 {sM0V}, {sW}, {4 * VSTR}", uses=[sW]))
    e(salu(f"s_lshl_b32 {sOFFWQ}, {sW}, 15"))
    e(salu(f"s_lshl_b32 {sM0X}, {sW}, 12"))
    e(salu(f"s_add_u32 {sM0X}, {sM0X}, {XBASE}"))
    e(salu(f"s_mul_i32 {sOFFX}, {sW}, {32 * 896}"))
    e(raw("s_waitcnt lgkmcnt(0)", "wait"))

    def srd(d, ptr_lo, off_expr_reg, size):
        e(salu(f"s_add_u32 s{d.b}, s{ptr_lo}, {off_expr_reg}"))
        e(salu(f"s_addc_u32 s{d.b + 1}, s{ptr_lo + 1}, 0"))
        e(salu(f"s_mov_b32 s{d.b + 2}, {size}"))
        e(salu(f"s_mov_b32 s{d.b + 3}, 0x00020000"))

    e(salu(f"s_lshl_b32 s3, {sG}, 10"))
    srd(SRD_WQ, 10, "s3", 447 * 8192 + 1024)
    e(salu(f"s_mul_i32 s3, {sB}, 114688"))
    srd(SRD_X, 4, "s3", 114688)
    ext(dma_wq(0))
    ext(dma_x(0))
    ext(dma_wq(1))
    ext(dma_x(1))
    ext(dma_wq(2))
    e(salu(f"s_lshl_b32 s3, {sB}, 3"))
    e(salu(f"s_add_u32 s3, s3, {sG}"))
    e(salu(f"s_lshl_b32 s3, s3, 18"))
    srd(SRD_K, 6, "s3", 262144)
    srd(SRD_V, 8, "s3", 262144)
    e(salu(f"s_mul_i32 s3, {sG}, 458752"))
    srd(SRD_WO, 12, "s3", 458752)
    e(salu(f"s_lshl_b32 s3, {sBLK}, 4"))
    e(salu(f"s_add_u32 s3, s3, {sB}"))
    e(salu(f"s_lshl_b32 s3, s3, 3"))
    e(salu(f"s_add_u32 s3, s3, {sG}"))
    e(salu(f"s_mul_i32 s3, s3, {PART}"))
    srd(SRD_WS, 14, "s3", PART)
    e(salu(f"s_mov_b32 {sC}, {f32bits(CSCALE):#x}"))
    e(salu(f"s_mov_b32 {sTRAW}, {f32bits(TRAW):#x}"))
    e(salu(f"s_mov_b32 {sFLAG}, 0"))
    e(salu(f"s_mul_i32 {sM0K}, {sW}, {4 * KSTR}"))
    e(salu(f"s_lshl_b32 {sOFFKV}, {sW}, 11"))
    e(salu(f"s_lshl_b32 {sM0WO}, {sW}, 13"))
    e(salu(f"s_mul_i32 {sOFFWO}, {sW}, {64 * 896}"))
    e(salu(f"s_mul_i32 {sOFFWS}, {sW}, {14 * 2048}"))
    e(valu("v_lshrrev_b32", tA, 5, lane))
    e(valu("v_and_b32", tB, 31, lane))
    e(valu("v_lshlrev_b32", tC, 13, tA))
    e(valu("v_lshl_add_u32", vOFFKV, tB, 4, tC))
    e(valu("v_bfe_u32", tC, tB, 1, 3))
    e(valu("v_xor_b32", tC, tC, tA))
    e(valu("v_lshlrev_b32", tC, 4, tC))
    e(valu("v_lshl_add_u32", tC, tB, 7, tC))
    e(valu("v_add_u32", vAX[0], sM0X, tC))
    for sp in range(1, 4):
        e(valu("v_xor_b32", vAX[sp], sp << 5, vAX[0]))
    e(valu("v_and_b32", tC, 3, tB))
    e(valu("v_and_b32", tD, 4, tB))
    e(valu("v_lshl_add_u32", tC, tD, 1, tC))
    e(valu("v_and_b32", tD, 8, tB))
    e(valu("v_lshrrev_b32", tD, 1, tD))
    e(valu("v_add_u32", tC, tC, tD))
    e(valu("v_mul_u32_u24", vAK, KSTR, tC))
    e(valu("v_lshrrev_b32", tD, 4, tB))
    e(valu("v_lshl_add_u32", vAK, tD, 9, vAK))
    e(valu("v_lshl_add_u32", vAK, tA, 4, vAK))
    e(valu("v_bfe_u32", tE, lane, 2, 2))
    e(valu("v_lshl_add_u32", tC, tA, 3, tE))
    e(valu("v_and_b32", tD, 1, lane))
    e(valu("v_lshlrev_b32", tD, 4, tD))
    e(valu("v_and_b32", tB, 2, lane))
    e(valu("v_lshl_add_u32", tD, tB, 2, tD))
    e(valu("v_bfe_u32", tB, lane, 4, 1))
    e(valu("v_lshl_add_u32", tD, tB, 5, tD))
    e(valu("v_mul_u32_u24", vAV, VSTR, tC))
    e(valu("v_add_u32", vAV, vAV, tD))
    e(valu("v_add_u32", vAWQ, P1BASE, vAV))
    e(valu("v_add_u32", vAV, VBASE, vAV))
    e(valu("v_lshl_add_u32", tC, tC, 7, tD))
    e(valu("v_lshrrev_b32", tE, 1, tE))
    e(valu("v_lshlrev_b32", tE, 6, tE))
    e(valu("v_add_u32", vAWO[0][0], tC, tE))
    e(valu("v_xor_b32", tE, 64, tE))
    e(valu("v_add_u32", vAWO[0][1], tC, tE))
    e(valu("v_add_u32", vAWO[1][0], 2 * WOSLOT, vAWO[0][0]))
    e(valu("v_add_u32", vAWO[1][1], 2 * WOSLOT, vAWO[0][1]))
    e(valu("v_lshrrev_b32", tC, 3, lane))
    e(valu("v_mul_u32_u24", tC, 896, tC))
    e(valu("v_and_b32", tD, 7, lane))
    e(valu("v_lshlrev_b32", tB, 2, tB))
    e(valu("v_xor_b32", tD, tD, tB))
    e(valu("v_lshl_add_u32", vOFFWO, tD, 4, tC))
    if PFN:
        e(valu("v_lshlrev_b32", vL128, 7, lane))
        e(salu(f"s_cmp_lt_u32 {sW}, 2"))
        e(salu(f"s_cselect_b32 s96, s20, s24"))
        e(salu(f"s_cselect_b32 s97, s21, s25"))
        e(salu(f"s_mov_b32 s98, 262144"))
        e(salu(f"s_mov_b32 s99, 0x00020000"))
        e(salu(f"s_cselect_b32 {sPFOFF}, 5, 4"))
        e(salu(f"s_lshl_b32 {sPFOFF}, {sPFOFF}, 14"))
        e(salu(f"s_and_b32 s3, {sW}, 1"))
        e(salu(f"s_lshl_b32 s3, s3, 13"))
        e(salu(f"s_add_u32 {sPFOFF}, {sPFOFF}, s3"))
    if WARM:
        e(valu("v_lshrrev_b32", tA, 3, lane))
        e(valu("v_and_b32", tB, 7, lane))
        e(valu("v_lshlrev_b32", tA, 13, tA))
        e(valu("v_lshl_add_u32", vPFWQ, tB, 7, tA))
        if MAP == 0:
            e(salu(f"s_and_b32 s3, {sB}, 7"))
            e(salu(f"s_mul_i32 s3, s3, {56 * 8192}"))
            e(salu(f"s_lshl_b32 {sT2}, {sW}, 16"))
            e(salu(f"s_add_u32 {sT2}, {sT2}, s3"))
            e(pfload(vDUMMY, vPFWQ, SRD_WQ, sT2, tag=("pfw", 0), n=1))
            e(salu(f"s_add_u32 {sT2}, {sT2}, {4 << 16}"))
            e(pfload(vDUMMY, vPFWQ, SRD_WQ, sT2, tag=("pfw", 1), n=1))
        else:
            e(salu(f"s_mul_i32 s3, {sB}, {28 * 8192}"))
            e(salu(f"s_lshl_b32 {sT2}, {sW}, 16"))
            e(salu(f"s_add_u32 {sT2}, {sT2}, s3"))
            e(pfload(vDUMMY, vPFWQ, SRD_WQ, sT2, tag=("pfw", 0), n=1))
    e(WaitVM(("x", 0)))
    for s in range(4):
        ext(rd_x(s))
    e(barrier())

    LA = 6
    for f in range(LA):
        ext(rd_wq(f))
    pre = [dma_k(0), dma_k(1), dma_v(0), stage_ld(0, "v", 1), stage_ld(1, "v", 2), stage_ld(3, "k", 4),
           stage_ld(2, "v", 3), dma_k(2), dma_k(3)]
    kv_at = {}
    for st_, g_ in zip(KVAT, pre):
        kv_at.setdefault(st_, []).extend(g_)
    for s in range(28):
        if STAMP and s in (0, 14):
            ext(stamp())
        slots = []
        for nt in range(16):
            f = 16 * s + nt
            sl = [mfma(Qacc(nt), Wf(f), Xf(s), Qacc(nt) if s > 0 else 0)]
            if f + LA < 448:
                sl += rd_wq(f + LA)
            if nt == 3 and s + 1 < 28:
                if s == 23:
                    sl += [WaitAll(vm=False, lgkm=True)]
                sl += [WaitVM(("wq", s + 1)), barrier()]
            slots.append(sl)
        fill = []
        if s + NP1 - 1 < 28:
            fill += dma_wq(s + NP1 - 1)
        if s in kv_at:
            fill += kv_at[s]
        if PFN and s >= PFAT and (s - PFAT) % 2 == 0 and (s - PFAT) // 2 < PFN:
            fill += [salu(f"s_add_u32 {sT2}, {sPFOFF}, {((s - PFAT) // 2) * 16384}", defs=[sT2]),
                     pfload(vDUMMY, vL128, SRD_PF, sT2, tag=("pf", s), n=1, flags=PFF)]
        if s % 4 == 1 and (s + 3) // 4 < 7:
            pc = (s + 3) // 4
            fill += [WaitVM(("x", pc))]
            for s2 in range(4):
                fill += rd_x(4 * pc + s2)
        if s % 4 == 0 and s // 4 + 2 < 7:
            fill += [WaitAll(vm=False, lgkm=True)] if s == 0 else []
            fill += dma_x(s // 4 + 2)
        ext(interleave(slots, fill, start=4, end=14))

    ext(stamp())
    e(WaitVM(("k", 0)))
    e(barrier())
    for s3 in range(3):
        ext(rd_k(0, s3))
    e(valu("v_add_u32", vT[0], sM0V, vL16))
    e(valu("v_add_u32", vT[0], VBASE, vT[0]))
    e(valu("v_add_u32", vT[1], sM0K, vL16))
    e(valu("v_add_u32", vT[1], KS[4], vT[1]))
    e(valu("v_add_u32", vAK2, KS[4], vAK))
    drain = []
    for t in range(4):
        for i in range(4):
            if t < 3:
                drain.append(ds_write_b128(vT[0], STG(t)[4 * i: 4 * i + 4], VS[t + 1] + i * VSTR))
            else:
                drain.append(ds_write_b128(vT[1], STG(t)[4 * i: 4 * i + 4], i * KSTR))
    for qb in range(2):
        for s in range(16):
            acc = Qacc(qb * 8 + s // 2)
            for ee in range(8):
                e(valu("v_accvgpr_read_b32", vTMP[ee], acc[(s % 2) * 8 + ee]))
            for jj in range(4):
                e(valu("v_cvt_pk_bf16_f32", Qf(qb, s)[jj], vTMP[2 * jj], vTMP[2 * jj + 1]))
            if qb == 0:
                e(drain[s])
    e(WaitAll(vm=False, lgkm=True))

    ext(stamp())
    for j in range(17):
        p = j % 2
        if j in (4, 12):
            ext(stamp())
        fillA = softmax2(j - 1) if j >= 1 else []
        if j < 16:
            slots = []
            for s in range(16):
                for qb in range(2):
                    sl = [mfma(Sb(p, qb), Kf(s), Qf(qb, s), Sb(p, qb) if s > 0 else 0)]
                    if qb == 0:
                        if s + 3 < 16:
                            sl += rd_k(j, s + 3)
                        elif j >= 1:
                            sl += rd_v(j - 1, s + 3 - 16)
                    slots.append(sl)
            ext(interleave(slots, fillA, start=0, end=30))
        else:
            for f in range(3):
                ext(rd_v(j - 1, f))
            ext(fillA)
        if j >= 2:
            ext(resc_check())
        waits = []
        if j + 1 < 16:
            waits.append(("k", j + 1))
        if j < 16:
            waits.append(("v", j))
        grp = []
        if j + NK < 16:
            grp += dma_k(j + NK)
        if 4 <= j + 2 < 16:
            grp += dma_v(j + 2)
        if j == 13:
            grp += dma_wo(0)
        if j == 15:
            grp += dma_wo(1) + dma_wo(3)
        sync = [WaitVM(waits), barrier()] if j < 16 else []
        fillB = softmax1(j) if j < 16 else []
        if j == 16:
            for qb in range(2):
                fillB.append(valu("v_mov_b32", vU[qb], vL[qb]))
            for qb in range(2):
                fillB.append(Ins(f"v_permlane32_swap_b32 {vL[qb]}, {vU[qb]}", "perm",
                                 defs=[vL[qb], vU[qb]], uses=[vL[qb], vU[qb]]))
            for qb in range(2):
                fillB.append(valu("v_add_f32", vL[qb], vL[qb], vU[qb]))
            for qb in range(2):
                fillB.append(valu("v_rcp_f32", vL[qb], vL[qb]))
        if j >= 1:
            slots = []
            for f in range(16):
                dt, ks = divmod(f, 2)
                for qb in range(2):
                    sl = [mfma(Oacc(dt, qb), Vf(f), Pf(1 - p, qb, ks),
                               Oacc(dt, qb) if (j > 1 or ks > 0) else 0)]
                    if qb == 0:
                        if f + 3 < 16:
                            sl += rd_v(j - 1, f + 3)
                        elif j + 1 < 16:
                            sl += rd_k(j + 1, f + 3 - 16)
                    if f == 0 and qb == 1:
                        sl += sync
                    slots.append(sl)
            ext(interleave(slots, grp + fillB, start=2, end=32))
        else:
            ext(sync)
            ext(grp)
            for s3 in range(3):
                ext(rd_k(1, s3))
            ext(fillB)

    ext(stamp())
    e(WaitVM(("wo", 0)))
    e(barrier())
    ext(dma_wo(2))
    for f in range(LA):
        ext(rd_wo(f))
    CLA = 2
    for ksg in range(CLA):
        ext(conv_o(ksg))

    ext(stamp())
    for sg in range(14):
        ps, hs = divmod(sg, 2)
        if sg in (2, 8):
            ext(stamp())
        slots = []
        for r in range(32):
            f = 32 * sg + r
            ks, tt = divmod(r, 2)
            ksg = 16 * hs + ks
            acc = Wacc(ps % 2, tt)
            sl = [mfma(acc, Wf(f), Of(ksg), acc if ksg > 0 else 0)]
            if f + LA < 448:
                sl += rd_wo(f + LA)
            if ps == 0 and ksg + CLA < 32:
                cv = conv_o(ksg + CLA)
                sl += cv[:10] if tt == 0 else cv[10:]
            if r == 3 and sg + 1 < 14:
                sl += [WaitVM(("wo", sg + 1)), barrier()]
            slots.append(sl)
        fill = []
        if sg >= 1 and sg + 3 < 14:
            fill += dma_wo(sg + 3)
        if ps >= 1:
            sp_ = store_pass(ps - 1)
            for k in range(2):
                if not env("NOST", 0):
                    slots[10 + 12 * k] += sp_[2 * hs + k]
        ext(interleave(slots, fill, start=4, end=26))

    ext(stamp())
    for g_ in store_pass(6):
        ext(g_)
    if STAMP:
        e(WaitAll())
    ext(stamp())
    ext(stamp(True))
    ext(stamp_store())
    e(label("L_end"))
    e(raw("s_endpgm"))

    lines = finalize(st)

    sub = []
    s_ = sub.append
    s_(label("L_slow"))
    s_(nop(2))
    for qb in range(2):
        s_(valu("v_max_f32", vMR[qb], vMR[qb], vT[qb]))
        s_(valu("v_mul_f32", vU[qb], sC, vMR[qb]))
        s_(valu("v_sub_f32", vAL[qb], vM[qb], vU[qb]))
        s_(valu("v_exp_f32", vAL[qb], vAL[qb]))
        s_(valu("v_mov_b32", vM[qb], vU[qb]))
        s_(valu("v_add_f32", vTHR[qb], sTRAW, vMR[qb]))
        s_(valu("v_mul_f32", vL[qb], vL[qb], vAL[qb]))
    s_(salu(f"s_mov_b32 {sFLAG}, 1"))
    s_(nop(2))
    s_(raw(f"s_setpc_b64 {sRET}"))
    s_(label("L_resc"))
    s_(nop(16))
    tt = [vU[0], vU[1], vT[0], vT[1]]
    for dt in range(8):
        for qb in range(2):
            acc = Oacc(dt, qb)
            for r0 in range(0, 16, 4):
                for k in range(4):
                    s_(valu("v_accvgpr_read_b32", tt[k], acc[r0 + k]))
                for k in range(4):
                    s_(valu("v_mul_f32", tt[k], tt[k], vAL[qb]))
                for k in range(4):
                    s_(valu("v_accvgpr_write_b32", acc[r0 + k], tt[k]))
    s_(salu(f"s_mov_b32 {sFLAG}, 0"))
    s_(nop(4))
    s_(raw(f"s_setpc_b64 {sRET}"))
    lines += finalize(sub)
    return lines


def gen_k2():
    st = []
    e = st.append
    e(salu("s_cmp_ge_u32 s2, 896"))
    e(salu("s_cbranch_scc1 L2_end"))
    e(salu("s_load_dwordx2 s[4:5], s[0:1], 80"))
    e(salu("s_load_dwordx2 s[6:7], s[0:1], 96"))
    e(salu("s_and_b32 s8, s2, 1"))
    e(salu("s_lshr_b32 s9, s2, 1"))
    e(salu("s_mul_i32 s10, s9, 4682"))
    e(salu("s_lshr_b32 s10, s10, 16"))
    e(salu("s_mul_i32 s11, s10, 14"))
    e(salu("s_sub_u32 s11, s9, s11"))
    lane, w, t1, t2 = V(1), V(2), V(3), V(4)
    e(valu("v_and_b32", lane, 63, V(0)))
    e(valu("v_lshrrev_b32", w, 6, V(0)))
    e(valu("v_mul_u32_u24", t1, 14 * 2048, w))
    e(valu("v_lshl_add_u32", t1, lane, 4, t1))
    e(salu("s_lshl_b32 s12, s11, 11"))
    e(salu("s_lshl_b32 s13, s8, 10"))
    e(salu("s_add_u32 s12, s12, s13"))
    e(valu("v_add_u32", t1, S(12), t1))
    e(salu("s_and_b32 s13, s10, 15"))
    e(salu("s_lshr_b32 s14, s10, 4"))
    e(salu("s_mul_i32 s13, s13, 229376"))
    e(salu("s_mul_i32 s14, s14, 896"))
    e(salu("s_add_u32 s13, s13, s14"))
    e(salu("s_lshl_b32 s14, s11, 6"))
    e(salu("s_add_u32 s13, s13, s14"))
    e(salu("s_lshl_b32 s14, s8, 5"))
    e(salu("s_add_u32 s13, s13, s14"))
    e(valu("v_and_b32", t2, 31, lane))
    e(valu("v_lshl_add_u32", t2, w, 5, t2))
    e(valu("v_mul_u32_u24", t2, 1792, t2))
    e(valu("v_lshrrev_b32", lane, 5, lane))
    e(valu("v_lshl_add_u32", t2, lane, 4, t2))
    e(valu("v_add_u32", t2, S(13), t2))
    e(raw("s_waitcnt lgkmcnt(0)", "wait"))
    e(salu("s_mov_b32 s16, s4"))
    e(salu("s_mov_b32 s17, s5"))
    e(salu(f"s_mov_b32 s18, {16 * 128 * 896 * 2}"))
    e(salu("s_mov_b32 s19, 0x00020000"))
    e(salu(f"s_mul_i32 s14, s10, {8 * PART}"))
    e(salu("s_add_u32 s20, s6, s14"))
    e(salu("s_addc_u32 s21, s7, 0"))
    e(salu(f"s_mov_b32 s22, {8 * PART}"))
    e(salu("s_mov_b32 s23, 0x00020000"))
    e(salu("s_mov_b32 s32, 0xffff0000"))
    so, sw = S(16, 4), S(20, 4)
    for g in range(8):
        e(salu(f"s_mov_b32 s{24 + g}, {g * PART}"))
    for g in range(8):
        e(bload(V(8 + g * 4, 4), t1, sw, S(24 + g), flags=K2F))
    acc = V(40, 8)
    tmp = V(48, 8)
    for g in range(8):
        for jj in range(4):
            src = V(8 + g * 4 + jj)
            dlo, dhi = (acc[2 * jj], acc[2 * jj + 1]) if g == 0 else (tmp[2 * jj], tmp[2 * jj + 1])
            e(valu("v_lshlrev_b32", dlo, 16, src))
            e(valu("v_and_b32", dhi, S(32), src))
        if g:
            for k in range(8):
                e(valu("v_add_f32", acc[k], acc[k], tmp[k]))
    for jj in range(4):
        e(valu("v_cvt_pk_bf16_f32", V(56 + jj), acc[2 * jj], acc[2 * jj + 1]))
    e(bstore(V(56, 4), t2, so, 0))
    if STAMP == 3:
        e(salu("s_cmp_lg_u32 s2, 0"))
        e(salu("s_cbranch_scc1 L2_end"))
        e(salu("s_load_dwordx2 s[16:17], s[0:1], 88"))
        e(salu(f"s_add_u32 s20, s6, {64 << 20}"))
        e(salu("s_addc_u32 s21, s7, 0"))
        e(salu("s_mov_b32 s22, 64"))
        e(salu("s_mov_b32 s18, 64"))
        e(valu("v_lshlrev_b32", V(3), 2, V(0)))
        e(raw("s_waitcnt lgkmcnt(0)", "wait"))
        e(bload(V(5), V(3), sw, 0, n=1))
        e(bstore(V(5), V(3), so, 0, n=1))
    e(label("L2_end"))
    e(raw("s_endpgm"))
    return finalize(st)


HEADER = open(os.path.join(os.path.dirname(os.path.abspath(__file__)), "header.txt")).read()


def kd(name, vgpr, accum, sgpr):
    return f""".amdhsa_kernel {name}
  .amdhsa_next_free_vgpr {vgpr}
  .amdhsa_next_free_sgpr {sgpr}
  .amdhsa_accum_offset {accum}
  .amdhsa_group_segment_fixed_size 0
  .amdhsa_kernarg_size 104
  .amdhsa_user_sgpr_count 2
  .amdhsa_user_sgpr_kernarg_segment_ptr 1
  .amdhsa_system_sgpr_workgroup_id_x 1
.end_amdhsa_kernel
"""


def main():
    out = HEADER
    out += f"; @launch kernel={K1} grid=(256,1,1) block=(256,1,1) lds={LDS_BYTES}\n"
    out += f"; @launch kernel={K2} grid=(896,1,1) block=(256,1,1) lds=0\n"
    out += '.amdgcn_target "amdgcn-amd-amdhsa--gfx950"\n.text\n'
    for name, gen in ((K1, gen_k1), (K2, gen_k2)):
        out += f".globl {name}\n.p2align 8\n.type {name},@function\n{name}:\n"
        out += "\n".join(gen()) + "\n"
    out += '.section .rodata,"a"\n.p2align 6\n'
    out += kd(K1, 512, 256, 102)
    out += ".p2align 6\n"
    out += kd(K2, 64, 64, 40)
    dst = sys.argv[1] if len(sys.argv) > 1 else f"cdna_kernels/{NAME}.s"
    open(dst, "w").write(out)
    print("wrote", dst, len(out), "bytes", out.count("\n"), "lines")


if __name__ == "__main__":
    main()
```

```python
import math
import struct
import sys
import os

sys.path.insert(0, os.path.dirname(os.path.abspath(__file__)))
from asmir import *

NAME = "concat_heads__gqa_block_cached__gqa_block_cached__near_ridge"
K1 = NAME + "_kernel"
K2 = "reduce_out_kernel"


def f32bits(x):
    return struct.unpack("<I", struct.pack("<f", x))[0]


def env(k, d):
    return type(d)(os.environ.get(k, d))


CSCALE = math.log2(math.e) / 16.0
TLOG2 = 8.0
TRAW = TLOG2 / CSCALE
KVF = env("KVF", "nt")
WQF = env("WQF", "")
XF = env("XF", "")
WOF = env("WOF", "")
STF = env("STF", "")
K2F = env("K2F", "")
STAMP = env("STAMP", 0)
WARM = env("WARM", 2)
SMOOTH = env("SMOOTH", 1)
MAP = env("MAP", 1)
KVAT = [int(x) for x in env("KVAT", "2,4,6,8,10,12,14,23,25").split(",")]
NG1 = env("NG1", 3)
NPRE = 6
CODEW = env("CODEW", 0)
FINE = env("FINE", 0)
STS = (0, 1, 2, 4, 8, 14) if FINE else (0, 14)

SRD_X, SRD_K, SRD_V, SRD_WQ, SRD_WO, SRD_WS = (S(16, 4), S(20, 4), S(24, 4), S(28, 4), S(32, 4), S(36, 4))
sW, sG, sB, sBLK, sC = S(40), S(41), S(42), S(43), S(44)
sM0V, sOFFWQ, sM0K, sM0X, sOFFKV = S(45), S(46), S(47), S(48), S(49)
sT0, sT1 = S(50), S(51)
sMASK0, sMASK1 = S(52, 2), S(54, 2)
sFLAG = S(56)
sOFFX = S(57)
sRET = S(58, 2)
sM0WO = S(60)
sOFFWS = S(61)
sTRAW = S(62)
sOFFWO = S(63)
sT2 = S(100)


def Qf(qb, s):
    return V((qb * 16 + s) * 4, 4)


def Xf(s):
    return V(s * 4, 4)


def Of(ks):
    return V(ks * 4, 4)


def Sb(p, qb):
    return V(128 + p * 32 + qb * 16, 16)


def Kf(i):
    return V(192 + (i % 4) * 4, 4)


def Vf(i):
    return V(208 + (i % 4) * 4, 4)


def Wf(i):
    return V(192 + (i % 8) * 4, 4)


def Wacc(buf, tt):
    return V(128 + buf * 32 + tt * 16, 16)


vAK, vAV, vOFFKV, vL16 = V(224), V(225), V(226), V(227)
vM = [V(228), V(229)]
vTHR = [V(230), V(231)]
vL = [V(232), V(233)]
vAL = [V(234), V(235)]
vT = [V(236), V(237)]
vU = [V(238), V(239)]
vTMP = V(240, 8)
vMR = [V(248), V(249)]
vAWQ = V(250)
vOFFWO = V(251)
vAWO = [[V(252), V(253)], [V(254), V(255)]]
vXO = [V(112), V(113)]
vAX = V(114, 4)
vDUMMY, vPFWQ, vL128 = V(118), V(119), V(120)
SRD_PF = S(96, 4)
sPFOFF = S(101)
PFN = env("PFN", 0)
PFF = env("PFF", "")
PFAT = env("PFAT", 16)
vAV2 = vAWQ


def STG(t):
    return V(128 + 16 * t, 16)

KSTR, VSTR = 1040, 1088
KSLOT, VSLOT = 16 * KSTR, 16 * VSTR
VBASE = 4 * KSLOT
NK, NV = 4, 5
KS = [i * KSLOT for i in range(4)]
VS = [i * VSLOT for i in range(NV)]
P1BASE = VBASE + VSLOT
NP1 = 4
XBASE = 2 * KSLOT
assert XBASE + 32768 <= 4 * KSLOT
WOSLOT = 32768
LDS_BYTES = 163840
PART = 4 * 14 * 2048
assert P1BASE + NP1 * VSLOT <= LDS_BYTES


def Oacc(dt, qb):
    return A((dt * 2 + qb) * 16, 16)


def Qacc(nt):
    return A(nt * 16, 16)


def barrier():
    return raw("s_barrier", "other", cost=4)


_nst = 0


def stamp(real=False):
    global _nst
    if not STAMP:
        return []
    i = _nst
    _nst += 1
    assert i < 16
    op = "s_memrealtime" if (real or STAMP >= 2) else "s_memtime"
    return [raw(f"{op} s[{64 + 2 * i}:{65 + 2 * i}]", "salu", cost=2)]


def stamp_store():
    if not STAMP:
        return []
    if STAMP == 3:
        out = [raw("s_waitcnt lgkmcnt(0)", "wait"),
               salu(f"s_cmp_lg_u32 {sW}, 0"), salu("s_cbranch_scc1 L_end"),
               salu(f"s_cmp_lg_u32 s2, 77"), salu("s_cbranch_scc1 L_end"),
               salu(f"s_add_u32 s4, s14, {64 << 20}"), salu("s_addc_u32 s5, s15, 0"),
               salu("s_mov_b32 s6, 256"), salu("s_mov_b32 s7, 0x00020000"),
               valu("v_mov_b32", V(2), 0)]
        for i in range(_nst):
            out.append(salu(f"s_sub_u32 s3, s{64 + 2 * i}, s64"))
            out.append(valu("v_mov_b32", V(4 + i), S(3)))
            out.append(bstore(V(4 + i), V(2), S(4, 4), 0, off=i * 4, n=1))
        return out
    out = [raw("s_waitcnt lgkmcnt(0)", "wait"),
           salu(f"s_cmp_lg_u32 {sW}, 0"), salu("s_cbranch_scc1 L_end"),
           salu("s_lshl_b32 s3, s2, 7"), salu(f"s_add_u32 s3, s3, {64 << 20}"),
           salu("s_add_u32 s4, s14, s3"), salu("s_addc_u32 s5, s15, 0"),
           salu("s_mov_b32 s6, 128"), salu("s_mov_b32 s7, 0x00020000"),
           valu("v_mov_b32", V(2), 0)]
    for i in range(_nst):
        out.append(valu("v_mov_b32", V(4 + 2 * i), S(64 + 2 * i)))
        out.append(valu("v_mov_b32", V(5 + 2 * i), S(65 + 2 * i)))
        out.append(bstore(V(4 + 2 * i, 2), V(2), S(4, 4), 0, off=i * 8, n=2))
    return out


def dma_wq(s):
    out = []
    for i in range(4):
        out.append(setm0(f"s_add_u32 m0, {sM0V}, {P1BASE + (s % NP1) * VSLOT + i * VSTR}"))
        out.append(salu(f"s_add_u32 {sT0}, {sOFFWQ}, {(16 * s + i) * 8192}", defs=[sT0]))
        out.append(dma(vL16, SRD_WQ, sT0, tag=("wq", s), flags=WQF))
    return out


def dma_x(pc):
    out = []
    for i in range(4):
        out.append(setm0(f"s_add_u32 m0, {sM0X}, {(pc % 2) * 16384 + i * 1024}"))
        out.append(salu(f"s_add_u32 {sT1}, {sOFFX}, {pc * 128 + i * 8 * 896}", defs=[sT1]))
        out.append(dma(vXO[i % 2], SRD_X, sT1, tag=("x", pc), flags=XF))
    return out


def dma_k(j):
    out = [salu(f"s_add_u32 {sT1}, {sOFFKV}, {j * 16384}", defs=[sT1])]
    for i in range(4):
        out.append(setm0(f"s_add_u32 m0, {sM0K}, {KS[j % NK] + i * (KSTR - 512)}"))
        out.append(dma(vOFFKV, SRD_K, sT1, off=i * 512, tag=("k", j), flags=KVF))
    return out


def dma_v(j):
    out = [salu(f"s_add_u32 {sT1}, {sOFFKV}, {j * 16384}", defs=[sT1])]
    for i in range(4):
        out.append(setm0(f"s_add_u32 m0, {sM0V}, {VBASE + VS[j % NV] + i * (VSTR - 512)}"))
        out.append(dma(vOFFKV, SRD_V, sT1, off=i * 512, tag=("v", j), flags=KVF))
    return out


def dma_wo(sg):
    ps, hs = divmod(sg, 2)
    out = []
    for i in range(8):
        out.append(setm0(f"s_add_u32 m0, {sM0WO}, {(sg % 4) * WOSLOT + i * 1024}"))
        out.append(salu(f"s_add_u32 {sT1}, {sOFFWO}, {(256 * hs + 8 * i) * 896 + 128 * ps}", defs=[sT1]))
        out.append(dma(vOFFWO, SRD_WO, sT1, tag=("wo", sg), flags=WOF))
    return out


def pfload(*a, **kw):
    i = bload(*a, **kw)
    i.defs = set()
    return i


def rd_wq(f):
    s, nt = divmod(f, 16)
    d = Wf(f)
    off = (s % NP1) * VSLOT + nt * 64
    return [ds_read_tr(d[0:2], vAWQ, off), ds_read_tr(d[2:4], vAWQ, off + 4 * VSTR)]


def rd_x(s):
    pc, sp = divmod(s, 4)
    return [ds_read_b128(Xf(s), vAX[sp], (pc % 2) * 16384)]


def rd_k(j, s):
    return [ds_read_b128(Kf(s), vAK, KS[j % NK] + s * 32)]


def stage_ld(t, kind, j):
    out = [salu(f"s_add_u32 {sT1}, {sOFFKV}, {j * 16384}", defs=[sT1])]
    for i in range(4):
        out.append(bload(STG(t)[4 * i: 4 * i + 4], vOFFKV, SRD_K if kind == "k" else SRD_V, sT1,
                         off=i * 512, tag=("stg", t), flags=KVF))
    return out


def rd_v(j, f):
    dt, ks = divmod(f, 2)
    d = Vf(f)
    base, off = (vAV2, 0) if j % NV == 4 else (vAV, VS[j % NV])
    off += ks * 512 + dt * 64
    return [ds_read_tr(d[0:2], base, off), ds_read_tr(d[2:4], base, off + 4 * VSTR)]


def rd_wo(f):
    sg, r = divmod(f, 32)
    ks, tt = divmod(r, 2)
    slot = sg % 4
    base = vAWO[slot // 2][tt]
    off = (slot % 2) * WOSLOT + ks * 2048
    d = Wf(f)
    return [ds_read_tr(d[0:2], base, off), ds_read_tr(d[2:4], base, off + 512)]


def sm_max(p):
    out = []
    for qb in range(2):
        s_ = Sb(p, qb)
        t = vT[qb]
        out.append(valu("v_max3_f32", t, s_[0], s_[1], s_[2]))
        for r in range(3, 15, 2):
            out.append(valu("v_max3_f32", t, t, s_[r], s_[r + 1]))
        out.append(valu("v_max_f32", t, t, s_[15]))
    for qb in range(2):
        out.append(valu("v_mov_b32", vU[qb], vT[qb]))
    for qb in range(2):
        out.append(Ins(f"v_permlane32_swap_b32 {vT[qb]}, {vU[qb]}", "perm", defs=[vT[qb], vU[qb]],
                       uses=[vT[qb], vU[qb]]))
    for qb in range(2):
        out.append(valu("v_max_f32", vT[qb], vT[qb], vU[qb]))
    return out


_lbl = 0


def sm_check(first):
    global _lbl
    out = []
    if first:
        for qb in range(2):
            out.append(valu("v_mov_b32", vMR[qb], vT[qb]))
            out.append(valu("v_mul_f32", vM[qb], sC, vT[qb]))
            out.append(valu("v_add_f32", vTHR[qb], sTRAW, vT[qb]))
            out.append(valu("v_mov_b32", vL[qb], 0))
        return out
    out.append(valu("v_cmp_gt_f32", sMASK0, vT[0], vTHR[0]))
    out.append(valu("v_cmp_gt_f32", sMASK1, vT[1], vTHR[1]))
    _lbl += 1
    out.append(Group([
        salu(f"s_or_b64 {sMASK0}, {sMASK0}, {sMASK1}", defs=[sMASK0], uses=[sMASK0, sMASK1]),
        salu(f"s_cbranch_scc0 L_noslow{_lbl}"),
        Ins(f"s_call_b64 {sRET}, L_slow", "salu", cost=2,
            defs=vM + vTHR + vL + vAL + vMR + vU, uses=vM + vTHR + vL + vT + vMR),
        label(f"L_noslow{_lbl}")]))
    return out


def sm_exp(p, qb, grp):
    s_ = Sb(p, qb)
    out = []
    rs = range(4 * grp, 4 * grp + 4)
    for r in rs:
        out.append(valu("v_fma_f32", s_[r], s_[r], sC, ("-", vM[qb])))
    for r in rs:
        out.append(valu("v_exp_f32", s_[r], s_[r]))
    for r in rs:
        out.append(valu("v_add_f32", vL[qb], vL[qb], s_[r]))
    ks, g2 = divmod(grp, 2)
    for jj in range(2):
        j = 2 * g2 + jj
        out.append(valu("v_cvt_pk_bf16_f32", s_[8 * ks + j], s_[8 * ks + 2 * j], s_[8 * ks + 2 * j + 1]))
    return out


def Pf(p, qb, ks):
    return Sb(p, qb)[8 * ks: 8 * ks + 4]


def resc_check():
    global _lbl
    _lbl += 1
    return [
        salu(f"s_cmp_eq_u32 {sFLAG}, 0", uses=[sFLAG]),
        salu(f"s_cbranch_scc1 L_nores{_lbl}"),
        Ins(f"s_call_b64 {sRET}, L_resc", "salu", cost=2),
        label(f"L_nores{_lbl}"),
    ]


def softmax1(j):
    p = j % 2
    if j == 0:
        return []
    out = sm_max(p) + sm_check(False)
    for gi in range(8 if j == 15 else NG1):
        out += sm_exp(p, gi // 4, gi % 4)
    return out


def softmax2(j):
    p = j % 2
    if j == 15:
        return []
    out = []
    if j == 0:
        out = sm_max(p) + sm_check(True)
    for gi in range(0 if j == 0 else NG1, 8):
        out += sm_exp(p, gi // 4, gi % 4)
    return out


def conv_o(ksg):
    qb, s = divmod(ksg, 16)
    dt, hf = divmod(s, 2)
    acc = Oacc(dt, qb)
    out = []
    for ee in range(8):
        out.append(valu("v_accvgpr_read_b32", vTMP[ee], acc[hf * 8 + ee]))
    for ee in range(8):
        out.append(valu("v_mul_f32", vTMP[ee], vTMP[ee], vL[qb]))
    for jj in range(4):
        out.append(valu("v_cvt_pk_bf16_f32", Of(ksg)[jj], vTMP[2 * jj], vTMP[2 * jj + 1]))
    return out


def store_pass(ps):
    out = []
    for tt in range(2):
        acc = Wacc(ps % 2, tt)
        for sp in range(2):
            g = []
            for jj in range(4):
                g.append(valu("v_cvt_pk_bf16_f32", acc[8 * sp + jj], acc[8 * sp + 2 * jj], acc[8 * sp + 2 * jj + 1]))
            g.append(salu(f"s_add_u32 {sT0}, {sOFFWS}, {ps * 4096}", defs=[sT0]))
            g.append(bstore(acc[8 * sp: 8 * sp + 4], vL16, SRD_WS, sT0, off=(2 * tt + sp) * 1024, flags=STF))
            out.append(g)
    return out


def gen_k1():
    st = []
    e = st.append
    ext = st.extend
    ext(stamp(True))
    ext(stamp())
    e(salu("s_cmp_ge_u32 s2, 256"))
    e(salu("s_cbranch_scc1 L_end"))
    if MAP == 0:
        e(salu(f"s_and_b32 {sG}, s2, 7"))
        e(salu(f"s_lshr_b32 s3, s2, 6"))
        e(salu(f"s_xor_b32 {sG}, {sG}, s3"))
        e(salu(f"s_lshr_b32 {sB}, s2, 3"))
        e(salu(f"s_and_b32 {sB}, {sB}, 15"))
        e(salu(f"s_lshr_b32 {sBLK}, s2, 7"))
    else:
        e(salu(f"s_bfe_u32 {sBLK}, s2, 0x10002"))
        e(salu(f"s_and_b32 {sG}, s2, 3"))
        e(salu(f"s_lshl_b32 {sG}, {sG}, 1"))
        e(salu(f"s_bfe_u32 s3, s2, 0x10003"))
        e(salu(f"s_or_b32 {sG}, {sG}, s3"))
        e(salu(f"s_lshr_b32 {sB}, s2, 4"))
    e(salu(f"s_load_dwordx2 s[14:15], s[0:1], 96"))
    e(salu(f"s_mul_i32 s3, {sBLK}, 40"))
    e(salu("s_add_u32 s0, s0, s3"))
    e(salu("s_addc_u32 s1, s1, 0"))
    e(salu("s_load_dwordx8 s[4:11], s[0:1], 0"))
    e(salu("s_load_dwordx2 s[12:13], s[0:1], 32"))
    lane, tA, tB, tC, tD, tE = (vTMP[i] for i in range(6))
    e(valu("v_and_b32", lane, 63, V(0)))
    e(valu("v_lshrrev_b32", tA, 6, V(0)))
    e(Ins(f"v_readfirstlane_b32 {sW}, {tA}", "valu", defs=[sW], uses=[tA]))
    e(valu("v_lshlrev_b32", vL16, 4, lane))
    e(valu("v_lshrrev_b32", tA, 3, lane))
    e(valu("v_mul_u32_u24", tA, 896, tA))
    e(valu("v_and_b32", tB, 7, lane))
    e(valu("v_lshrrev_b32", tC, 4, lane))
    e(valu("v_xor_b32", tB, tB, tC))
    e(valu("v_lshl_add_u32", vXO[0], tB, 4, tA))
    e(valu("v_xor_b32", vXO[1], 64, vXO[0]))
    e(salu(f"s_mul_i32 {sM0V}, {sW}, {4 * VSTR}", uses=[sW]))
    e(salu(f"s_lshl_b32 {sOFFWQ}, {sW}, 15"))
    e(salu(f"s_lshl_b32 {sM0X}, {sW}, 12"))
    e(salu(f"s_add_u32 {sM0X}, {sM0X}, {XBASE}"))
    e(salu(f"s_mul_i32 {sOFFX}, {sW}, {32 * 896}"))
    e(raw("s_waitcnt lgkmcnt(0)", "wait"))

    def srd(d, ptr_lo, off_expr_reg, size):
        e(salu(f"s_add_u32 s{d.b}, s{ptr_lo}, {off_expr_reg}"))
        e(salu(f"s_addc_u32 s{d.b + 1}, s{ptr_lo + 1}, 0"))
        e(salu(f"s_mov_b32 s{d.b + 2}, {size}"))
        e(salu(f"s_mov_b32 s{d.b + 3}, 0x00020000"))

    e(salu(f"s_lshl_b32 s3, {sG}, 10"))
    srd(SRD_WQ, 10, "s3", 447 * 8192 + 1024)
    e(salu(f"s_mul_i32 s3, {sB}, 114688"))
    srd(SRD_X, 4, "s3", 114688)
    ext(dma_wq(0))
    ext(dma_x(0))
    ext(dma_wq(1))
    ext(dma_x(1))
    ext(dma_wq(2))
    e(salu(f"s_lshl_b32 s3, {sB}, 3"))
    e(salu(f"s_add_u32 s3, s3, {sG}"))
    e(salu(f"s_lshl_b32 s3, s3, 18"))
    srd(SRD_K, 6, "s3", 262144)
    srd(SRD_V, 8, "s3", 262144)
    e(salu(f"s_mul_i32 s3, {sG}, 458752"))
    srd(SRD_WO, 12, "s3", 458752)
    e(salu(f"s_lshl_b32 s3, {sBLK}, 4"))
    e(salu(f"s_add_u32 s3, s3, {sB}"))
    e(salu(f"s_lshl_b32 s3, s3, 3"))
    e(salu(f"s_add_u32 s3, s3, {sG}"))
    e(salu(f"s_mul_i32 s3, s3, {PART}"))
    srd(SRD_WS, 14, "s3", PART)
    e(salu(f"s_mov_b32 {sC}, {f32bits(CSCALE):#x}"))
    e(salu(f"s_mov_b32 {sTRAW}, {f32bits(TRAW):#x}"))
    e(salu(f"s_mov_b32 {sFLAG}, 0"))
    e(salu(f"s_mul_i32 {sM0K}, {sW}, {4 * KSTR}"))
    e(salu(f"s_lshl_b32 {sOFFKV}, {sW}, 11"))
    e(salu(f"s_lshl_b32 {sM0WO}, {sW}, 13"))
    e(salu(f"s_mul_i32 {sOFFWO}, {sW}, {64 * 896}"))
    e(salu(f"s_mul_i32 {sOFFWS}, {sW}, {14 * 2048}"))
    e(valu("v_lshrrev_b32", tA, 5, lane))
    e(valu("v_and_b32", tB, 31, lane))
    e(valu("v_lshlrev_b32", tC, 13, tA))
    e(valu("v_lshl_add_u32", vOFFKV, tB, 4, tC))
    e(valu("v_bfe_u32", tC, tB, 1, 3))
    e(valu("v_xor_b32", tC, tC, tA))
    e(valu("v_lshlrev_b32", tC, 4, tC))
    e(valu("v_lshl_add_u32", tC, tB, 7, tC))
    e(valu("v_add_u32", vAX[0], sM0X, tC))
    for sp in range(1, 4):
        e(valu("v_xor_b32", vAX[sp], sp << 5, vAX[0]))
    e(valu("v_and_b32", tC, 3, tB))
    e(valu("v_and_b32", tD, 4, tB))
    e(valu("v_lshl_add_u32", tC, tD, 1, tC))
    e(valu("v_and_b32", tD, 8, tB))
    e(valu("v_lshrrev_b32", tD, 1, tD))
    e(valu("v_add_u32", tC, tC, tD))
    e(valu("v_mul_u32_u24", vAK, KSTR, tC))
    e(valu("v_lshrrev_b32", tD, 4, tB))
    e(valu("v_lshl_add_u32", vAK, tD, 9, vAK))
    e(valu("v_lshl_add_u32", vAK, tA, 4, vAK))
    e(valu("v_bfe_u32", tE, lane, 2, 2))
    e(valu("v_lshl_add_u32", tC, tA, 3, tE))
    e(valu("v_and_b32", tD, 1, lane))
    e(valu("v_lshlrev_b32", tD, 4, tD))
    e(valu("v_and_b32", tB, 2, lane))
    e(valu("v_lshl_add_u32", tD, tB, 2, tD))
    e(valu("v_bfe_u32", tB, lane, 4, 1))
    e(valu("v_lshl_add_u32", tD, tB, 5, tD))
    e(valu("v_mul_u32_u24", vAV, VSTR, tC))
    e(valu("v_add_u32", vAV, vAV, tD))
    e(valu("v_add_u32", vAWQ, P1BASE, vAV))
    e(valu("v_add_u32", vAV, VBASE, vAV))
    e(valu("v_lshl_add_u32", tC, tC, 7, tD))
    e(valu("v_lshrrev_b32", tE, 1, tE))
    e(valu("v_lshlrev_b32", tE, 6, tE))
    e(valu("v_add_u32", vAWO[0][0], tC, tE))
    e(valu("v_xor_b32", tE, 64, tE))
    e(valu("v_add_u32", vAWO[0][1], tC, tE))
    e(valu("v_add_u32", vAWO[1][0], 2 * WOSLOT, vAWO[0][0]))
    e(valu("v_add_u32", vAWO[1][1], 2 * WOSLOT, vAWO[0][1]))
    e(valu("v_lshrrev_b32", tC, 3, lane))
    e(valu("v_mul_u32_u24", tC, 896, tC))
    e(valu("v_and_b32", tD, 7, lane))
    e(valu("v_lshlrev_b32", tB, 2, tB))
    e(valu("v_xor_b32", tD, tD, tB))
    e(valu("v_lshl_add_u32", vOFFWO, tD, 4, tC))
    if PFN:
        e(valu("v_lshlrev_b32", vL128, 7, lane))
        e(salu(f"s_cmp_lt_u32 {sW}, 2"))
        e(salu(f"s_cselect_b32 s96, s20, s24"))
        e(salu(f"s_cselect_b32 s97, s21, s25"))
        e(salu(f"s_mov_b32 s98, 262144"))
        e(salu(f"s_mov_b32 s99, 0x00020000"))
        e(salu(f"s_cselect_b32 {sPFOFF}, 5, 4"))
        e(salu(f"s_lshl_b32 {sPFOFF}, {sPFOFF}, 14"))
        e(salu(f"s_and_b32 s3, {sW}, 1"))
        e(salu(f"s_lshl_b32 s3, s3, 13"))
        e(salu(f"s_add_u32 {sPFOFF}, {sPFOFF}, s3"))
    if WARM:
        e(valu("v_lshrrev_b32", tA, 3, lane))
        e(valu("v_and_b32", tB, 7, lane))
        e(valu("v_lshlrev_b32", tA, 13, tA))
        e(valu("v_lshl_add_u32", vPFWQ, tB, 7, tA))
        if MAP == 0:
            e(salu(f"s_and_b32 s3, {sB}, 7"))
            e(salu(f"s_mul_i32 s3, s3, {56 * 8192}"))
            e(salu(f"s_lshl_b32 {sT2}, {sW}, 16"))
            e(salu(f"s_add_u32 {sT2}, {sT2}, s3"))
            e(pfload(vDUMMY, vPFWQ, SRD_WQ, sT2, tag=("pfw", 0), n=1))
            e(salu(f"s_add_u32 {sT2}, {sT2}, {4 << 16}"))
            e(pfload(vDUMMY, vPFWQ, SRD_WQ, sT2, tag=("pfw", 1), n=1))
        else:
            e(salu(f"s_mul_i32 s3, {sB}, {28 * 8192}"))
            e(salu(f"s_lshl_b32 {sT2}, {sW}, 16"))
            e(salu(f"s_add_u32 {sT2}, {sT2}, s3"))
            e(pfload(vDUMMY, vPFWQ, SRD_WQ, sT2, tag=("pfw", 0), n=1))
            if WARM == 2:
                e(pfload(vDUMMY, vPFWQ, SRD_WQ, sT2, off=64, tag=("pfw", 1), n=1))
    if CODEW:
        e(raw("s_getpc_b64 s[96:97]", "salu"))
        e(valu("v_lshlrev_b32", tB, 6, V(0)))
        for i in range(CODEW):
            e(Ins(f"global_load_dword {vDUMMY}, {tB}, s[96:97]", "vmem", uses=[tB], tag=("cw", i), cost=8))
            if i + 1 < CODEW:
                e(valu("v_add_u32", tB, 16384, tB))
    e(WaitVM(("x", 0)))
    for s in range(4):
        ext(rd_x(s))
    e(barrier())

    LA = 6
    for f in range(LA):
        ext(rd_wq(f))
    pre = [dma_k(0), dma_k(1), dma_v(0), stage_ld(0, "v", 1), stage_ld(1, "v", 2), stage_ld(2, "v", 3),
           stage_ld(3, "v", 4), dma_k(2), dma_k(3)]
    kv_at = {}
    if SMOOTH:
        units = []
        for g_ in pre:
            head, rest = g_[0], g_[1:]
            per = len(rest) // 4
            for i in range(4):
                units.append([head] + rest[i * per: (i + 1) * per])
        lo, hi = SMOOTH, 23
        for u in range(28):
            kv_at.setdefault(lo + u * (hi - lo) // 28, []).extend(units[u])
        for u in range(8):
            kv_at.setdefault(23 + u // 2, []).extend(units[28 + u])
    else:
        for st_, g_ in zip(KVAT, pre):
            kv_at.setdefault(st_, []).extend(g_)
    for s in range(28):
        if STAMP and s in STS:
            ext(stamp())
        slots = []
        for nt in range(16):
            f = 16 * s + nt
            sl = [mfma(Qacc(nt), Wf(f), Xf(s), Qacc(nt) if s > 0 else 0)]
            if f + LA < 448:
                sl += rd_wq(f + LA)
            if nt == 3 and s + 1 < 28:
                if s == 23:
                    sl += [WaitAll(vm=False, lgkm=True)]
                sl += [WaitVM(("wq", s + 1)), barrier()]
            slots.append(sl)
        fill = []
        if s + NP1 - 1 < 28:
            fill += dma_wq(s + NP1 - 1)
        if s in kv_at:
            fill += kv_at[s]
        if PFN and s >= PFAT and (s - PFAT) % 2 == 0 and (s - PFAT) // 2 < PFN:
            fill += [salu(f"s_add_u32 {sT2}, {sPFOFF}, {((s - PFAT) // 2) * 16384}", defs=[sT2]),
                     pfload(vDUMMY, vL128, SRD_PF, sT2, tag=("pf", s), n=1, flags=PFF)]
        if s % 4 == 1 and (s + 3) // 4 < 7:
            pc = (s + 3) // 4
            fill += [WaitVM(("x", pc))]
            for s2 in range(4):
                fill += rd_x(4 * pc + s2)
        if s % 4 == 0 and s // 4 + 2 < 7:
            fill += [WaitAll(vm=False, lgkm=True)] if s == 0 else []
            fill += dma_x(s // 4 + 2)
        ext(interleave(slots, fill, start=4, end=14))

    ext(stamp())
    e(WaitVM(("k", 0)))
    e(barrier())
    for s3 in range(3):
        ext(rd_k(0, s3))
    e(valu("v_add_u32", vT[0], sM0V, vL16))
    e(valu("v_add_u32", vT[0], VBASE + VSLOT, vT[0]))
    e(valu("v_add_u32", vAV2, VS[4], vAV))
    drain = []
    for t in range(4):
        for i in range(4):
            drain.append(ds_write_b128(vT[0], STG(t)[4 * i: 4 * i + 4], VS[t] + i * VSTR))
    for qb in range(2):
        for s in range(16):
            acc = Qacc(qb * 8 + s // 2)
            for ee in range(8):
                e(valu("v_accvgpr_read_b32", vTMP[ee], acc[(s % 2) * 8 + ee]))
            for jj in range(4):
                e(valu("v_cvt_pk_bf16_f32", Qf(qb, s)[jj], vTMP[2 * jj], vTMP[2 * jj + 1]))
            if qb == 0:
                e(drain[s])
    e(WaitAll(vm=False, lgkm=True))

    ext(stamp())
    for j in range(17):
        p = j % 2
        if j in (4, 12) and not FINE:
            ext(stamp())
        fillA = softmax2(j - 1) if j >= 1 else []
        if j < 16:
            slots = []
            for s in range(16):
                for qb in range(2):
                    sl = [mfma(Sb(p, qb), Kf(s), Qf(qb, s), Sb(p, qb) if s > 0 else 0)]
                    if qb == 0:
                        if s + 3 < 16:
                            sl += rd_k(j, s + 3)
                        elif j >= 1:
                            sl += rd_v(j - 1, s + 3 - 16)
                    slots.append(sl)
            ext(interleave(slots, fillA, start=0, end=30))
        if j >= 2:
            ext(resc_check())
        waits = []
        if j + 1 < 16:
            waits.append(("k", j + 1))
        if j < 16:
            waits.append(("v", j))
        grp = []
        if NV <= j + NV - 2 < 16:
            grp += dma_v(j + NV - 2)
        if j + NK < 16:
            grp += dma_k(j + NK)
        if j == 13:
            grp += dma_wo(0)
        if j == 15:
            grp += dma_wo(1) + dma_wo(3)
        sync = [WaitVM(waits), barrier()] if j < 16 else []
        fillB = softmax1(j) if j < 16 else []
        if j == 16:
            for qb in range(2):
                fillB.append(valu("v_mov_b32", vU[qb], vL[qb]))
            for qb in range(2):
                fillB.append(Ins(f"v_permlane32_swap_b32 {vL[qb]}, {vU[qb]}", "perm",
                                 defs=[vL[qb], vU[qb]], uses=[vL[qb], vU[qb]]))
            for qb in range(2):
                fillB.append(valu("v_add_f32", vL[qb], vL[qb], vU[qb]))
            for qb in range(2):
                fillB.append(valu("v_rcp_f32", vL[qb], vL[qb]))
        if j >= 1:
            slots = []
            for f in range(16):
                dt, ks = divmod(f, 2)
                for qb in range(2):
                    sl = [mfma(Oacc(dt, qb), Vf(f), Pf(1 - p, qb, ks),
                               Oacc(dt, qb) if (j > 1 or ks > 0) else 0)]
                    if qb == 0:
                        if f + 3 < 16:
                            sl += rd_v(j - 1, f + 3)
                        elif j + 1 < 16:
                            sl += rd_k(j + 1, f + 3 - 16)
                        elif j == 15:
                            sl += rd_v(15, f + 3 - 16)
                    if f == 0 and qb == 1:
                        sl += sync
                    slots.append(sl)
            if j == 16:
                for k in range(NPRE):
                    cv = conv_o(k)
                    for q4 in range(4):
                        slots[7 + 4 * k + q4] += cv[5 * q4: 5 * q4 + 5]
                ext(interleave(slots, fillB, start=0, end=6))
            else:
                ext(interleave(slots, grp + fillB, start=2, end=32))
        else:
            ext(sync)
            ext(grp)
            for s3 in range(3):
                ext(rd_k(1, s3))
            ext(fillB)

    ext(stamp())
    e(WaitVM(("wo", 0)))
    e(barrier())
    ext(dma_wo(2))
    for f in range(LA):
        ext(rd_wo(f))
    cvl = []
    for ksg in range(NPRE, 32):
        cvl += conv_o(ksg)

    ext(stamp())
    for sg in range(14):
        ps, hs = divmod(sg, 2)
        if sg in (2, 8) and not FINE:
            ext(stamp())
        slots = []
        for r in range(32):
            f = 32 * sg + r
            ks, tt = divmod(r, 2)
            ksg = 16 * hs + ks
            acc = Wacc(ps % 2, tt)
            sl = [mfma(acc, Wf(f), Of(ksg), acc if ksg > 0 else 0)]
            if f + LA < 448:
                sl += rd_wo(f + LA)
            if ps == 0 and f < 60:
                sl += cvl[f * len(cvl) // 60: (f + 1) * len(cvl) // 60]
            if r == 3 and sg + 1 < 14:
                sl += [WaitVM(("wo", sg + 1)), barrier()]
            slots.append(sl)
        fill = []
        if sg >= 1 and sg + 3 < 14:
            fill += dma_wo(sg + 3)
        if ps >= 1:
            sp_ = store_pass(ps - 1)
            for k in range(2):
                if not env("NOST", 0):
                    slots[10 + 12 * k] += sp_[2 * hs + k]
        ext(interleave(slots, fill, start=4, end=26))

    ext(stamp())
    for g_ in store_pass(6):
        ext(g_)
    if STAMP:
        e(WaitAll())
    ext(stamp())
    ext(stamp(True))
    ext(stamp_store())
    e(label("L_end"))
    e(raw("s_endpgm"))

    lines = finalize(st)

    sub = []
    s_ = sub.append
    s_(label("L_slow"))
    s_(nop(2))
    for qb in range(2):
        s_(valu("v_max_f32", vMR[qb], vMR[qb], vT[qb]))
        s_(valu("v_mul_f32", vU[qb], sC, vMR[qb]))
        s_(valu("v_sub_f32", vAL[qb], vM[qb], vU[qb]))
        s_(valu("v_exp_f32", vAL[qb], vAL[qb]))
        s_(valu("v_mov_b32", vM[qb], vU[qb]))
        s_(valu("v_add_f32", vTHR[qb], sTRAW, vMR[qb]))
        s_(valu("v_mul_f32", vL[qb], vL[qb], vAL[qb]))
    s_(salu(f"s_mov_b32 {sFLAG}, 1"))
    s_(nop(2))
    s_(raw(f"s_setpc_b64 {sRET}"))
    s_(label("L_resc"))
    s_(nop(16))
    tt = [vU[0], vU[1], vT[0], vT[1]]
    for dt in range(8):
        for qb in range(2):
            acc = Oacc(dt, qb)
            for r0 in range(0, 16, 4):
                for k in range(4):
                    s_(valu("v_accvgpr_read_b32", tt[k], acc[r0 + k]))
                for k in range(4):
                    s_(valu("v_mul_f32", tt[k], tt[k], vAL[qb]))
                for k in range(4):
                    s_(valu("v_accvgpr_write_b32", acc[r0 + k], tt[k]))
    s_(salu(f"s_mov_b32 {sFLAG}, 0"))
    s_(nop(4))
    s_(raw(f"s_setpc_b64 {sRET}"))
    lines += finalize(sub)
    return lines


def gen_k2():
    st = []
    e = st.append
    e(salu("s_cmp_ge_u32 s2, 896"))
    e(salu("s_cbranch_scc1 L2_end"))
    e(salu("s_load_dwordx2 s[4:5], s[0:1], 80"))
    e(salu("s_load_dwordx2 s[6:7], s[0:1], 96"))
    e(salu("s_and_b32 s8, s2, 1"))
    e(salu("s_lshr_b32 s9, s2, 1"))
    e(salu("s_mul_i32 s10, s9, 4682"))
    e(salu("s_lshr_b32 s10, s10, 16"))
    e(salu("s_mul_i32 s11, s10, 14"))
    e(salu("s_sub_u32 s11, s9, s11"))
    lane, w, t1, t2 = V(1), V(2), V(3), V(4)
    e(valu("v_and_b32", lane, 63, V(0)))
    e(valu("v_lshrrev_b32", w, 6, V(0)))
    e(valu("v_mul_u32_u24", t1, 14 * 2048, w))
    e(valu("v_lshl_add_u32", t1, lane, 4, t1))
    e(salu("s_lshl_b32 s12, s11, 11"))
    e(salu("s_lshl_b32 s13, s8, 10"))
    e(salu("s_add_u32 s12, s12, s13"))
    e(valu("v_add_u32", t1, S(12), t1))
    e(salu("s_and_b32 s13, s10, 15"))
    e(salu("s_lshr_b32 s14, s10, 4"))
    e(salu("s_mul_i32 s13, s13, 229376"))
    e(salu("s_mul_i32 s14, s14, 896"))
    e(salu("s_add_u32 s13, s13, s14"))
    e(salu("s_lshl_b32 s14, s11, 6"))
    e(salu("s_add_u32 s13, s13, s14"))
    e(salu("s_lshl_b32 s14, s8, 5"))
    e(salu("s_add_u32 s13, s13, s14"))
    e(valu("v_and_b32", t2, 31, lane))
    e(valu("v_lshl_add_u32", t2, w, 5, t2))
    e(valu("v_mul_u32_u24", t2, 1792, t2))
    e(valu("v_lshrrev_b32", lane, 5, lane))
    e(valu("v_lshl_add_u32", t2, lane, 4, t2))
    e(valu("v_add_u32", t2, S(13), t2))
    e(raw("s_waitcnt lgkmcnt(0)", "wait"))
    e(salu("s_mov_b32 s16, s4"))
    e(salu("s_mov_b32 s17, s5"))
    e(salu(f"s_mov_b32 s18, {16 * 128 * 896 * 2}"))
    e(salu("s_mov_b32 s19, 0x00020000"))
    e(salu(f"s_mul_i32 s14, s10, {8 * PART}"))
    e(salu("s_add_u32 s20, s6, s14"))
    e(salu("s_addc_u32 s21, s7, 0"))
    e(salu(f"s_mov_b32 s22, {8 * PART}"))
    e(salu("s_mov_b32 s23, 0x00020000"))
    e(salu("s_mov_b32 s32, 0xffff0000"))
    so, sw = S(16, 4), S(20, 4)
    for g in range(8):
        e(salu(f"s_mov_b32 s{24 + g}, {g * PART}"))
    for g in range(8):
        e(bload(V(8 + g * 4, 4), t1, sw, S(24 + g), flags=K2F))
    acc = V(40, 8)
    tmp = V(48, 8)
    for g in range(8):
        for jj in range(4):
            src = V(8 + g * 4 + jj)
            dlo, dhi = (acc[2 * jj], acc[2 * jj + 1]) if g == 0 else (tmp[2 * jj], tmp[2 * jj + 1])
            e(valu("v_lshlrev_b32", dlo, 16, src))
            e(valu("v_and_b32", dhi, S(32), src))
        if g:
            for k in range(8):
                e(valu("v_add_f32", acc[k], acc[k], tmp[k]))
    for jj in range(4):
        e(valu("v_cvt_pk_bf16_f32", V(56 + jj), acc[2 * jj], acc[2 * jj + 1]))
    e(bstore(V(56, 4), t2, so, 0))
    if STAMP == 3:
        e(salu("s_cmp_lg_u32 s2, 0"))
        e(salu("s_cbranch_scc1 L2_end"))
        e(salu("s_load_dwordx2 s[16:17], s[0:1], 88"))
        e(salu(f"s_add_u32 s20, s6, {64 << 20}"))
        e(salu("s_addc_u32 s21, s7, 0"))
        e(salu("s_mov_b32 s22, 64"))
        e(salu("s_mov_b32 s18, 64"))
        e(valu("v_lshlrev_b32", V(3), 2, V(0)))
        e(raw("s_waitcnt lgkmcnt(0)", "wait"))
        e(bload(V(5), V(3), sw, 0, n=1))
        e(bstore(V(5), V(3), so, 0, n=1))
    e(label("L2_end"))
    e(raw("s_endpgm"))
    return finalize(st)


HEADER = open(os.path.join(os.path.dirname(os.path.abspath(__file__)), "header.txt")).read()


def kd(name, vgpr, accum, sgpr):
    return f""".amdhsa_kernel {name}
  .amdhsa_next_free_vgpr {vgpr}
  .amdhsa_next_free_sgpr {sgpr}
  .amdhsa_accum_offset {accum}
  .amdhsa_group_segment_fixed_size 0
  .amdhsa_kernarg_size 104
  .amdhsa_user_sgpr_count 2
  .amdhsa_user_sgpr_kernarg_segment_ptr 1
  .amdhsa_system_sgpr_workgroup_id_x 1
.end_amdhsa_kernel
"""


def main():
    out = HEADER
    out += f"; @launch kernel={K1} grid=(256,1,1) block=(256,1,1) lds={LDS_BYTES}\n"
    out += f"; @launch kernel={K2} grid=(896,1,1) block=(256,1,1) lds=0\n"
    out += '.amdgcn_target "amdgcn-amd-amdhsa--gfx950"\n.text\n'
    for name, gen in ((K1, gen_k1), (K2, gen_k2)):
        out += f".globl {name}\n.p2align 8\n.type {name},@function\n{name}:\n"
        out += "\n".join(gen()) + "\n"
    out += '.section .rodata,"a"\n.p2align 6\n'
    out += kd(K1, 512, 256, 102)
    out += ".p2align 6\n"
    out += kd(K2, 64, 64, 40)
    dst = sys.argv[1] if len(sys.argv) > 1 else f"cdna_kernels/{NAME}.s"
    open(dst, "w").write(out)
    print("wrote", dst, len(out), "bytes", out.count("\n"), "lines")


if __name__ == "__main__":
    main()
```

```python
import math
import struct
import sys
import os

sys.path.insert(0, os.path.dirname(os.path.abspath(__file__)))
from asmir import *

NAME = "concat_heads__gqa_block_cached__gqa_block_cached__near_ridge"
K1 = NAME + "_kernel"
K2 = "reduce_out_kernel"


def f32bits(x):
    return struct.unpack("<I", struct.pack("<f", x))[0]


def env(k, d):
    return type(d)(os.environ.get(k, d))


CSCALE = math.log2(math.e) / 16.0
TLOG2 = 8.0
TRAW = TLOG2 / CSCALE
KVF = env("KVF", "nt")
WQF = env("WQF", "nt")
XF = env("XF", "nt")
WOF = env("WOF", "nt")
STF = env("STF", "")
K2F = env("K2F", "")
STAMP = env("STAMP", 0)
WARM = env("WARM", 2)
SMOOTH = env("SMOOTH", 3)
MAP = env("MAP", 1)
KVAT = [int(x) for x in env("KVAT", "2,4,6,8,10,12,14,23,25").split(",")]
NG1 = env("NG1", 3)
NPRE = 6
WRMF = env("WRMF", "nt")
WOWARM = env("WOWARM", 12)
WARMAT = env("WARMAT", 1)
TLBT = env("TLBT", 0)
CODEW = env("CODEW", 0)
FINE = env("FINE", 0)
STS = (0, 1, 2, 4, 8, 14) if FINE else (0, 14)

SRD_X, SRD_K, SRD_V, SRD_WQ, SRD_WO, SRD_WS = (S(16, 4), S(20, 4), S(24, 4), S(28, 4), S(32, 4), S(36, 4))
sW, sG, sB, sBLK, sC = S(40), S(41), S(42), S(43), S(44)
sM0V, sOFFWQ, sM0K, sM0X, sOFFKV = S(45), S(46), S(47), S(48), S(49)
sT0, sT1 = S(50), S(51)
sMASK0, sMASK1 = S(52, 2), S(54, 2)
sFLAG = S(56)
sOFFX = S(57)
sRET = S(58, 2)
sM0WO = S(60)
sOFFWS = S(61)
sTRAW = S(62)
sOFFWO = S(63)
sT2 = S(100)


def Qf(qb, s):
    return V((qb * 16 + s) * 4, 4)


def Xf(s):
    return V(s * 4, 4)


def Of(ks):
    return V(ks * 4, 4)


def Sb(p, qb):
    return V(128 + p * 32 + qb * 16, 16)


def Kf(i):
    return V(192 + (i % 4) * 4, 4)


def Vf(i):
    return V(208 + (i % 4) * 4, 4)


def Wf(i):
    return V(192 + (i % 8) * 4, 4)


def Wacc(buf, tt):
    return V(128 + buf * 32 + tt * 16, 16)


vAK, vAV, vOFFKV, vL16 = V(224), V(225), V(226), V(227)
vM = [V(228), V(229)]
vTHR = [V(230), V(231)]
vL = [V(232), V(233)]
vAL = [V(234), V(235)]
vT = [V(236), V(237)]
vU = [V(238), V(239)]
vTMP = V(240, 8)
vMR = [V(248), V(249)]
vAWQ = V(250)
vOFFWO = V(251)
vAWO = [[V(252), V(253)], [V(254), V(255)], [V(228), V(229)]]
NWO = env("NWO", 4)
vXO = [V(112), V(113)]
vAX = V(114, 4)
vDUMMY, vPFWQ, vL128, vCW = V(118), V(119), V(120), V(121)
SRD_PF = S(96, 4)
sPFOFF = S(101)
PFN = env("PFN", 0)
PFF = env("PFF", "")
PFAT = env("PFAT", 16)
vAV2 = vAWQ


def STG(t):
    return V(128 + 16 * t, 16)

KSTR, VSTR = 1040, 1088
KSLOT, VSLOT = 16 * KSTR, 16 * VSTR
VBASE = 4 * KSLOT
NK, NV = 4, 5
KS = [i * KSLOT for i in range(4)]
VS = [i * VSLOT for i in range(NV)]
P1BASE = VBASE + VSLOT
NP1 = 4
XBASE = 2 * KSLOT
assert XBASE + 32768 <= 4 * KSLOT
WOSLOT = 32768
LDS_BYTES = 163840
PART = 4 * 14 * 2048
assert P1BASE + NP1 * VSLOT <= LDS_BYTES


def Oacc(dt, qb):
    return A((dt * 2 + qb) * 16, 16)


def Qacc(nt):
    return A(nt * 16, 16)


def barrier():
    return raw("s_barrier", "other", cost=4)


_nst = 0


def stamp(real=False):
    global _nst
    if not STAMP:
        return []
    i = _nst
    _nst += 1
    assert i < 16
    op = "s_memrealtime" if (real or STAMP >= 2) else "s_memtime"
    return [raw(f"{op} s[{64 + 2 * i}:{65 + 2 * i}]", "salu", cost=2)]


def stamp_store():
    if not STAMP:
        return []
    if STAMP == 3:
        out = [raw("s_waitcnt lgkmcnt(0)", "wait"),
               salu(f"s_cmp_lg_u32 {sW}, 0"), salu("s_cbranch_scc1 L_end"),
               salu(f"s_cmp_lg_u32 s2, 77"), salu("s_cbranch_scc1 L_end"),
               salu(f"s_add_u32 s4, s14, {64 << 20}"), salu("s_addc_u32 s5, s15, 0"),
               salu("s_mov_b32 s6, 256"), salu("s_mov_b32 s7, 0x00020000"),
               valu("v_mov_b32", V(2), 0)]
        for i in range(_nst):
            out.append(salu(f"s_sub_u32 s3, s{64 + 2 * i}, s64"))
            out.append(valu("v_mov_b32", V(4 + i), S(3)))
            out.append(bstore(V(4 + i), V(2), S(4, 4), 0, off=i * 4, n=1))
        return out
    out = [raw("s_waitcnt lgkmcnt(0)", "wait"),
           salu(f"s_cmp_lg_u32 {sW}, 0"), salu("s_cbranch_scc1 L_end"),
           salu("s_lshl_b32 s3, s2, 7"), salu(f"s_add_u32 s3, s3, {64 << 20}"),
           salu("s_add_u32 s4, s14, s3"), salu("s_addc_u32 s5, s15, 0"),
           salu("s_mov_b32 s6, 128"), salu("s_mov_b32 s7, 0x00020000"),
           valu("v_mov_b32", V(2), 0)]
    for i in range(_nst):
        out.append(valu("v_mov_b32", V(4 + 2 * i), S(64 + 2 * i)))
        out.append(valu("v_mov_b32", V(5 + 2 * i), S(65 + 2 * i)))
        out.append(bstore(V(4 + 2 * i, 2), V(2), S(4, 4), 0, off=i * 8, n=2))
    return out


def dma_wq(s):
    out = []
    for i in range(4):
        out.append(setm0(f"s_add_u32 m0, {sM0V}, {P1BASE + (s % NP1) * VSLOT + i * VSTR}"))
        out.append(salu(f"s_add_u32 {sT0}, {sOFFWQ}, {(16 * s + i) * 8192}", defs=[sT0]))
        out.append(dma(vL16, SRD_WQ, sT0, tag=("wq", s), flags=WQF))
    return out


def dma_x(pc):
    out = []
    for i in range(4):
        out.append(setm0(f"s_add_u32 m0, {sM0X}, {(pc % 2) * 16384 + i * 1024}"))
        out.append(salu(f"s_add_u32 {sT1}, {sOFFX}, {pc * 128 + i * 8 * 896}", defs=[sT1]))
        out.append(dma(vXO[i % 2], SRD_X, sT1, tag=("x", pc), flags=XF))
    return out


def dma_k(j):
    out = [salu(f"s_add_u32 {sT1}, {sOFFKV}, {j * 16384}", defs=[sT1])]
    for i in range(4):
        out.append(setm0(f"s_add_u32 m0, {sM0K}, {KS[j % NK] + i * (KSTR - 512)}"))
        out.append(dma(vOFFKV, SRD_K, sT1, off=i * 512, tag=("k", j), flags=KVF))
    return out


def dma_v(j):
    out = [salu(f"s_add_u32 {sT1}, {sOFFKV}, {j * 16384}", defs=[sT1])]
    for i in range(4):
        out.append(setm0(f"s_add_u32 m0, {sM0V}, {VBASE + VS[j % NV] + i * (VSTR - 512)}"))
        out.append(dma(vOFFKV, SRD_V, sT1, off=i * 512, tag=("v", j), flags=KVF))
    return out


def dma_wo(sg):
    ps, hs = divmod(sg, 2)
    out = []
    for i in range(8):
        out.append(setm0(f"s_add_u32 m0, {sM0WO}, {(sg % NWO) * WOSLOT + i * 1024}"))
        out.append(salu(f"s_add_u32 {sT1}, {sOFFWO}, {(256 * hs + 8 * i) * 896 + 128 * ps}", defs=[sT1]))
        out.append(dma(vOFFWO, SRD_WO, sT1, tag=("wo", sg), flags=WOF))
    return out


def pfload(*a, **kw):
    i = bload(*a, **kw)
    i.defs = set()
    return i


def rd_wq(f):
    s, nt = divmod(f, 16)
    d = Wf(f)
    off = (s % NP1) * VSLOT + nt * 64
    return [ds_read_tr(d[0:2], vAWQ, off), ds_read_tr(d[2:4], vAWQ, off + 4 * VSTR)]


def rd_x(s):
    pc, sp = divmod(s, 4)
    return [ds_read_b128(Xf(s), vAX[sp], (pc % 2) * 16384)]


def rd_k(j, s):
    return [ds_read_b128(Kf(s), vAK, KS[j % NK] + s * 32)]


def stage_ld(t, kind, j):
    out = [salu(f"s_add_u32 {sT1}, {sOFFKV}, {j * 16384}", defs=[sT1])]
    for i in range(4):
        out.append(bload(STG(t)[4 * i: 4 * i + 4], vOFFKV, SRD_K if kind == "k" else SRD_V, sT1,
                         off=i * 512, tag=("stg", t), flags=KVF))
    return out


def rd_v(j, f):
    dt, ks = divmod(f, 2)
    d = Vf(f)
    base, off = (vAV2, 0) if j % NV == 4 else (vAV, VS[j % NV])
    off += ks * 512 + dt * 64
    return [ds_read_tr(d[0:2], base, off), ds_read_tr(d[2:4], base, off + 4 * VSTR)]


def rd_wo(f):
    sg, r = divmod(f, 32)
    ks, tt = divmod(r, 2)
    slot = sg % NWO
    base = vAWO[slot // 2][tt]
    off = (slot % 2) * WOSLOT + ks * 2048
    d = Wf(f)
    return [ds_read_tr(d[0:2], base, off), ds_read_tr(d[2:4], base, off + 512)]


def sm_max(p):
    out = []
    for qb in range(2):
        s_ = Sb(p, qb)
        t = vT[qb]
        out.append(valu("v_max3_f32", t, s_[0], s_[1], s_[2]))
        for r in range(3, 15, 2):
            out.append(valu("v_max3_f32", t, t, s_[r], s_[r + 1]))
        out.append(valu("v_max_f32", t, t, s_[15]))
    for qb in range(2):
        out.append(valu("v_mov_b32", vU[qb], vT[qb]))
    for qb in range(2):
        out.append(Ins(f"v_permlane32_swap_b32 {vT[qb]}, {vU[qb]}", "perm", defs=[vT[qb], vU[qb]],
                       uses=[vT[qb], vU[qb]]))
    for qb in range(2):
        out.append(valu("v_max_f32", vT[qb], vT[qb], vU[qb]))
    return out


_lbl = 0


def sm_check(first):
    global _lbl
    out = []
    if first:
        for qb in range(2):
            out.append(valu("v_mov_b32", vMR[qb], vT[qb]))
            out.append(valu("v_mul_f32", vM[qb], sC, vT[qb]))
            out.append(valu("v_add_f32", vTHR[qb], sTRAW, vT[qb]))
            out.append(valu("v_mov_b32", vL[qb], 0))
        return out
    out.append(valu("v_cmp_gt_f32", sMASK0, vT[0], vTHR[0]))
    out.append(valu("v_cmp_gt_f32", sMASK1, vT[1], vTHR[1]))
    _lbl += 1
    out.append(Group([
        salu(f"s_or_b64 {sMASK0}, {sMASK0}, {sMASK1}", defs=[sMASK0], uses=[sMASK0, sMASK1]),
        salu(f"s_cbranch_scc0 L_noslow{_lbl}"),
        Ins(f"s_call_b64 {sRET}, L_slow", "salu", cost=2,
            defs=vM + vTHR + vL + vAL + vMR + vU, uses=vM + vTHR + vL + vT + vMR),
        label(f"L_noslow{_lbl}")]))
    return out


def sm_exp(p, qb, grp):
    s_ = Sb(p, qb)
    out = []
    rs = range(4 * grp, 4 * grp + 4)
    for r in rs:
        out.append(valu("v_fma_f32", s_[r], s_[r], sC, ("-", vM[qb])))
    for r in rs:
        out.append(valu("v_exp_f32", s_[r], s_[r]))
    for r in rs:
        out.append(valu("v_add_f32", vL[qb], vL[qb], s_[r]))
    ks, g2 = divmod(grp, 2)
    for jj in range(2):
        j = 2 * g2 + jj
        out.append(valu("v_cvt_pk_bf16_f32", s_[8 * ks + j], s_[8 * ks + 2 * j], s_[8 * ks + 2 * j + 1]))
    return out


def Pf(p, qb, ks):
    return Sb(p, qb)[8 * ks: 8 * ks + 4]


def resc_check():
    global _lbl
    _lbl += 1
    return [
        salu(f"s_cmp_eq_u32 {sFLAG}, 0", uses=[sFLAG]),
        salu(f"s_cbranch_scc1 L_nores{_lbl}"),
        Ins(f"s_call_b64 {sRET}, L_resc", "salu", cost=2),
        label(f"L_nores{_lbl}"),
    ]


def softmax1(j):
    p = j % 2
    if j == 0:
        return []
    out = sm_max(p) + sm_check(False)
    for gi in range(8 if j == 15 else NG1):
        out += sm_exp(p, gi // 4, gi % 4)
    return out


def softmax2(j):
    p = j % 2
    if j == 15:
        return []
    out = []
    if j == 0:
        out = sm_max(p) + sm_check(True)
    for gi in range(0 if j == 0 else NG1, 8):
        out += sm_exp(p, gi // 4, gi % 4)
    return out


def conv_o(ksg):
    qb, s = divmod(ksg, 16)
    dt, hf = divmod(s, 2)
    acc = Oacc(dt, qb)
    out = []
    for ee in range(8):
        out.append(valu("v_accvgpr_read_b32", vTMP[ee], acc[hf * 8 + ee]))
    for ee in range(8):
        out.append(valu("v_mul_f32", vTMP[ee], vTMP[ee], vL[qb]))
    for jj in range(4):
        out.append(valu("v_cvt_pk_bf16_f32", Of(ksg)[jj], vTMP[2 * jj], vTMP[2 * jj + 1]))
    return out


def store_pass(ps):
    out = []
    for tt in range(2):
        acc = Wacc(ps % 2, tt)
        for sp in range(2):
            g = []
            for jj in range(4):
                g.append(valu("v_cvt_pk_bf16_f32", acc[8 * sp + jj], acc[8 * sp + 2 * jj], acc[8 * sp + 2 * jj + 1]))
            g.append(salu(f"s_add_u32 {sT0}, {sOFFWS}, {ps * 4096}", defs=[sT0]))
            g.append(bstore(acc[8 * sp: 8 * sp + 4], vL16, SRD_WS, sT0, off=(2 * tt + sp) * 1024, flags=STF))
            out.append(g)
    return out


def gen_k1():
    st = []
    e = st.append
    ext = st.extend
    ext(stamp(True))
    ext(stamp())
    e(salu("s_cmp_ge_u32 s2, 256"))
    e(salu("s_cbranch_scc1 L_end"))
    if MAP == 0:
        e(salu(f"s_and_b32 {sG}, s2, 7"))
        e(salu(f"s_lshr_b32 s3, s2, 6"))
        e(salu(f"s_xor_b32 {sG}, {sG}, s3"))
        e(salu(f"s_lshr_b32 {sB}, s2, 3"))
        e(salu(f"s_and_b32 {sB}, {sB}, 15"))
        e(salu(f"s_lshr_b32 {sBLK}, s2, 7"))
    else:
        e(salu(f"s_bfe_u32 {sBLK}, s2, 0x10002"))
        e(salu(f"s_and_b32 {sG}, s2, 3"))
        e(salu(f"s_lshl_b32 {sG}, {sG}, 1"))
        e(salu(f"s_bfe_u32 s3, s2, 0x10003"))
        e(salu(f"s_or_b32 {sG}, {sG}, s3"))
        e(salu(f"s_lshr_b32 {sB}, s2, 4"))
    e(salu(f"s_load_dwordx2 s[14:15], s[0:1], 96"))
    e(salu(f"s_mul_i32 s3, {sBLK}, 40"))
    e(salu("s_add_u32 s0, s0, s3"))
    e(salu("s_addc_u32 s1, s1, 0"))
    e(salu("s_load_dwordx8 s[4:11], s[0:1], 0"))
    e(salu("s_load_dwordx2 s[12:13], s[0:1], 32"))
    lane, tA, tB, tC, tD, tE = (vTMP[i] for i in range(6))
    e(valu("v_and_b32", lane, 63, V(0)))
    e(valu("v_lshrrev_b32", tA, 6, V(0)))
    e(Ins(f"v_readfirstlane_b32 {sW}, {tA}", "valu", defs=[sW], uses=[tA]))
    e(valu("v_lshlrev_b32", vL16, 4, lane))
    e(valu("v_lshrrev_b32", tA, 3, lane))
    e(valu("v_mul_u32_u24", tA, 896, tA))
    e(valu("v_and_b32", tB, 7, lane))
    e(valu("v_lshrrev_b32", tC, 4, lane))
    e(valu("v_xor_b32", tB, tB, tC))
    e(valu("v_lshl_add_u32", vXO[0], tB, 4, tA))
    e(valu("v_xor_b32", vXO[1], 64, vXO[0]))
    e(salu(f"s_mul_i32 {sM0V}, {sW}, {4 * VSTR}", uses=[sW]))
    e(salu(f"s_lshl_b32 {sOFFWQ}, {sW}, 15"))
    e(salu(f"s_lshl_b32 {sM0X}, {sW}, 12"))
    e(salu(f"s_add_u32 {sM0X}, {sM0X}, {XBASE}"))
    e(salu(f"s_mul_i32 {sOFFX}, {sW}, {32 * 896}"))
    e(raw("s_waitcnt lgkmcnt(0)", "wait"))

    def srd(d, ptr_lo, off_expr_reg, size):
        e(salu(f"s_add_u32 s{d.b}, s{ptr_lo}, {off_expr_reg}"))
        e(salu(f"s_addc_u32 s{d.b + 1}, s{ptr_lo + 1}, 0"))
        e(salu(f"s_mov_b32 s{d.b + 2}, {size}"))
        e(salu(f"s_mov_b32 s{d.b + 3}, 0x00020000"))

    e(salu(f"s_lshl_b32 s3, {sG}, 10"))
    srd(SRD_WQ, 10, "s3", 447 * 8192 + 1024)
    e(salu(f"s_mul_i32 s3, {sB}, 114688"))
    srd(SRD_X, 4, "s3", 114688)
    if TLBT:
        e(valu("v_lshlrev_b32", vPFWQ, 13, V(0)))
        e(pfload(vDUMMY, vPFWQ, SRD_WQ, 0, tag=("tl", 0), n=1))
        e(valu("v_lshlrev_b32", vCW, 12, lane))
        e(pfload(vDUMMY, vCW, SRD_X, 0, tag=("tl", 1), n=1))
        if TLBT == 2:
            e(salu(f"s_mov_b32 {sT2}, {256 * 8192}"))
            e(pfload(vDUMMY, vPFWQ, SRD_WQ, sT2, tag=("tl", 2), n=1))
    ext(dma_wq(0))
    ext(dma_x(0))
    ext(dma_wq(1))
    ext(dma_x(1))
    ext(dma_wq(2))
    e(salu(f"s_lshl_b32 s3, {sB}, 3"))
    e(salu(f"s_add_u32 s3, s3, {sG}"))
    e(salu(f"s_lshl_b32 s3, s3, 18"))
    srd(SRD_K, 6, "s3", 262144)
    srd(SRD_V, 8, "s3", 262144)
    e(salu(f"s_mul_i32 s3, {sG}, 458752"))
    srd(SRD_WO, 12, "s3", 458752)
    e(salu(f"s_lshl_b32 s3, {sBLK}, 4"))
    e(salu(f"s_add_u32 s3, s3, {sB}"))
    e(salu(f"s_lshl_b32 s3, s3, 3"))
    e(salu(f"s_add_u32 s3, s3, {sG}"))
    e(salu(f"s_mul_i32 s3, s3, {PART}"))
    srd(SRD_WS, 14, "s3", PART)
    e(salu(f"s_mov_b32 {sC}, {f32bits(CSCALE):#x}"))
    e(salu(f"s_mov_b32 {sTRAW}, {f32bits(TRAW):#x}"))
    e(salu(f"s_mov_b32 {sFLAG}, 0"))
    e(salu(f"s_mul_i32 {sM0K}, {sW}, {4 * KSTR}"))
    e(salu(f"s_lshl_b32 {sOFFKV}, {sW}, 11"))
    e(salu(f"s_lshl_b32 {sM0WO}, {sW}, 13"))
    e(salu(f"s_mul_i32 {sOFFWO}, {sW}, {64 * 896}"))
    e(salu(f"s_mul_i32 {sOFFWS}, {sW}, {14 * 2048}"))
    e(valu("v_lshrrev_b32", tA, 5, lane))
    e(valu("v_and_b32", tB, 31, lane))
    e(valu("v_lshlrev_b32", tC, 13, tA))
    e(valu("v_lshl_add_u32", vOFFKV, tB, 4, tC))
    e(valu("v_bfe_u32", tC, tB, 1, 3))
    e(valu("v_xor_b32", tC, tC, tA))
    e(valu("v_lshlrev_b32", tC, 4, tC))
    e(valu("v_lshl_add_u32", tC, tB, 7, tC))
    e(valu("v_add_u32", vAX[0], sM0X, tC))
    for sp in range(1, 4):
        e(valu("v_xor_b32", vAX[sp], sp << 5, vAX[0]))
    e(valu("v_and_b32", tC, 3, tB))
    e(valu("v_and_b32", tD, 4, tB))
    e(valu("v_lshl_add_u32", tC, tD, 1, tC))
    e(valu("v_and_b32", tD, 8, tB))
    e(valu("v_lshrrev_b32", tD, 1, tD))
    e(valu("v_add_u32", tC, tC, tD))
    e(valu("v_mul_u32_u24", vAK, KSTR, tC))
    e(valu("v_lshrrev_b32", tD, 4, tB))
    e(valu("v_lshl_add_u32", vAK, tD, 9, vAK))
    e(valu("v_lshl_add_u32", vAK, tA, 4, vAK))
    e(valu("v_bfe_u32", tE, lane, 2, 2))
    e(valu("v_lshl_add_u32", tC, tA, 3, tE))
    e(valu("v_and_b32", tD, 1, lane))
    e(valu("v_lshlrev_b32", tD, 4, tD))
    e(valu("v_and_b32", tB, 2, lane))
    e(valu("v_lshl_add_u32", tD, tB, 2, tD))
    e(valu("v_bfe_u32", tB, lane, 4, 1))
    e(valu("v_lshl_add_u32", tD, tB, 5, tD))
    e(valu("v_mul_u32_u24", vAV, VSTR, tC))
    e(valu("v_add_u32", vAV, vAV, tD))
    e(valu("v_add_u32", vAWQ, P1BASE, vAV))
    e(valu("v_add_u32", vAV, VBASE, vAV))
    e(valu("v_lshl_add_u32", tC, tC, 7, tD))
    e(valu("v_lshrrev_b32", tE, 1, tE))
    e(valu("v_lshlrev_b32", tE, 6, tE))
    e(valu("v_add_u32", vAWO[0][0], tC, tE))
    e(valu("v_xor_b32", tE, 64, tE))
    e(valu("v_add_u32", vAWO[0][1], tC, tE))
    e(valu("v_add_u32", vAWO[1][0], 2 * WOSLOT, vAWO[0][0]))
    e(valu("v_add_u32", vAWO[1][1], 2 * WOSLOT, vAWO[0][1]))
    e(valu("v_lshrrev_b32", tC, 3, lane))
    e(valu("v_mul_u32_u24", tC, 896, tC))
    e(valu("v_and_b32", tD, 7, lane))
    e(valu("v_lshlrev_b32", tB, 2, tB))
    e(valu("v_xor_b32", tD, tD, tB))
    e(valu("v_lshl_add_u32", vOFFWO, tD, 4, tC))
    if PFN:
        e(valu("v_lshlrev_b32", vL128, 7, lane))
        e(salu(f"s_cmp_lt_u32 {sW}, 2"))
        e(salu(f"s_cselect_b32 s96, s20, s24"))
        e(salu(f"s_cselect_b32 s97, s21, s25"))
        e(salu(f"s_mov_b32 s98, 262144"))
        e(salu(f"s_mov_b32 s99, 0x00020000"))
        e(salu(f"s_cselect_b32 {sPFOFF}, 5, 4"))
        e(salu(f"s_lshl_b32 {sPFOFF}, {sPFOFF}, 14"))
        e(salu(f"s_and_b32 s3, {sW}, 1"))
        e(salu(f"s_lshl_b32 s3, s3, 13"))
        e(salu(f"s_add_u32 {sPFOFF}, {sPFOFF}, s3"))
    if WARM:
        e(valu("v_lshrrev_b32", tA, 3, lane))
        e(valu("v_and_b32", tB, 7, lane))
        e(valu("v_lshlrev_b32", tA, 13, tA))
        e(valu("v_lshl_add_u32", vPFWQ, tB, 7, tA))
        if MAP == 0:
            e(salu(f"s_and_b32 s3, {sB}, 7"))
            e(salu(f"s_mul_i32 s3, s3, {56 * 8192}"))
            e(salu(f"s_lshl_b32 {sT2}, {sW}, 16"))
            e(salu(f"s_add_u32 {sT2}, {sT2}, s3"))
            e(pfload(vDUMMY, vPFWQ, SRD_WQ, sT2, tag=("pfw", 0), n=1))
            e(salu(f"s_add_u32 {sT2}, {sT2}, {4 << 16}"))
            e(pfload(vDUMMY, vPFWQ, SRD_WQ, sT2, tag=("pfw", 1), n=1))
        else:
            e(salu(f"s_mul_i32 s3, {sB}, {28 * 8192}"))
            e(salu(f"s_lshl_b32 {sT2}, {sW}, 16"))
            e(salu(f"s_add_u32 {sT2}, {sT2}, s3"))
            warm = [pfload(vDUMMY, vPFWQ, SRD_WQ, sT2, tag=("pfw", 0), n=1, flags=WRMF)]
            if WARM == 2:
                warm.append(pfload(vDUMMY, vPFWQ, SRD_WQ, sT2, off=64, tag=("pfw", 1), n=1, flags=WRMF))
            if WARMAT < 0:
                ext(warm)
    if CODEW:
        e(raw("s_getpc_b64 s[96:97]", "salu"))
        e(valu("v_lshlrev_b32", vCW, 6, V(0)))
        e(valu("v_add_u32", vCW, 8192, vCW))
    e(WaitVM(("x", 0)))
    for s in range(4):
        ext(rd_x(s))
    e(barrier())

    LA = 6
    for f in range(LA):
        ext(rd_wq(f))
    pre = [dma_k(0), dma_k(1), dma_v(0), stage_ld(0, "v", 1), stage_ld(1, "v", 2), stage_ld(2, "v", 3),
           stage_ld(3, "v", 4), dma_k(2), dma_k(3)]
    kv_at = {}
    if SMOOTH:
        units = []
        for g_ in pre:
            head, rest = g_[0], g_[1:]
            per = len(rest) // 4
            for i in range(4):
                units.append([head] + rest[i * per: (i + 1) * per])
        lo, hi = SMOOTH, 23
        for u in range(28):
            kv_at.setdefault(lo + u * (hi - lo) // 28, []).extend(units[u])
        for u in range(8):
            kv_at.setdefault(23 + u // 2, []).extend(units[28 + u])
    else:
        for st_, g_ in zip(KVAT, pre):
            kv_at.setdefault(st_, []).extend(g_)
    for s in range(28):
        if STAMP and s in STS:
            ext(stamp())
        slots = []
        for nt in range(16):
            f = 16 * s + nt
            sl = [mfma(Qacc(nt), Wf(f), Xf(s), Qacc(nt) if s > 0 else 0)]
            if f + LA < 448:
                sl += rd_wq(f + LA)
            if nt == 3 and s + 1 < 28:
                if s == 23:
                    sl += [WaitAll(vm=False, lgkm=True)]
                sl += [WaitVM(("wq", s + 1)), barrier()]
            slots.append(sl)
        fill = []
        if s + NP1 - 1 < 28:
            fill += dma_wq(s + NP1 - 1)
        if WARM and s == WARMAT:
            fill += warm
        if s in kv_at:
            fill += kv_at[s]
        if CODEW and s % 2 == 1 and 1 <= (s - 1) // 2 <= CODEW:
            fill += [Ins(f"global_load_dword {vDUMMY}, {vCW}, s[96:97]", "vmem", uses=[vCW], tag=("cw", s), cost=8),
                     valu("v_add_u32", vCW, 16384, vCW)]
        if PFN and s >= PFAT and (s - PFAT) % 2 == 0 and (s - PFAT) // 2 < PFN:
            fill += [salu(f"s_add_u32 {sT2}, {sPFOFF}, {((s - PFAT) // 2) * 16384}", defs=[sT2]),
                     pfload(vDUMMY, vL128, SRD_PF, sT2, tag=("pf", s), n=1, flags=PFF)]
        if s % 4 == 1 and (s + 3) // 4 < 7:
            pc = (s + 3) // 4
            fill += [WaitVM(("x", pc))]
            for s2 in range(4):
                fill += rd_x(4 * pc + s2)
        if s % 4 == 0 and s // 4 + 2 < 7:
            fill += [WaitAll(vm=False, lgkm=True)] if s == 0 else []
            fill += dma_x(s // 4 + 2)
        ext(interleave(slots, fill, start=4, end=14))

    ext(stamp())
    e(WaitVM(("k", 0)))
    e(barrier())
    for s3 in range(3):
        ext(rd_k(0, s3))
    e(valu("v_add_u32", vT[0], sM0V, vL16))
    e(valu("v_add_u32", vT[0], VBASE + VSLOT, vT[0]))
    e(valu("v_add_u32", vAV2, VS[4], vAV))
    drain = []
    for t in range(4):
        for i in range(4):
            drain.append(ds_write_b128(vT[0], STG(t)[4 * i: 4 * i + 4], VS[t] + i * VSTR))
    for qb in range(2):
        for s in range(16):
            acc = Qacc(qb * 8 + s // 2)
            for ee in range(8):
                e(valu("v_accvgpr_read_b32", vTMP[ee], acc[(s % 2) * 8 + ee]))
            for jj in range(4):
                e(valu("v_cvt_pk_bf16_f32", Qf(qb, s)[jj], vTMP[2 * jj], vTMP[2 * jj + 1]))
            if qb == 0:
                e(drain[s])
    e(WaitAll(vm=False, lgkm=True))

    ext(stamp())
    for j in range(17):
        p = j % 2
        if j in (4, 12) and not FINE:
            ext(stamp())
        fillA = softmax2(j - 1) if j >= 1 else []
        if j < 16:
            slots = []
            for s in range(16):
                for qb in range(2):
                    sl = [mfma(Sb(p, qb), Kf(s), Qf(qb, s), Sb(p, qb) if s > 0 else 0)]
                    if qb == 0:
                        if s + 3 < 16:
                            sl += rd_k(j, s + 3)
                        elif j >= 1:
                            sl += rd_v(j - 1, s + 3 - 16)
                    slots.append(sl)
            ext(interleave(slots, fillA, start=0, end=30))
        if j >= 2:
            ext(resc_check())
        waits = []
        if j + 1 < 16:
            waits.append(("k", j + 1))
        if j < 16:
            waits.append(("v", j))
        grp = []
        if NV <= j + NV - 2 < 16:
            grp += dma_v(j + NV - 2)
        if j + NK < 16:
            grp += dma_k(j + NK)
        if j == WOWARM:
            grp += [valu("v_lshlrev_b32", vTMP[0], 2, vL16),
                    salu(f"s_mul_i32 s3, {sB}, 28672"), salu(f"s_lshl_b32 {sT2}, {sW}, 12"),
                    salu(f"s_add_u32 {sT2}, {sT2}, s3", defs=[sT2]),
                    pfload(vTMP[1], vTMP[0], SRD_WO, sT2, tag=("pfo", 0), n=1, flags=WRMF),
                    salu(f"s_add_u32 {sT2}, {sT2}, 16384", defs=[sT2]),
                    pfload(vTMP[1], vTMP[0], SRD_WO, sT2, tag=("pfo", 1), n=1, flags=WRMF)]
        if j == 13:
            grp += dma_wo(0)
        if j == 15:
            grp += dma_wo(1) + dma_wo(3)
        sync = [WaitVM(waits), barrier()] if j < 16 else []
        fillB = softmax1(j) if j < 16 else []
        if j == 16:
            for qb in range(2):
                fillB.append(valu("v_mov_b32", vU[qb], vL[qb]))
            for qb in range(2):
                fillB.append(Ins(f"v_permlane32_swap_b32 {vL[qb]}, {vU[qb]}", "perm",
                                 defs=[vL[qb], vU[qb]], uses=[vL[qb], vU[qb]]))
            for qb in range(2):
                fillB.append(valu("v_add_f32", vL[qb], vL[qb], vU[qb]))
            for qb in range(2):
                fillB.append(valu("v_rcp_f32", vL[qb], vL[qb]))
        if j >= 1:
            slots = []
            for f in range(16):
                dt, ks = divmod(f, 2)
                for qb in range(2):
                    sl = [mfma(Oacc(dt, qb), Vf(f), Pf(1 - p, qb, ks),
                               Oacc(dt, qb) if (j > 1 or ks > 0) else 0)]
                    if qb == 0:
                        if f + 3 < 16:
                            sl += rd_v(j - 1, f + 3)
                        elif j + 1 < 16:
                            sl += rd_k(j + 1, f + 3 - 16)
                        elif j == 15:
                            sl += rd_v(15, f + 3 - 16)
                    if f == 0 and qb == 1:
                        sl += sync
                    slots.append(sl)
            if j == 16:
                for k in range(NPRE):
                    cv = conv_o(k)
                    for q4 in range(4):
                        slots[7 + 4 * k + q4] += cv[5 * q4: 5 * q4 + 5]
                ext(interleave(slots, fillB, start=0, end=6))
            else:
                ext(interleave(slots, grp + fillB, start=2, end=32))
        else:
            ext(sync)
            ext(grp)
            for s3 in range(3):
                ext(rd_k(1, s3))
            ext(fillB)

    ext(stamp())
    e(WaitVM(("wo", 0)))
    e(barrier())
    ext(dma_wo(2))
    if NWO == 5:
        ext(dma_wo(4))
        for tt in range(2):
            e(valu("v_add_u32", vAWO[2][tt], 4 * WOSLOT, vAWO[0][tt]))
    for f in range(LA):
        ext(rd_wo(f))
    cvl = []
    for ksg in range(NPRE, 32):
        cvl += conv_o(ksg)

    ext(stamp())
    for sg in range(14):
        ps, hs = divmod(sg, 2)
        if sg in (2, 8) and not FINE:
            ext(stamp())
        slots = []
        for r in range(32):
            f = 32 * sg + r
            ks, tt = divmod(r, 2)
            ksg = 16 * hs + ks
            acc = Wacc(ps % 2, tt)
            sl = [mfma(acc, Wf(f), Of(ksg), acc if ksg > 0 else 0)]
            if f + LA < 448:
                sl += rd_wo(f + LA)
            if ps == 0 and f < 60:
                sl += cvl[f * len(cvl) // 60: (f + 1) * len(cvl) // 60]
            if r == 3 and sg + 1 < 14:
                sl += [WaitVM(("wo", sg + 1)), barrier()]
            slots.append(sl)
        fill = []
        if sg >= 1 and sg + NWO - 1 < 14:
            fill += dma_wo(sg + NWO - 1)
        if ps >= 1:
            sp_ = store_pass(ps - 1)
            for k in range(2):
                if not env("NOST", 0):
                    slots[10 + 12 * k] += sp_[2 * hs + k]
        ext(interleave(slots, fill, start=4, end=26))

    ext(stamp())
    for g_ in store_pass(6):
        ext(g_)
    if STAMP:
        e(WaitAll())
    ext(stamp())
    ext(stamp(True))
    ext(stamp_store())
    e(label("L_end"))
    e(raw("s_endpgm"))

    lines = finalize(st)

    sub = []
    s_ = sub.append
    s_(label("L_slow"))
    s_(nop(2))
    for qb in range(2):
        s_(valu("v_max_f32", vMR[qb], vMR[qb], vT[qb]))
        s_(valu("v_mul_f32", vU[qb], sC, vMR[qb]))
        s_(valu("v_sub_f32", vAL[qb], vM[qb], vU[qb]))
        s_(valu("v_exp_f32", vAL[qb], vAL[qb]))
        s_(valu("v_mov_b32", vM[qb], vU[qb]))
        s_(valu("v_add_f32", vTHR[qb], sTRAW, vMR[qb]))
        s_(valu("v_mul_f32", vL[qb], vL[qb], vAL[qb]))
    s_(salu(f"s_mov_b32 {sFLAG}, 1"))
    s_(nop(2))
    s_(raw(f"s_setpc_b64 {sRET}"))
    s_(label("L_resc"))
    s_(nop(16))
    tt = [vU[0], vU[1], vT[0], vT[1]]
    for dt in range(8):
        for qb in range(2):
            acc = Oacc(dt, qb)
            for r0 in range(0, 16, 4):
                for k in range(4):
                    s_(valu("v_accvgpr_read_b32", tt[k], acc[r0 + k]))
                for k in range(4):
                    s_(valu("v_mul_f32", tt[k], tt[k], vAL[qb]))
                for k in range(4):
                    s_(valu("v_accvgpr_write_b32", acc[r0 + k], tt[k]))
    s_(salu(f"s_mov_b32 {sFLAG}, 0"))
    s_(nop(4))
    s_(raw(f"s_setpc_b64 {sRET}"))
    lines += finalize(sub)
    return lines


NPC = env("NPC", 4)
K2_WGS = 896 // NPC


def gen_k2():
    st = []
    e = st.append
    per = 28 // NPC
    magic = (65536 + per - 1) // per
    assert all((i * magic) >> 16 == i // per for i in range(K2_WGS))
    e(salu(f"s_cmp_ge_u32 s2, {K2_WGS}"))
    e(salu("s_cbranch_scc1 L2_end"))
    e(salu("s_load_dwordx2 s[4:5], s[0:1], 80"))
    e(salu("s_load_dwordx2 s[6:7], s[0:1], 96"))
    e(salu(f"s_mul_i32 s10, s2, {magic}"))
    e(salu("s_lshr_b32 s10, s10, 16"))
    e(salu(f"s_mul_i32 s11, s10, {per}"))
    e(salu("s_sub_u32 s11, s2, s11"))
    e(salu(f"s_mul_i32 s11, s11, {NPC}"))
    lane, w, t1, t2 = V(1), V(2), V(3), V(4)
    e(valu("v_and_b32", lane, 63, V(0)))
    e(valu("v_lshrrev_b32", w, 6, V(0)))
    e(valu("v_mul_u32_u24", t1, 14 * 2048, w))
    e(valu("v_lshl_add_u32", t1, lane, 4, t1))
    e(salu("s_lshl_b32 s12, s11, 10"))
    e(valu("v_add_u32", t1, S(12), t1))
    e(salu("s_and_b32 s13, s10, 15"))
    e(salu("s_lshr_b32 s14, s10, 4"))
    e(salu("s_mul_i32 s13, s13, 229376"))
    e(salu("s_mul_i32 s14, s14, 896"))
    e(salu("s_add_u32 s13, s13, s14"))
    e(salu("s_lshl_b32 s14, s11, 5"))
    e(salu("s_add_u32 s13, s13, s14"))
    e(valu("v_and_b32", t2, 31, lane))
    e(valu("v_lshl_add_u32", t2, w, 5, t2))
    e(valu("v_mul_u32_u24", t2, 1792, t2))
    e(valu("v_lshrrev_b32", lane, 5, lane))
    e(valu("v_lshl_add_u32", t2, lane, 4, t2))
    e(valu("v_add_u32", t2, S(13), t2))
    e(raw("s_waitcnt lgkmcnt(0)", "wait"))
    e(salu("s_mov_b32 s16, s4"))
    e(salu("s_mov_b32 s17, s5"))
    e(salu(f"s_mov_b32 s18, {16 * 128 * 896 * 2}"))
    e(salu("s_mov_b32 s19, 0x00020000"))
    e(salu(f"s_mul_i32 s14, s10, {8 * PART}"))
    e(salu("s_add_u32 s20, s6, s14"))
    e(salu("s_addc_u32 s21, s7, 0"))
    e(salu(f"s_mov_b32 s22, {8 * PART}"))
    e(salu("s_mov_b32 s23, 0x00020000"))
    e(salu("s_mov_b32 s32, 0xffff0000"))
    so, sw = S(16, 4), S(20, 4)
    for g in range(8):
        e(salu(f"s_mov_b32 s{24 + g}, {g * PART}"))
    D0 = 32
    for pc in range(NPC):
        for g in range(8):
            e(bload(V(D0 + (pc * 8 + g) * 4, 4), t1, sw, S(24 + g), off=pc * 1024, flags=K2F))
    acc = V(8, 8)
    tmp = V(16, 8)
    for pc in range(NPC):
        for g in range(8):
            for jj in range(4):
                src = V(D0 + (pc * 8 + g) * 4 + jj)
                dlo, dhi = (acc[2 * jj], acc[2 * jj + 1]) if g == 0 else (tmp[2 * jj], tmp[2 * jj + 1])
                e(valu("v_lshlrev_b32", dlo, 16, src))
                e(valu("v_and_b32", dhi, S(32), src))
            if g:
                for k in range(8):
                    e(valu("v_add_f32", acc[k], acc[k], tmp[k]))
        res = V(24 + (pc % 2) * 4, 4)
        for jj in range(4):
            e(valu("v_cvt_pk_bf16_f32", res[jj], acc[2 * jj], acc[2 * jj + 1]))
        e(bstore(res, t2, so, 0, off=pc * 32))
    if STAMP == 3:
        e(salu("s_cmp_lg_u32 s2, 0"))
        e(salu("s_cbranch_scc1 L2_end"))
        e(salu("s_load_dwordx2 s[16:17], s[0:1], 88"))
        e(salu(f"s_add_u32 s20, s6, {64 << 20}"))
        e(salu("s_addc_u32 s21, s7, 0"))
        e(salu("s_mov_b32 s22, 64"))
        e(salu("s_mov_b32 s18, 64"))
        e(valu("v_lshlrev_b32", V(3), 2, V(0)))
        e(raw("s_waitcnt lgkmcnt(0)", "wait"))
        e(bload(V(5), V(3), sw, 0, n=1))
        e(bstore(V(5), V(3), so, 0, n=1))
    e(label("L2_end"))
    e(raw("s_endpgm"))
    return finalize(st)


HEADER = open(os.path.join(os.path.dirname(os.path.abspath(__file__)), "header.txt")).read()


def kd(name, vgpr, accum, sgpr):
    return f""".amdhsa_kernel {name}
  .amdhsa_next_free_vgpr {vgpr}
  .amdhsa_next_free_sgpr {sgpr}
  .amdhsa_accum_offset {accum}
  .amdhsa_group_segment_fixed_size 0
  .amdhsa_kernarg_size 104
  .amdhsa_user_sgpr_count 2
  .amdhsa_user_sgpr_kernarg_segment_ptr 1
  .amdhsa_system_sgpr_workgroup_id_x 1
.end_amdhsa_kernel
"""


def main():
    out = HEADER
    out += f"; @launch kernel={K1} grid=(256,1,1) block=(256,1,1) lds={LDS_BYTES}\n"
    out += f"; @launch kernel={K2} grid=({K2_WGS},1,1) block=(256,1,1) lds=0\n"
    out += '.amdgcn_target "amdgcn-amd-amdhsa--gfx950"\n.text\n'
    for name, gen in ((K1, gen_k1), (K2, gen_k2)):
        out += f".globl {name}\n.p2align 8\n.type {name},@function\n{name}:\n"
        out += "\n".join(gen()) + "\n"
    out += '.section .rodata,"a"\n.p2align 6\n'
    out += kd(K1, 512, 256, 102)
    out += ".p2align 6\n"
    out += kd(K2, 32 + 32 * NPC, 32 + 32 * NPC, 40)
    dst = sys.argv[1] if len(sys.argv) > 1 else f"cdna_kernels/{NAME}.s"
    open(dst, "w").write(out)
    print("wrote", dst, len(out), "bytes", out.count("\n"), "lines")


if __name__ == "__main__":
    main()
```

```python
import math
import struct
import sys
import os

sys.path.insert(0, os.path.dirname(os.path.abspath(__file__)))
from asmir import *

NAME = "concat_heads__gqa_block_cached__gqa_block_cached__near_ridge"
K1 = NAME + "_kernel"
K2 = "reduce_out_kernel"


def f32bits(x):
    return struct.unpack("<I", struct.pack("<f", x))[0]


def env(k, d):
    return type(d)(os.environ.get(k, d))


CSCALE = math.log2(math.e) / 16.0
TLOG2 = 8.0
TRAW = TLOG2 / CSCALE
KVF = env("KVF", "nt")
WQF = env("WQF", "")
XF = env("XF", "")
WOF = env("WOF", "")
STF = env("STF", "")
K2F = env("K2F", "")
STAMP = env("STAMP", 0)
WARM = env("WARM", 2)
SMOOTH = env("SMOOTH", 3)
MAP = env("MAP", 1)
KVAT = [int(x) for x in env("KVAT", "2,4,6,8,10,12,14,23,25").split(",")]
NG1 = env("NG1", 3)
NPRE = 6
WRMF = env("WRMF", "")
WOWARM = env("WOWARM", 12)
WARMAT = env("WARMAT", 1)
TLBT = env("TLBT", 0)
CODEW = env("CODEW", 0)
FINE = env("FINE", 0)
STS = (0, 1, 2, 4, 8, 14) if FINE else (0, 14)

SRD_X, SRD_K, SRD_V, SRD_WQ, SRD_WO, SRD_WS = (S(16, 4), S(20, 4), S(24, 4), S(28, 4), S(32, 4), S(36, 4))
sW, sG, sB, sBLK, sC = S(40), S(41), S(42), S(43), S(44)
sM0V, sOFFWQ, sM0K, sM0X, sOFFKV = S(45), S(46), S(47), S(48), S(49)
sT0, sT1 = S(50), S(51)
sMASK0, sMASK1 = S(52, 2), S(54, 2)
sFLAG = S(56)
sOFFX = S(57)
sRET = S(58, 2)
sM0WO = S(60)
sOFFWS = S(61)
sTRAW = S(62)
sOFFWO = S(63)
sT2 = S(100)


def Qf(qb, s):
    return V((qb * 16 + s) * 4, 4)


def Xf(s):
    return V(s * 4, 4)


def Of(ks):
    return V(ks * 4, 4)


def Sb(p, qb):
    return V(128 + p * 32 + qb * 16, 16)


def Kf(i):
    return V(192 + (i % 4) * 4, 4)


def Vf(i):
    return V(208 + (i % 4) * 4, 4)


def Wf(i):
    return V(192 + (i % 8) * 4, 4)


def Wacc(buf, tt):
    return V(128 + buf * 32 + tt * 16, 16)


vAK, vAV, vOFFKV, vL16 = V(224), V(225), V(226), V(227)
vM = [V(228), V(229)]
vTHR = [V(230), V(231)]
vL = [V(232), V(233)]
vAL = [V(234), V(235)]
vT = [V(236), V(237)]
vU = [V(238), V(239)]
vTMP = V(240, 8)
vMR = [V(248), V(249)]
vAWQ = V(250)
vOFFWO = V(251)
vAWO = [[V(252), V(253)], [V(254), V(255)], [V(228), V(229)]]
NWO = env("NWO", 4)
vXO = [V(112), V(113)]
vAX = V(114, 4)
vDUMMY, vPFWQ, vL128, vCW = V(118), V(119), V(120), V(121)
SRD_PF = S(96, 4)
sPFOFF = S(101)
PFN = env("PFN", 0)
PFF = env("PFF", "")
PFAT = env("PFAT", 16)
vAV2 = vAWQ


def STG(t):
    return V(128 + 16 * t, 16)

KSTR, VSTR = 1040, 1088
KSLOT, VSLOT = 16 * KSTR, 16 * VSTR
VBASE = 4 * KSLOT
NK, NV = 4, 5
KS = [i * KSLOT for i in range(4)]
VS = [i * VSLOT for i in range(NV)]
P1BASE = VBASE + VSLOT
NP1 = 4
XBASE = 2 * KSLOT
assert XBASE + 32768 <= 4 * KSLOT
WOSLOT = 32768
LDS_BYTES = 163840
PART = 4 * 14 * 2048
assert P1BASE + NP1 * VSLOT <= LDS_BYTES


def Oacc(dt, qb):
    return A((dt * 2 + qb) * 16, 16)


def Qacc(nt):
    return A(nt * 16, 16)


def barrier():
    return raw("s_barrier", "other", cost=4)


_nst = 0


def stamp(real=False):
    global _nst
    if not STAMP:
        return []
    i = _nst
    _nst += 1
    assert i < 16
    op = "s_memrealtime" if (real or STAMP >= 2) else "s_memtime"
    return [raw(f"{op} s[{64 + 2 * i}:{65 + 2 * i}]", "salu", cost=2)]


def stamp_store():
    if not STAMP:
        return []
    if STAMP == 3:
        out = [raw("s_waitcnt lgkmcnt(0)", "wait"),
               salu(f"s_cmp_lg_u32 {sW}, 0"), salu("s_cbranch_scc1 L_end"),
               salu(f"s_cmp_lg_u32 s2, 77"), salu("s_cbranch_scc1 L_end"),
               salu(f"s_add_u32 s4, s14, {64 << 20}"), salu("s_addc_u32 s5, s15, 0"),
               salu("s_mov_b32 s6, 256"), salu("s_mov_b32 s7, 0x00020000"),
               valu("v_mov_b32", V(2), 0)]
        for i in range(_nst):
            out.append(salu(f"s_sub_u32 s3, s{64 + 2 * i}, s64"))
            out.append(valu("v_mov_b32", V(4 + i), S(3)))
            out.append(bstore(V(4 + i), V(2), S(4, 4), 0, off=i * 4, n=1))
        return out
    out = [raw("s_waitcnt lgkmcnt(0)", "wait"),
           salu(f"s_cmp_lg_u32 {sW}, 0"), salu("s_cbranch_scc1 L_end"),
           salu("s_lshl_b32 s3, s2, 7"), salu(f"s_add_u32 s3, s3, {64 << 20}"),
           salu("s_add_u32 s4, s14, s3"), salu("s_addc_u32 s5, s15, 0"),
           salu("s_mov_b32 s6, 128"), salu("s_mov_b32 s7, 0x00020000"),
           valu("v_mov_b32", V(2), 0)]
    for i in range(_nst):
        out.append(valu("v_mov_b32", V(4 + 2 * i), S(64 + 2 * i)))
        out.append(valu("v_mov_b32", V(5 + 2 * i), S(65 + 2 * i)))
        out.append(bstore(V(4 + 2 * i, 2), V(2), S(4, 4), 0, off=i * 8, n=2))
    return out


def dma_wq(s):
    out = []
    for i in range(4):
        out.append(setm0(f"s_add_u32 m0, {sM0V}, {P1BASE + (s % NP1) * VSLOT + i * VSTR}"))
        out.append(salu(f"s_add_u32 {sT0}, {sOFFWQ}, {(16 * s + i) * 8192}", defs=[sT0]))
        out.append(dma(vL16, SRD_WQ, sT0, tag=("wq", s), flags=WQF))
    return out


def dma_x(pc):
    out = []
    for i in range(4):
        out.append(setm0(f"s_add_u32 m0, {sM0X}, {(pc % 2) * 16384 + i * 1024}"))
        out.append(salu(f"s_add_u32 {sT1}, {sOFFX}, {pc * 128 + i * 8 * 896}", defs=[sT1]))
        out.append(dma(vXO[i % 2], SRD_X, sT1, tag=("x", pc), flags=XF))
    return out


def dma_k(j):
    out = [salu(f"s_add_u32 {sT1}, {sOFFKV}, {j * 16384}", defs=[sT1])]
    for i in range(4):
        out.append(setm0(f"s_add_u32 m0, {sM0K}, {KS[j % NK] + i * (KSTR - 512)}"))
        out.append(dma(vOFFKV, SRD_K, sT1, off=i * 512, tag=("k", j), flags=KVF))
    return out


def dma_v(j):
    out = [salu(f"s_add_u32 {sT1}, {sOFFKV}, {j * 16384}", defs=[sT1])]
    for i in range(4):
        out.append(setm0(f"s_add_u32 m0, {sM0V}, {VBASE + VS[j % NV] + i * (VSTR - 512)}"))
        out.append(dma(vOFFKV, SRD_V, sT1, off=i * 512, tag=("v", j), flags=KVF))
    return out


def dma_wo(sg):
    ps, hs = divmod(sg, 2)
    out = []
    for i in range(8):
        out.append(setm0(f"s_add_u32 m0, {sM0WO}, {(sg % NWO) * WOSLOT + i * 1024}"))
        out.append(salu(f"s_add_u32 {sT1}, {sOFFWO}, {(256 * hs + 8 * i) * 896 + 128 * ps}", defs=[sT1]))
        out.append(dma(vOFFWO, SRD_WO, sT1, tag=("wo", sg), flags=WOF))
    return out


def pfload(*a, **kw):
    i = bload(*a, **kw)
    i.defs = set()
    return i


def rd_wq(f):
    s, nt = divmod(f, 16)
    d = Wf(f)
    off = (s % NP1) * VSLOT + nt * 64
    return [ds_read_tr(d[0:2], vAWQ, off), ds_read_tr(d[2:4], vAWQ, off + 4 * VSTR)]


def rd_x(s):
    pc, sp = divmod(s, 4)
    return [ds_read_b128(Xf(s), vAX[sp], (pc % 2) * 16384)]


def rd_k(j, s):
    return [ds_read_b128(Kf(s), vAK, KS[j % NK] + s * 32)]


def stage_ld(t, kind, j):
    out = [salu(f"s_add_u32 {sT1}, {sOFFKV}, {j * 16384}", defs=[sT1])]
    for i in range(4):
        out.append(bload(STG(t)[4 * i: 4 * i + 4], vOFFKV, SRD_K if kind == "k" else SRD_V, sT1,
                         off=i * 512, tag=("stg", t), flags=KVF))
    return out


def rd_v(j, f):
    dt, ks = divmod(f, 2)
    d = Vf(f)
    base, off = (vAV2, 0) if j % NV == 4 else (vAV, VS[j % NV])
    off += ks * 512 + dt * 64
    return [ds_read_tr(d[0:2], base, off), ds_read_tr(d[2:4], base, off + 4 * VSTR)]


def rd_wo(f):
    sg, r = divmod(f, 32)
    ks, tt = divmod(r, 2)
    slot = sg % NWO
    base = vAWO[slot // 2][tt]
    off = (slot % 2) * WOSLOT + ks * 2048
    d = Wf(f)
    return [ds_read_tr(d[0:2], base, off), ds_read_tr(d[2:4], base, off + 512)]


def sm_max(p):
    out = []
    for qb in range(2):
        s_ = Sb(p, qb)
        t = vT[qb]
        out.append(valu("v_max3_f32", t, s_[0], s_[1], s_[2]))
        for r in range(3, 15, 2):
            out.append(valu("v_max3_f32", t, t, s_[r], s_[r + 1]))
        out.append(valu("v_max_f32", t, t, s_[15]))
    for qb in range(2):
        out.append(valu("v_mov_b32", vU[qb], vT[qb]))
    for qb in range(2):
        out.append(Ins(f"v_permlane32_swap_b32 {vT[qb]}, {vU[qb]}", "perm", defs=[vT[qb], vU[qb]],
                       uses=[vT[qb], vU[qb]]))
    for qb in range(2):
        out.append(valu("v_max_f32", vT[qb], vT[qb], vU[qb]))
    return out


_lbl = 0


def sm_check(first):
    global _lbl
    out = []
    if first:
        for qb in range(2):
            out.append(valu("v_mov_b32", vMR[qb], vT[qb]))
            out.append(valu("v_mul_f32", vM[qb], sC, vT[qb]))
            out.append(valu("v_add_f32", vTHR[qb], sTRAW, vT[qb]))
            out.append(valu("v_mov_b32", vL[qb], 0))
        return out
    out.append(valu("v_cmp_gt_f32", sMASK0, vT[0], vTHR[0]))
    out.append(valu("v_cmp_gt_f32", sMASK1, vT[1], vTHR[1]))
    _lbl += 1
    out.append(Group([
        salu(f"s_or_b64 {sMASK0}, {sMASK0}, {sMASK1}", defs=[sMASK0], uses=[sMASK0, sMASK1]),
        salu(f"s_cbranch_scc0 L_noslow{_lbl}"),
        Ins(f"s_call_b64 {sRET}, L_slow", "salu", cost=2,
            defs=vM + vTHR + vL + vAL + vMR + vU, uses=vM + vTHR + vL + vT + vMR),
        label(f"L_noslow{_lbl}")]))
    return out


def sm_exp(p, qb, grp):
    s_ = Sb(p, qb)
    out = []
    rs = range(4 * grp, 4 * grp + 4)
    for r in rs:
        out.append(valu("v_fma_f32", s_[r], s_[r], sC, ("-", vM[qb])))
    for r in rs:
        out.append(valu("v_exp_f32", s_[r], s_[r]))
    for r in rs:
        out.append(valu("v_add_f32", vL[qb], vL[qb], s_[r]))
    ks, g2 = divmod(grp, 2)
    for jj in range(2):
        j = 2 * g2 + jj
        out.append(valu("v_cvt_pk_bf16_f32", s_[8 * ks + j], s_[8 * ks + 2 * j], s_[8 * ks + 2 * j + 1]))
    return out


def Pf(p, qb, ks):
    return Sb(p, qb)[8 * ks: 8 * ks + 4]


def resc_check():
    global _lbl
    _lbl += 1
    return [
        salu(f"s_cmp_eq_u32 {sFLAG}, 0", uses=[sFLAG]),
        salu(f"s_cbranch_scc1 L_nores{_lbl}"),
        Ins(f"s_call_b64 {sRET}, L_resc", "salu", cost=2),
        label(f"L_nores{_lbl}"),
    ]


def softmax1(j):
    p = j % 2
    if j == 0:
        return []
    out = sm_max(p) + sm_check(False)
    for gi in range(8 if j == 15 else NG1):
        out += sm_exp(p, gi // 4, gi % 4)
    return out


def softmax2(j):
    p = j % 2
    if j == 15:
        return []
    out = []
    if j == 0:
        out = sm_max(p) + sm_check(True)
    for gi in range(0 if j == 0 else NG1, 8):
        out += sm_exp(p, gi // 4, gi % 4)
    return out


def conv_o(ksg):
    qb, s = divmod(ksg, 16)
    dt, hf = divmod(s, 2)
    acc = Oacc(dt, qb)
    out = []
    for ee in range(8):
        out.append(valu("v_accvgpr_read_b32", vTMP[ee], acc[hf * 8 + ee]))
    for ee in range(8):
        out.append(valu("v_mul_f32", vTMP[ee], vTMP[ee], vL[qb]))
    for jj in range(4):
        out.append(valu("v_cvt_pk_bf16_f32", Of(ksg)[jj], vTMP[2 * jj], vTMP[2 * jj + 1]))
    return out


def store_pass(ps):
    out = []
    for tt in range(2):
        acc = Wacc(ps % 2, tt)
        for sp in range(2):
            g = []
            for jj in range(4):
                g.append(valu("v_cvt_pk_bf16_f32", acc[8 * sp + jj], acc[8 * sp + 2 * jj], acc[8 * sp + 2 * jj + 1]))
            g.append(salu(f"s_add_u32 {sT0}, {sOFFWS}, {ps * 4096}", defs=[sT0]))
            g.append(bstore(acc[8 * sp: 8 * sp + 4], vL16, SRD_WS, sT0, off=(2 * tt + sp) * 1024, flags=STF))
            out.append(g)
    return out


def gen_k1():
    st = []
    e = st.append
    ext = st.extend
    ext(stamp(True))
    ext(stamp())
    e(salu("s_cmp_ge_u32 s2, 256"))
    e(salu("s_cbranch_scc1 L_end"))
    if MAP == 0:
        e(salu(f"s_and_b32 {sG}, s2, 7"))
        e(salu(f"s_lshr_b32 s3, s2, 6"))
        e(salu(f"s_xor_b32 {sG}, {sG}, s3"))
        e(salu(f"s_lshr_b32 {sB}, s2, 3"))
        e(salu(f"s_and_b32 {sB}, {sB}, 15"))
        e(salu(f"s_lshr_b32 {sBLK}, s2, 7"))
    else:
        e(salu(f"s_bfe_u32 {sBLK}, s2, 0x10002"))
        e(salu(f"s_and_b32 {sG}, s2, 3"))
        e(salu(f"s_lshl_b32 {sG}, {sG}, 1"))
        e(salu(f"s_bfe_u32 s3, s2, 0x10003"))
        e(salu(f"s_or_b32 {sG}, {sG}, s3"))
        e(salu(f"s_lshr_b32 {sB}, s2, 4"))
    e(salu(f"s_load_dwordx2 s[14:15], s[0:1], 96"))
    e(salu(f"s_mul_i32 s3, {sBLK}, 40"))
    e(salu("s_add_u32 s0, s0, s3"))
    e(salu("s_addc_u32 s1, s1, 0"))
    e(salu("s_load_dwordx8 s[4:11], s[0:1], 0"))
    e(salu("s_load_dwordx2 s[12:13], s[0:1], 32"))
    lane, tA, tB, tC, tD, tE = (vTMP[i] for i in range(6))
    e(valu("v_and_b32", lane, 63, V(0)))
    e(valu("v_lshrrev_b32", tA, 6, V(0)))
    e(Ins(f"v_readfirstlane_b32 {sW}, {tA}", "valu", defs=[sW], uses=[tA]))
    e(valu("v_lshlrev_b32", vL16, 4, lane))
    e(valu("v_lshrrev_b32", tA, 3, lane))
    e(valu("v_mul_u32_u24", tA, 896, tA))
    e(valu("v_and_b32", tB, 7, lane))
    e(valu("v_lshrrev_b32", tC, 4, lane))
    e(valu("v_xor_b32", tB, tB, tC))
    e(valu("v_lshl_add_u32", vXO[0], tB, 4, tA))
    e(valu("v_xor_b32", vXO[1], 64, vXO[0]))
    e(salu(f"s_mul_i32 {sM0V}, {sW}, {4 * VSTR}", uses=[sW]))
    e(salu(f"s_lshl_b32 {sOFFWQ}, {sW}, 15"))
    e(salu(f"s_lshl_b32 {sM0X}, {sW}, 12"))
    e(salu(f"s_add_u32 {sM0X}, {sM0X}, {XBASE}"))
    e(salu(f"s_mul_i32 {sOFFX}, {sW}, {32 * 896}"))
    e(raw("s_waitcnt lgkmcnt(0)", "wait"))

    def srd(d, ptr_lo, off_expr_reg, size):
        e(salu(f"s_add_u32 s{d.b}, s{ptr_lo}, {off_expr_reg}"))
        e(salu(f"s_addc_u32 s{d.b + 1}, s{ptr_lo + 1}, 0"))
        e(salu(f"s_mov_b32 s{d.b + 2}, {size}"))
        e(salu(f"s_mov_b32 s{d.b + 3}, 0x00020000"))

    e(salu(f"s_lshl_b32 s3, {sG}, 10"))
    srd(SRD_WQ, 10, "s3", 447 * 8192 + 1024)
    e(salu(f"s_mul_i32 s3, {sB}, 114688"))
    srd(SRD_X, 4, "s3", 114688)
    if TLBT:
        e(valu("v_lshlrev_b32", vPFWQ, 13, V(0)))
        e(pfload(vDUMMY, vPFWQ, SRD_WQ, 0, tag=("tl", 0), n=1))
        e(valu("v_lshlrev_b32", vCW, 12, lane))
        e(pfload(vDUMMY, vCW, SRD_X, 0, tag=("tl", 1), n=1))
        if TLBT == 2:
            e(salu(f"s_mov_b32 {sT2}, {256 * 8192}"))
            e(pfload(vDUMMY, vPFWQ, SRD_WQ, sT2, tag=("tl", 2), n=1))
    ext(dma_wq(0))
    ext(dma_x(0))
    ext(dma_wq(1))
    ext(dma_x(1))
    ext(dma_wq(2))
    e(salu(f"s_lshl_b32 s3, {sB}, 3"))
    e(salu(f"s_add_u32 s3, s3, {sG}"))
    e(salu(f"s_lshl_b32 s3, s3, 18"))
    srd(SRD_K, 6, "s3", 262144)
    srd(SRD_V, 8, "s3", 262144)
    e(salu(f"s_mul_i32 s3, {sG}, 458752"))
    srd(SRD_WO, 12, "s3", 458752)
    e(salu(f"s_lshl_b32 s3, {sBLK}, 4"))
    e(salu(f"s_add_u32 s3, s3, {sB}"))
    e(salu(f"s_lshl_b32 s3, s3, 3"))
    e(salu(f"s_add_u32 s3, s3, {sG}"))
    e(salu(f"s_mul_i32 s3, s3, {PART}"))
    srd(SRD_WS, 14, "s3", PART)
    e(salu(f"s_mov_b32 {sC}, {f32bits(CSCALE):#x}"))
    e(salu(f"s_mov_b32 {sTRAW}, {f32bits(TRAW):#x}"))
    e(salu(f"s_mov_b32 {sFLAG}, 0"))
    e(salu(f"s_mul_i32 {sM0K}, {sW}, {4 * KSTR}"))
    e(salu(f"s_lshl_b32 {sOFFKV}, {sW}, 11"))
    e(salu(f"s_lshl_b32 {sM0WO}, {sW}, 13"))
    e(salu(f"s_mul_i32 {sOFFWO}, {sW}, {64 * 896}"))
    e(salu(f"s_mul_i32 {sOFFWS}, {sW}, {14 * 2048}"))
    e(valu("v_lshrrev_b32", tA, 5, lane))
    e(valu("v_and_b32", tB, 31, lane))
    e(valu("v_lshlrev_b32", tC, 13, tA))
    e(valu("v_lshl_add_u32", vOFFKV, tB, 4, tC))
    e(valu("v_bfe_u32", tC, tB, 1, 3))
    e(valu("v_xor_b32", tC, tC, tA))
    e(valu("v_lshlrev_b32", tC, 4, tC))
    e(valu("v_lshl_add_u32", tC, tB, 7, tC))
    e(valu("v_add_u32", vAX[0], sM0X, tC))
    for sp in range(1, 4):
        e(valu("v_xor_b32", vAX[sp], sp << 5, vAX[0]))
    e(valu("v_and_b32", tC, 3, tB))
    e(valu("v_and_b32", tD, 4, tB))
    e(valu("v_lshl_add_u32", tC, tD, 1, tC))
    e(valu("v_and_b32", tD, 8, tB))
    e(valu("v_lshrrev_b32", tD, 1, tD))
    e(valu("v_add_u32", tC, tC, tD))
    e(valu("v_mul_u32_u24", vAK, KSTR, tC))
    e(valu("v_lshrrev_b32", tD, 4, tB))
    e(valu("v_lshl_add_u32", vAK, tD, 9, vAK))
    e(valu("v_lshl_add_u32", vAK, tA, 4, vAK))
    e(valu("v_bfe_u32", tE, lane, 2, 2))
    e(valu("v_lshl_add_u32", tC, tA, 3, tE))
    e(valu("v_and_b32", tD, 1, lane))
    e(valu("v_lshlrev_b32", tD, 4, tD))
    e(valu("v_and_b32", tB, 2, lane))
    e(valu("v_lshl_add_u32", tD, tB, 2, tD))
    e(valu("v_bfe_u32", tB, lane, 4, 1))
    e(valu("v_lshl_add_u32", tD, tB, 5, tD))
    e(valu("v_mul_u32_u24", vAV, VSTR, tC))
    e(valu("v_add_u32", vAV, vAV, tD))
    e(valu("v_add_u32", vAWQ, P1BASE, vAV))
    e(valu("v_add_u32", vAV, VBASE, vAV))
    e(valu("v_lshl_add_u32", tC, tC, 7, tD))
    e(valu("v_lshrrev_b32", tE, 1, tE))
    e(valu("v_lshlrev_b32", tE, 6, tE))
    e(valu("v_add_u32", vAWO[0][0], tC, tE))
    e(valu("v_xor_b32", tE, 64, tE))
    e(valu("v_add_u32", vAWO[0][1], tC, tE))
    e(valu("v_add_u32", vAWO[1][0], 2 * WOSLOT, vAWO[0][0]))
    e(valu("v_add_u32", vAWO[1][1], 2 * WOSLOT, vAWO[0][1]))
    e(valu("v_lshrrev_b32", tC, 3, lane))
    e(valu("v_mul_u32_u24", tC, 896, tC))
    e(valu("v_and_b32", tD, 7, lane))
    e(valu("v_lshlrev_b32", tB, 2, tB))
    e(valu("v_xor_b32", tD, tD, tB))
    e(valu("v_lshl_add_u32", vOFFWO, tD, 4, tC))
    if PFN:
        e(valu("v_lshlrev_b32", vL128, 7, lane))
        e(salu(f"s_cmp_lt_u32 {sW}, 2"))
        e(salu(f"s_cselect_b32 s96, s20, s24"))
        e(salu(f"s_cselect_b32 s97, s21, s25"))
        e(salu(f"s_mov_b32 s98, 262144"))
        e(salu(f"s_mov_b32 s99, 0x00020000"))
        e(salu(f"s_cselect_b32 {sPFOFF}, 5, 4"))
        e(salu(f"s_lshl_b32 {sPFOFF}, {sPFOFF}, 14"))
        e(salu(f"s_and_b32 s3, {sW}, 1"))
        e(salu(f"s_lshl_b32 s3, s3, 13"))
        e(salu(f"s_add_u32 {sPFOFF}, {sPFOFF}, s3"))
    if WARM:
        e(valu("v_lshrrev_b32", tA, 3, lane))
        e(valu("v_and_b32", tB, 7, lane))
        e(valu("v_lshlrev_b32", tA, 13, tA))
        e(valu("v_lshl_add_u32", vPFWQ, tB, 7, tA))
        if MAP == 0:
            e(salu(f"s_and_b32 s3, {sB}, 7"))
            e(salu(f"s_mul_i32 s3, s3, {56 * 8192}"))
            e(salu(f"s_lshl_b32 {sT2}, {sW}, 16"))
            e(salu(f"s_add_u32 {sT2}, {sT2}, s3"))
            e(pfload(vDUMMY, vPFWQ, SRD_WQ, sT2, tag=("pfw", 0), n=1))
            e(salu(f"s_add_u32 {sT2}, {sT2}, {4 << 16}"))
            e(pfload(vDUMMY, vPFWQ, SRD_WQ, sT2, tag=("pfw", 1), n=1))
        else:
            e(salu(f"s_mul_i32 s3, {sB}, {28 * 8192}"))
            e(salu(f"s_lshl_b32 {sT2}, {sW}, 16"))
            e(salu(f"s_add_u32 {sT2}, {sT2}, s3"))
            warm = [pfload(vDUMMY, vPFWQ, SRD_WQ, sT2, tag=("pfw", 0), n=1, flags=WRMF)]
            if WARM == 2:
                warm.append(pfload(vDUMMY, vPFWQ, SRD_WQ, sT2, off=64, tag=("pfw", 1), n=1, flags=WRMF))
            if WARMAT < 0:
                ext(warm)
    if CODEW:
        e(raw("s_getpc_b64 s[96:97]", "salu"))
        e(valu("v_lshlrev_b32", vCW, 6, V(0)))
        e(valu("v_add_u32", vCW, 8192, vCW))
    e(WaitVM(("x", 0)))
    for s in range(4):
        ext(rd_x(s))
    e(barrier())

    LA = 6
    for f in range(LA):
        ext(rd_wq(f))
    pre = [dma_k(0), dma_k(1), dma_v(0), stage_ld(0, "v", 1), stage_ld(1, "v", 2), stage_ld(2, "v", 3),
           stage_ld(3, "v", 4), dma_k(2), dma_k(3)]
    kv_at = {}
    if SMOOTH:
        units = []
        for g_ in pre:
            head, rest = g_[0], g_[1:]
            per = len(rest) // 4
            for i in range(4):
                units.append([head] + rest[i * per: (i + 1) * per])
        lo, hi = SMOOTH, 23
        for u in range(28):
            kv_at.setdefault(lo + u * (hi - lo) // 28, []).extend(units[u])
        for u in range(8):
            kv_at.setdefault(23 + u // 2, []).extend(units[28 + u])
    else:
        for st_, g_ in zip(KVAT, pre):
            kv_at.setdefault(st_, []).extend(g_)
    for s in range(28):
        if STAMP and s in STS:
            ext(stamp())
        slots = []
        for nt in range(16):
            f = 16 * s + nt
            sl = [mfma(Qacc(nt), Wf(f), Xf(s), Qacc(nt) if s > 0 else 0)]
            if f + LA < 448:
                sl += rd_wq(f + LA)
            if nt == 3 and s + 1 < 28:
                if s == 23:
                    sl += [WaitAll(vm=False, lgkm=True)]
                sl += [WaitVM(("wq", s + 1)), barrier()]
            slots.append(sl)
        fill = []
        if s + NP1 - 1 < 28:
            fill += dma_wq(s + NP1 - 1)
        if WARM and s == WARMAT:
            fill += warm
        if s in kv_at:
            fill += kv_at[s]
        if CODEW and s % 2 == 1 and 1 <= (s - 1) // 2 <= CODEW:
            fill += [Ins(f"global_load_dword {vDUMMY}, {vCW}, s[96:97]", "vmem", uses=[vCW], tag=("cw", s), cost=8),
                     valu("v_add_u32", vCW, 16384, vCW)]
        if PFN and s >= PFAT and (s - PFAT) % 2 == 0 and (s - PFAT) // 2 < PFN:
            fill += [salu(f"s_add_u32 {sT2}, {sPFOFF}, {((s - PFAT) // 2) * 16384}", defs=[sT2]),
                     pfload(vDUMMY, vL128, SRD_PF, sT2, tag=("pf", s), n=1, flags=PFF)]
        if s % 4 == 1 and (s + 3) // 4 < 7:
            pc = (s + 3) // 4
            fill += [WaitVM(("x", pc))]
            for s2 in range(4):
                fill += rd_x(4 * pc + s2)
        if s % 4 == 0 and s // 4 + 2 < 7:
            fill += [WaitAll(vm=False, lgkm=True)] if s == 0 else []
            fill += dma_x(s // 4 + 2)
        ext(interleave(slots, fill, start=4, end=14))

    ext(stamp())
    e(WaitVM(("k", 0)))
    e(barrier())
    for s3 in range(3):
        ext(rd_k(0, s3))
    e(valu("v_add_u32", vT[0], sM0V, vL16))
    e(valu("v_add_u32", vT[0], VBASE + VSLOT, vT[0]))
    e(valu("v_add_u32", vAV2, VS[4], vAV))
    drain = []
    for t in range(4):
        for i in range(4):
            drain.append(ds_write_b128(vT[0], STG(t)[4 * i: 4 * i + 4], VS[t] + i * VSTR))
    for qb in range(2):
        for s in range(16):
            acc = Qacc(qb * 8 + s // 2)
            for ee in range(8):
                e(valu("v_accvgpr_read_b32", vTMP[ee], acc[(s % 2) * 8 + ee]))
            for jj in range(4):
                e(valu("v_cvt_pk_bf16_f32", Qf(qb, s)[jj], vTMP[2 * jj], vTMP[2 * jj + 1]))
            if qb == 0:
                e(drain[s])
    e(WaitAll(vm=False, lgkm=True))

    ext(stamp())
    for j in range(17):
        p = j % 2
        if j in (4, 12) and not FINE:
            ext(stamp())
        fillA = softmax2(j - 1) if j >= 1 else []
        if j < 16:
            slots = []
            for s in range(16):
                for qb in range(2):
                    sl = [mfma(Sb(p, qb), Kf(s), Qf(qb, s), Sb(p, qb) if s > 0 else 0)]
                    if qb == 0:
                        if s + 3 < 16:
                            sl += rd_k(j, s + 3)
                        elif j >= 1:
                            sl += rd_v(j - 1, s + 3 - 16)
                    slots.append(sl)
            ext(interleave(slots, fillA, start=0, end=30))
        if j >= 2:
            ext(resc_check())
        waits = []
        if j + 1 < 16:
            waits.append(("k", j + 1))
        if j < 16:
            waits.append(("v", j))
        grp = []
        if NV <= j + NV - 2 < 16:
            grp += dma_v(j + NV - 2)
        if j + NK < 16:
            grp += dma_k(j + NK)
        if j == WOWARM:
            grp += [valu("v_lshlrev_b32", vTMP[0], 2, vL16),
                    salu(f"s_mul_i32 s3, {sB}, 28672"), salu(f"s_lshl_b32 {sT2}, {sW}, 12"),
                    salu(f"s_add_u32 {sT2}, {sT2}, s3", defs=[sT2]),
                    pfload(vTMP[1], vTMP[0], SRD_WO, sT2, tag=("pfo", 0), n=1, flags=WRMF),
                    salu(f"s_add_u32 {sT2}, {sT2}, 16384", defs=[sT2]),
                    pfload(vTMP[1], vTMP[0], SRD_WO, sT2, tag=("pfo", 1), n=1, flags=WRMF)]
        if j == 13:
            grp += dma_wo(0)
        if j == 15:
            grp += dma_wo(1) + dma_wo(3)
        sync = [WaitVM(waits), barrier()] if j < 16 else []
        fillB = softmax1(j) if j < 16 else []
        if j == 16:
            for qb in range(2):
                fillB.append(valu("v_mov_b32", vU[qb], vL[qb]))
            for qb in range(2):
                fillB.append(Ins(f"v_permlane32_swap_b32 {vL[qb]}, {vU[qb]}", "perm",
                                 defs=[vL[qb], vU[qb]], uses=[vL[qb], vU[qb]]))
            for qb in range(2):
                fillB.append(valu("v_add_f32", vL[qb], vL[qb], vU[qb]))
            for qb in range(2):
                fillB.append(valu("v_rcp_f32", vL[qb], vL[qb]))
        if j >= 1:
            slots = []
            for f in range(16):
                dt, ks = divmod(f, 2)
                for qb in range(2):
                    sl = [mfma(Oacc(dt, qb), Vf(f), Pf(1 - p, qb, ks),
                               Oacc(dt, qb) if (j > 1 or ks > 0) else 0)]
                    if qb == 0:
                        if f + 3 < 16:
                            sl += rd_v(j - 1, f + 3)
                        elif j + 1 < 16:
                            sl += rd_k(j + 1, f + 3 - 16)
                        elif j == 15:
                            sl += rd_v(15, f + 3 - 16)
                    if f == 0 and qb == 1:
                        sl += sync
                    slots.append(sl)
            if j == 16:
                for k in range(NPRE):
                    cv = conv_o(k)
                    for q4 in range(4):
                        slots[7 + 4 * k + q4] += cv[5 * q4: 5 * q4 + 5]
                ext(interleave(slots, fillB, start=0, end=6))
            else:
                ext(interleave(slots, grp + fillB, start=2, end=32))
        else:
            ext(sync)
            ext(grp)
            for s3 in range(3):
                ext(rd_k(1, s3))
            ext(fillB)

    ext(stamp())
    e(WaitVM(("wo", 0)))
    e(barrier())
    ext(dma_wo(2))
    if NWO == 5:
        ext(dma_wo(4))
        for tt in range(2):
            e(valu("v_add_u32", vAWO[2][tt], 4 * WOSLOT, vAWO[0][tt]))
    for f in range(LA):
        ext(rd_wo(f))
    cvl = []
    for ksg in range(NPRE, 32):
        cvl += conv_o(ksg)

    ext(stamp())
    for sg in range(14):
        ps, hs = divmod(sg, 2)
        if sg in (2, 8) and not FINE:
            ext(stamp())
        slots = []
        for r in range(32):
            f = 32 * sg + r
            ks, tt = divmod(r, 2)
            ksg = 16 * hs + ks
            acc = Wacc(ps % 2, tt)
            sl = [mfma(acc, Wf(f), Of(ksg), acc if ksg > 0 else 0)]
            if f + LA < 448:
                sl += rd_wo(f + LA)
            if ps == 0 and f < 60:
                sl += cvl[f * len(cvl) // 60: (f + 1) * len(cvl) // 60]
            if r == 3 and sg + 1 < 14:
                sl += [WaitVM(("wo", sg + 1)), barrier()]
            slots.append(sl)
        fill = []
        if sg >= 1 and sg + NWO - 1 < 14:
            fill += dma_wo(sg + NWO - 1)
        if ps >= 1:
            sp_ = store_pass(ps - 1)
            for k in range(2):
                if not env("NOST", 0):
                    slots[10 + 12 * k] += sp_[2 * hs + k]
        ext(interleave(slots, fill, start=4, end=26))

    ext(stamp())
    for g_ in store_pass(6):
        ext(g_)
    if STAMP:
        e(WaitAll())
    ext(stamp())
    ext(stamp(True))
    ext(stamp_store())
    e(label("L_end"))
    e(raw("s_endpgm"))

    lines = finalize(st)

    sub = []
    s_ = sub.append
    s_(label("L_slow"))
    s_(nop(2))
    for qb in range(2):
        s_(valu("v_max_f32", vMR[qb], vMR[qb], vT[qb]))
        s_(valu("v_mul_f32", vU[qb], sC, vMR[qb]))
        s_(valu("v_sub_f32", vAL[qb], vM[qb], vU[qb]))
        s_(valu("v_exp_f32", vAL[qb], vAL[qb]))
        s_(valu("v_mov_b32", vM[qb], vU[qb]))
        s_(valu("v_add_f32", vTHR[qb], sTRAW, vMR[qb]))
        s_(valu("v_mul_f32", vL[qb], vL[qb], vAL[qb]))
    s_(salu(f"s_mov_b32 {sFLAG}, 1"))
    s_(nop(2))
    s_(raw(f"s_setpc_b64 {sRET}"))
    s_(label("L_resc"))
    s_(nop(16))
    tt = [vU[0], vU[1], vT[0], vT[1]]
    for dt in range(8):
        for qb in range(2):
            acc = Oacc(dt, qb)
            for r0 in range(0, 16, 4):
                for k in range(4):
                    s_(valu("v_accvgpr_read_b32", tt[k], acc[r0 + k]))
                for k in range(4):
                    s_(valu("v_mul_f32", tt[k], tt[k], vAL[qb]))
                for k in range(4):
                    s_(valu("v_accvgpr_write_b32", acc[r0 + k], tt[k]))
    s_(salu(f"s_mov_b32 {sFLAG}, 0"))
    s_(nop(4))
    s_(raw(f"s_setpc_b64 {sRET}"))
    lines += finalize(sub)
    return lines


NPC = env("NPC", 4)
K2_WGS = 896 // NPC


def gen_k2():
    st = []
    e = st.append
    per = 28 // NPC
    magic = (65536 + per - 1) // per
    assert all((i * magic) >> 16 == i // per for i in range(K2_WGS))
    e(salu(f"s_cmp_ge_u32 s2, {K2_WGS}"))
    e(salu("s_cbranch_scc1 L2_end"))
    e(salu("s_load_dwordx2 s[4:5], s[0:1], 80"))
    e(salu("s_load_dwordx2 s[6:7], s[0:1], 96"))
    e(salu(f"s_mul_i32 s10, s2, {magic}"))
    e(salu("s_lshr_b32 s10, s10, 16"))
    e(salu(f"s_mul_i32 s11, s10, {per}"))
    e(salu("s_sub_u32 s11, s2, s11"))
    e(salu(f"s_mul_i32 s11, s11, {NPC}"))
    lane, w, t1, t2 = V(1), V(2), V(3), V(4)
    e(valu("v_and_b32", lane, 63, V(0)))
    e(valu("v_lshrrev_b32", w, 6, V(0)))
    e(valu("v_mul_u32_u24", t1, 14 * 2048, w))
    e(valu("v_lshl_add_u32", t1, lane, 4, t1))
    e(salu("s_lshl_b32 s12, s11, 10"))
    e(valu("v_add_u32", t1, S(12), t1))
    e(salu("s_and_b32 s13, s10, 15"))
    e(salu("s_lshr_b32 s14, s10, 4"))
    e(salu("s_mul_i32 s13, s13, 229376"))
    e(salu("s_mul_i32 s14, s14, 896"))
    e(salu("s_add_u32 s13, s13, s14"))
    e(salu("s_lshl_b32 s14, s11, 5"))
    e(salu("s_add_u32 s13, s13, s14"))
    e(valu("v_and_b32", t2, 31, lane))
    e(valu("v_lshl_add_u32", t2, w, 5, t2))
    e(valu("v_mul_u32_u24", t2, 1792, t2))
    e(valu("v_lshrrev_b32", lane, 5, lane))
    e(valu("v_lshl_add_u32", t2, lane, 4, t2))
    e(valu("v_add_u32", t2, S(13), t2))
    e(raw("s_waitcnt lgkmcnt(0)", "wait"))
    e(salu("s_mov_b32 s16, s4"))
    e(salu("s_mov_b32 s17, s5"))
    e(salu(f"s_mov_b32 s18, {16 * 128 * 896 * 2}"))
    e(salu("s_mov_b32 s19, 0x00020000"))
    e(salu(f"s_mul_i32 s14, s10, {8 * PART}"))
    e(salu("s_add_u32 s20, s6, s14"))
    e(salu("s_addc_u32 s21, s7, 0"))
    e(salu(f"s_mov_b32 s22, {8 * PART}"))
    e(salu("s_mov_b32 s23, 0x00020000"))
    e(salu("s_mov_b32 s32, 0xffff0000"))
    so, sw = S(16, 4), S(20, 4)
    for g in range(8):
        e(salu(f"s_mov_b32 s{24 + g}, {g * PART}"))
    D0 = 32
    for pc in range(NPC):
        for g in range(8):
            e(bload(V(D0 + (pc * 8 + g) * 4, 4), t1, sw, S(24 + g), off=pc * 1024, flags=K2F))
    acc = V(8, 8)
    tmp = V(16, 8)
    for pc in range(NPC):
        for g in range(8):
            for jj in range(4):
                src = V(D0 + (pc * 8 + g) * 4 + jj)
                dlo, dhi = (acc[2 * jj], acc[2 * jj + 1]) if g == 0 else (tmp[2 * jj], tmp[2 * jj + 1])
                e(valu("v_lshlrev_b32", dlo, 16, src))
                e(valu("v_and_b32", dhi, S(32), src))
            if g:
                for k in range(8):
                    e(valu("v_add_f32", acc[k], acc[k], tmp[k]))
        res = V(24 + (pc % 2) * 4, 4)
        for jj in range(4):
            e(valu("v_cvt_pk_bf16_f32", res[jj], acc[2 * jj], acc[2 * jj + 1]))
        e(bstore(res, t2, so, 0, off=pc * 32))
    if STAMP == 3:
        e(salu("s_cmp_lg_u32 s2, 0"))
        e(salu("s_cbranch_scc1 L2_end"))
        e(salu("s_load_dwordx2 s[16:17], s[0:1], 88"))
        e(salu(f"s_add_u32 s20, s6, {64 << 20}"))
        e(salu("s_addc_u32 s21, s7, 0"))
        e(salu("s_mov_b32 s22, 64"))
        e(salu("s_mov_b32 s18, 64"))
        e(valu("v_lshlrev_b32", V(3), 2, V(0)))
        e(raw("s_waitcnt lgkmcnt(0)", "wait"))
        e(bload(V(5), V(3), sw, 0, n=1))
        e(bstore(V(5), V(3), so, 0, n=1))
    e(label("L2_end"))
    e(raw("s_endpgm"))
    return finalize(st)


HEADER = open(os.path.join(os.path.dirname(os.path.abspath(__file__)), "header.txt")).read()


def kd(name, vgpr, accum, sgpr):
    return f""".amdhsa_kernel {name}
  .amdhsa_next_free_vgpr {vgpr}
  .amdhsa_next_free_sgpr {sgpr}
  .amdhsa_accum_offset {accum}
  .amdhsa_group_segment_fixed_size 0
  .amdhsa_kernarg_size 104
  .amdhsa_user_sgpr_count 2
  .amdhsa_user_sgpr_kernarg_segment_ptr 1
  .amdhsa_system_sgpr_workgroup_id_x 1
.end_amdhsa_kernel
"""


def main():
    out = HEADER
    out += f"; @launch kernel={K1} grid=(256,1,1) block=(256,1,1) lds={LDS_BYTES}\n"
    out += f"; @launch kernel={K2} grid=({K2_WGS},1,1) block=(256,1,1) lds=0\n"
    out += '.amdgcn_target "amdgcn-amd-amdhsa--gfx950"\n.text\n'
    for name, gen in ((K1, gen_k1), (K2, gen_k2)):
        out += f".globl {name}\n.p2align 8\n.type {name},@function\n{name}:\n"
        out += "\n".join(gen()) + "\n"
    out += '.section .rodata,"a"\n.p2align 6\n'
    out += kd(K1, 512, 256, 102)
    out += ".p2align 6\n"
    out += kd(K2, 32 + 32 * NPC, 32 + 32 * NPC, 40)
    dst = sys.argv[1] if len(sys.argv) > 1 else f"cdna_kernels/{NAME}.s"
    open(dst, "w").write(out)
    print("wrote", dst, len(out), "bytes", out.count("\n"), "lines")


if __name__ == "__main__":
    main()
```

```python
import math
import struct
import sys
import os

sys.path.insert(0, os.path.dirname(os.path.abspath(__file__)))
from asmir import *

NAME = "concat_heads__gqa_block_cached__gqa_block_cached__near_ridge"
K1 = NAME + "_kernel"
K2 = "reduce_out_kernel"


def f32bits(x):
    return struct.unpack("<I", struct.pack("<f", x))[0]


def env(k, d):
    return type(d)(os.environ.get(k, d))


CSCALE = math.log2(math.e) / 16.0
TLOG2 = 8.0
TRAW = TLOG2 / CSCALE
KVF = env("KVF", "nt")
WQF = env("WQF", "")
XF = env("XF", "")
WOF = env("WOF", "")
STF = env("STF", "")
K2F = env("K2F", "")
STAMP = env("STAMP", 0)
WARM = env("WARM", 2)
SMOOTH = env("SMOOTH", 3)
MAP = env("MAP", 1)
KVAT = [int(x) for x in env("KVAT", "2,4,6,8,10,12,14,23,25").split(",")]
NG1 = env("NG1", 3)
NPRE = 6
WRMF = env("WRMF", "")
WOWARM = env("WOWARM", 12)
WARMAT = env("WARMAT", 1)
TLBT = env("TLBT", 0)
CODEW = env("CODEW", 1)
CW0 = env("CW0", 1)
FINE = env("FINE", 0)
STS = (0, 1, 2, 4, 8, 14) if FINE else (0, 14)

SRD_X, SRD_K, SRD_V, SRD_WQ, SRD_WO, SRD_WS = (S(16, 4), S(20, 4), S(24, 4), S(28, 4), S(32, 4), S(36, 4))
sW, sG, sB, sBLK, sC = S(40), S(41), S(42), S(43), S(44)
sM0V, sOFFWQ, sM0K, sM0X, sOFFKV = S(45), S(46), S(47), S(48), S(49)
sT0, sT1 = S(50), S(51)
sMASK0, sMASK1 = S(52, 2), S(54, 2)
sFLAG = S(56)
sOFFX = S(57)
sRET = S(58, 2)
sM0WO = S(60)
sOFFWS = S(61)
sTRAW = S(62)
sOFFWO = S(63)
sT2 = S(100)


def Qf(qb, s):
    return V((qb * 16 + s) * 4, 4)


def Xf(s):
    return V(s * 4, 4)


def Of(ks):
    return V(ks * 4, 4)


def Sb(p, qb):
    return V(128 + p * 32 + qb * 16, 16)


def Kf(i):
    return V(192 + (i % 4) * 4, 4)


def Vf(i):
    return V(208 + (i % 4) * 4, 4)


def Wf(i):
    return V(192 + (i % 8) * 4, 4)


def Wacc(buf, tt):
    return V(128 + buf * 32 + tt * 16, 16)


vAK, vAV, vOFFKV, vL16 = V(224), V(225), V(226), V(227)
vM = [V(228), V(229)]
vTHR = [V(230), V(231)]
vL = [V(232), V(233)]
vAL = [V(234), V(235)]
vT = [V(236), V(237)]
vU = [V(238), V(239)]
vTMP = V(240, 8)
vMR = [V(248), V(249)]
vAWQ = V(250)
vOFFWO = V(251)
vAWO = [[V(252), V(253)], [V(254), V(255)], [V(228), V(229)]]
NWO = env("NWO", 4)
vXO = [V(112), V(113)]
vAX = V(114, 4)
vDUMMY, vPFWQ, vL128, vCW = V(118), V(119), V(120), V(121)
SRD_PF = S(96, 4)
sPFOFF = S(101)
PFN = env("PFN", 0)
PFF = env("PFF", "")
PFAT = env("PFAT", 16)
vAV2 = vAWQ


def STG(t):
    return V(128 + 16 * t, 16)

KSTR, VSTR = 1040, 1088
KSLOT, VSLOT = 16 * KSTR, 16 * VSTR
VBASE = 4 * KSLOT
NK, NV = 4, 5
KS = [i * KSLOT for i in range(4)]
VS = [i * VSLOT for i in range(NV)]
P1BASE = VBASE + VSLOT
NP1 = 4
XBASE = 2 * KSLOT
assert XBASE + 32768 <= 4 * KSLOT
WOSLOT = 32768
LDS_BYTES = 163840
PART = 4 * 14 * 2048
assert P1BASE + NP1 * VSLOT <= LDS_BYTES


def Oacc(dt, qb):
    return A((dt * 2 + qb) * 16, 16)


def Qacc(nt):
    return A(nt * 16, 16)


def barrier():
    return raw("s_barrier", "other", cost=4)


_nst = 0


def stamp(real=False):
    global _nst
    if not STAMP:
        return []
    i = _nst
    _nst += 1
    assert i < 16
    op = "s_memrealtime" if (real or STAMP >= 2) else "s_memtime"
    return [raw(f"{op} s[{64 + 2 * i}:{65 + 2 * i}]", "salu", cost=2)]


def stamp_store():
    if not STAMP:
        return []
    if STAMP == 3:
        out = [raw("s_waitcnt lgkmcnt(0)", "wait"),
               salu(f"s_cmp_lg_u32 {sW}, 0"), salu("s_cbranch_scc1 L_end"),
               salu(f"s_cmp_lg_u32 s2, 77"), salu("s_cbranch_scc1 L_end"),
               salu(f"s_add_u32 s4, s14, {64 << 20}"), salu("s_addc_u32 s5, s15, 0"),
               salu("s_mov_b32 s6, 256"), salu("s_mov_b32 s7, 0x00020000"),
               valu("v_mov_b32", V(2), 0)]
        for i in range(_nst):
            out.append(salu(f"s_sub_u32 s3, s{64 + 2 * i}, s64"))
            out.append(valu("v_mov_b32", V(4 + i), S(3)))
            out.append(bstore(V(4 + i), V(2), S(4, 4), 0, off=i * 4, n=1))
        return out
    out = [raw("s_waitcnt lgkmcnt(0)", "wait"),
           salu(f"s_cmp_lg_u32 {sW}, 0"), salu("s_cbranch_scc1 L_end"),
           salu("s_lshl_b32 s3, s2, 7"), salu(f"s_add_u32 s3, s3, {64 << 20}"),
           salu("s_add_u32 s4, s14, s3"), salu("s_addc_u32 s5, s15, 0"),
           salu("s_mov_b32 s6, 128"), salu("s_mov_b32 s7, 0x00020000"),
           valu("v_mov_b32", V(2), 0)]
    for i in range(_nst):
        out.append(valu("v_mov_b32", V(4 + 2 * i), S(64 + 2 * i)))
        out.append(valu("v_mov_b32", V(5 + 2 * i), S(65 + 2 * i)))
        out.append(bstore(V(4 + 2 * i, 2), V(2), S(4, 4), 0, off=i * 8, n=2))
    return out


def dma_wq(s):
    out = []
    for i in range(4):
        out.append(setm0(f"s_add_u32 m0, {sM0V}, {P1BASE + (s % NP1) * VSLOT + i * VSTR}"))
        out.append(salu(f"s_add_u32 {sT0}, {sOFFWQ}, {(16 * s + i) * 8192}", defs=[sT0]))
        out.append(dma(vL16, SRD_WQ, sT0, tag=("wq", s), flags=WQF))
    return out


def dma_x(pc):
    out = []
    for i in range(4):
        out.append(setm0(f"s_add_u32 m0, {sM0X}, {(pc % 2) * 16384 + i * 1024}"))
        out.append(salu(f"s_add_u32 {sT1}, {sOFFX}, {pc * 128 + i * 8 * 896}", defs=[sT1]))
        out.append(dma(vXO[i % 2], SRD_X, sT1, tag=("x", pc), flags=XF))
    return out


def dma_k(j):
    out = [salu(f"s_add_u32 {sT1}, {sOFFKV}, {j * 16384}", defs=[sT1])]
    for i in range(4):
        out.append(setm0(f"s_add_u32 m0, {sM0K}, {KS[j % NK] + i * (KSTR - 512)}"))
        out.append(dma(vOFFKV, SRD_K, sT1, off=i * 512, tag=("k", j), flags=KVF))
    return out


def dma_v(j):
    out = [salu(f"s_add_u32 {sT1}, {sOFFKV}, {j * 16384}", defs=[sT1])]
    for i in range(4):
        out.append(setm0(f"s_add_u32 m0, {sM0V}, {VBASE + VS[j % NV] + i * (VSTR - 512)}"))
        out.append(dma(vOFFKV, SRD_V, sT1, off=i * 512, tag=("v", j), flags=KVF))
    return out


def dma_wo(sg):
    ps, hs = divmod(sg, 2)
    out = []
    for i in range(8):
        out.append(setm0(f"s_add_u32 m0, {sM0WO}, {(sg % NWO) * WOSLOT + i * 1024}"))
        out.append(salu(f"s_add_u32 {sT1}, {sOFFWO}, {(256 * hs + 8 * i) * 896 + 128 * ps}", defs=[sT1]))
        out.append(dma(vOFFWO, SRD_WO, sT1, tag=("wo", sg), flags=WOF))
    return out


def pfload(*a, **kw):
    i = bload(*a, **kw)
    i.defs = set()
    return i


def rd_wq(f):
    s, nt = divmod(f, 16)
    d = Wf(f)
    off = (s % NP1) * VSLOT + nt * 64
    return [ds_read_tr(d[0:2], vAWQ, off), ds_read_tr(d[2:4], vAWQ, off + 4 * VSTR)]


def rd_x(s):
    pc, sp = divmod(s, 4)
    return [ds_read_b128(Xf(s), vAX[sp], (pc % 2) * 16384)]


def rd_k(j, s):
    return [ds_read_b128(Kf(s), vAK, KS[j % NK] + s * 32)]


def stage_ld(t, kind, j):
    out = [salu(f"s_add_u32 {sT1}, {sOFFKV}, {j * 16384}", defs=[sT1])]
    for i in range(4):
        out.append(bload(STG(t)[4 * i: 4 * i + 4], vOFFKV, SRD_K if kind == "k" else SRD_V, sT1,
                         off=i * 512, tag=("stg", t), flags=KVF))
    return out


def rd_v(j, f):
    dt, ks = divmod(f, 2)
    d = Vf(f)
    base, off = (vAV2, 0) if j % NV == 4 else (vAV, VS[j % NV])
    off += ks * 512 + dt * 64
    return [ds_read_tr(d[0:2], base, off), ds_read_tr(d[2:4], base, off + 4 * VSTR)]


def rd_wo(f):
    sg, r = divmod(f, 32)
    ks, tt = divmod(r, 2)
    slot = sg % NWO
    base = vAWO[slot // 2][tt]
    off = (slot % 2) * WOSLOT + ks * 2048
    d = Wf(f)
    return [ds_read_tr(d[0:2], base, off), ds_read_tr(d[2:4], base, off + 512)]


def sm_max(p):
    out = []
    for qb in range(2):
        s_ = Sb(p, qb)
        t = vT[qb]
        out.append(valu("v_max3_f32", t, s_[0], s_[1], s_[2]))
        for r in range(3, 15, 2):
            out.append(valu("v_max3_f32", t, t, s_[r], s_[r + 1]))
        out.append(valu("v_max_f32", t, t, s_[15]))
    for qb in range(2):
        out.append(valu("v_mov_b32", vU[qb], vT[qb]))
    for qb in range(2):
        out.append(Ins(f"v_permlane32_swap_b32 {vT[qb]}, {vU[qb]}", "perm", defs=[vT[qb], vU[qb]],
                       uses=[vT[qb], vU[qb]]))
    for qb in range(2):
        out.append(valu("v_max_f32", vT[qb], vT[qb], vU[qb]))
    return out


_lbl = 0


def sm_check(first):
    global _lbl
    out = []
    if first:
        for qb in range(2):
            out.append(valu("v_mov_b32", vMR[qb], vT[qb]))
            out.append(valu("v_mul_f32", vM[qb], sC, vT[qb]))
            out.append(valu("v_add_f32", vTHR[qb], sTRAW, vT[qb]))
            out.append(valu("v_mov_b32", vL[qb], 0))
        return out
    out.append(valu("v_cmp_gt_f32", sMASK0, vT[0], vTHR[0]))
    out.append(valu("v_cmp_gt_f32", sMASK1, vT[1], vTHR[1]))
    _lbl += 1
    out.append(Group([
        salu(f"s_or_b64 {sMASK0}, {sMASK0}, {sMASK1}", defs=[sMASK0], uses=[sMASK0, sMASK1]),
        salu(f"s_cbranch_scc0 L_noslow{_lbl}"),
        Ins(f"s_call_b64 {sRET}, L_slow", "salu", cost=2,
            defs=vM + vTHR + vL + vAL + vMR + vU, uses=vM + vTHR + vL + vT + vMR),
        label(f"L_noslow{_lbl}")]))
    return out


def sm_exp(p, qb, grp):
    s_ = Sb(p, qb)
    out = []
    rs = range(4 * grp, 4 * grp + 4)
    for r in rs:
        out.append(valu("v_fma_f32", s_[r], s_[r], sC, ("-", vM[qb])))
    for r in rs:
        out.append(valu("v_exp_f32", s_[r], s_[r]))
    for r in rs:
        out.append(valu("v_add_f32", vL[qb], vL[qb], s_[r]))
    ks, g2 = divmod(grp, 2)
    for jj in range(2):
        j = 2 * g2 + jj
        out.append(valu("v_cvt_pk_bf16_f32", s_[8 * ks + j], s_[8 * ks + 2 * j], s_[8 * ks + 2 * j + 1]))
    return out


def Pf(p, qb, ks):
    return Sb(p, qb)[8 * ks: 8 * ks + 4]


def resc_check():
    global _lbl
    _lbl += 1
    return [
        salu(f"s_cmp_eq_u32 {sFLAG}, 0", uses=[sFLAG]),
        salu(f"s_cbranch_scc1 L_nores{_lbl}"),
        Ins(f"s_call_b64 {sRET}, L_resc", "salu", cost=2),
        label(f"L_nores{_lbl}"),
    ]


def softmax1(j):
    p = j % 2
    if j == 0:
        return []
    out = sm_max(p) + sm_check(False)
    for gi in range(8 if j == 15 else NG1):
        out += sm_exp(p, gi // 4, gi % 4)
    return out


def softmax2(j):
    p = j % 2
    if j == 15:
        return []
    out = []
    if j == 0:
        out = sm_max(p) + sm_check(True)
    for gi in range(0 if j == 0 else NG1, 8):
        out += sm_exp(p, gi // 4, gi % 4)
    return out


def conv_o(ksg):
    qb, s = divmod(ksg, 16)
    dt, hf = divmod(s, 2)
    acc = Oacc(dt, qb)
    out = []
    for ee in range(8):
        out.append(valu("v_accvgpr_read_b32", vTMP[ee], acc[hf * 8 + ee]))
    for ee in range(8):
        out.append(valu("v_mul_f32", vTMP[ee], vTMP[ee], vL[qb]))
    for jj in range(4):
        out.append(valu("v_cvt_pk_bf16_f32", Of(ksg)[jj], vTMP[2 * jj], vTMP[2 * jj + 1]))
    return out


def store_pass(ps):
    out = []
    for tt in range(2):
        acc = Wacc(ps % 2, tt)
        for sp in range(2):
            g = []
            for jj in range(4):
                g.append(valu("v_cvt_pk_bf16_f32", acc[8 * sp + jj], acc[8 * sp + 2 * jj], acc[8 * sp + 2 * jj + 1]))
            g.append(salu(f"s_add_u32 {sT0}, {sOFFWS}, {ps * 4096}", defs=[sT0]))
            g.append(bstore(acc[8 * sp: 8 * sp + 4], vL16, SRD_WS, sT0, off=(2 * tt + sp) * 1024, flags=STF))
            out.append(g)
    return out


def gen_k1():
    st = []
    e = st.append
    ext = st.extend
    ext(stamp(True))
    ext(stamp())
    e(salu("s_cmp_ge_u32 s2, 256"))
    e(salu("s_cbranch_scc1 L_end"))
    if MAP == 0:
        e(salu(f"s_and_b32 {sG}, s2, 7"))
        e(salu(f"s_lshr_b32 s3, s2, 6"))
        e(salu(f"s_xor_b32 {sG}, {sG}, s3"))
        e(salu(f"s_lshr_b32 {sB}, s2, 3"))
        e(salu(f"s_and_b32 {sB}, {sB}, 15"))
        e(salu(f"s_lshr_b32 {sBLK}, s2, 7"))
    else:
        e(salu(f"s_bfe_u32 {sBLK}, s2, 0x10002"))
        e(salu(f"s_and_b32 {sG}, s2, 3"))
        e(salu(f"s_lshl_b32 {sG}, {sG}, 1"))
        e(salu(f"s_bfe_u32 s3, s2, 0x10003"))
        e(salu(f"s_or_b32 {sG}, {sG}, s3"))
        e(salu(f"s_lshr_b32 {sB}, s2, 4"))
    e(salu(f"s_load_dwordx2 s[14:15], s[0:1], 96"))
    e(salu(f"s_mul_i32 s3, {sBLK}, 40"))
    e(salu("s_add_u32 s0, s0, s3"))
    e(salu("s_addc_u32 s1, s1, 0"))
    e(salu("s_load_dwordx8 s[4:11], s[0:1], 0"))
    e(salu("s_load_dwordx2 s[12:13], s[0:1], 32"))
    lane, tA, tB, tC, tD, tE = (vTMP[i] for i in range(6))
    e(valu("v_and_b32", lane, 63, V(0)))
    e(valu("v_lshrrev_b32", tA, 6, V(0)))
    e(Ins(f"v_readfirstlane_b32 {sW}, {tA}", "valu", defs=[sW], uses=[tA]))
    e(valu("v_lshlrev_b32", vL16, 4, lane))
    cw = []
    if CODEW:
        e(raw("s_getpc_b64 s[96:97]", "salu"))
        e(label("L_pc"))
        e(valu("v_lshlrev_b32", vCW, 6, V(0)))
        e(salu("s_mov_b32 s98, L_text_end-L_pc-4"))
        for i in range(6):
            cw.append([Ins(f"global_load_dword {vDUMMY}, {vCW}, s[96:97]", "vmem", uses=[vCW], tag=("cw", i), cost=8),
                       valu("v_add_u32", vCW, 16384, vCW), valu("v_min_u32", vCW, S(98), vCW)])
        for i in range(CW0):
            ext(cw[i])
    e(valu("v_lshrrev_b32", tA, 3, lane))
    e(valu("v_mul_u32_u24", tA, 896, tA))
    e(valu("v_and_b32", tB, 7, lane))
    e(valu("v_lshrrev_b32", tC, 4, lane))
    e(valu("v_xor_b32", tB, tB, tC))
    e(valu("v_lshl_add_u32", vXO[0], tB, 4, tA))
    e(valu("v_xor_b32", vXO[1], 64, vXO[0]))
    e(salu(f"s_mul_i32 {sM0V}, {sW}, {4 * VSTR}", uses=[sW]))
    e(salu(f"s_lshl_b32 {sOFFWQ}, {sW}, 15"))
    e(salu(f"s_lshl_b32 {sM0X}, {sW}, 12"))
    e(salu(f"s_add_u32 {sM0X}, {sM0X}, {XBASE}"))
    e(salu(f"s_mul_i32 {sOFFX}, {sW}, {32 * 896}"))
    e(raw("s_waitcnt lgkmcnt(0)", "wait"))

    def srd(d, ptr_lo, off_expr_reg, size):
        e(salu(f"s_add_u32 s{d.b}, s{ptr_lo}, {off_expr_reg}"))
        e(salu(f"s_addc_u32 s{d.b + 1}, s{ptr_lo + 1}, 0"))
        e(salu(f"s_mov_b32 s{d.b + 2}, {size}"))
        e(salu(f"s_mov_b32 s{d.b + 3}, 0x00020000"))

    e(salu(f"s_lshl_b32 s3, {sG}, 10"))
    srd(SRD_WQ, 10, "s3", 447 * 8192 + 1024)
    e(salu(f"s_mul_i32 s3, {sB}, 114688"))
    srd(SRD_X, 4, "s3", 114688)
    if TLBT:
        e(valu("v_lshlrev_b32", vPFWQ, 13, V(0)))
        e(pfload(vDUMMY, vPFWQ, SRD_WQ, 0, tag=("tl", 0), n=1))
        e(valu("v_lshlrev_b32", vCW, 12, lane))
        e(pfload(vDUMMY, vCW, SRD_X, 0, tag=("tl", 1), n=1))
        if TLBT == 2:
            e(salu(f"s_mov_b32 {sT2}, {256 * 8192}"))
            e(pfload(vDUMMY, vPFWQ, SRD_WQ, sT2, tag=("tl", 2), n=1))
    ext(dma_wq(0))
    ext(dma_x(0))
    ext(dma_wq(1))
    ext(dma_x(1))
    ext(dma_wq(2))
    e(salu(f"s_lshl_b32 s3, {sB}, 3"))
    e(salu(f"s_add_u32 s3, s3, {sG}"))
    e(salu(f"s_lshl_b32 s3, s3, 18"))
    srd(SRD_K, 6, "s3", 262144)
    srd(SRD_V, 8, "s3", 262144)
    e(salu(f"s_mul_i32 s3, {sG}, 458752"))
    srd(SRD_WO, 12, "s3", 458752)
    e(salu(f"s_lshl_b32 s3, {sBLK}, 4"))
    e(salu(f"s_add_u32 s3, s3, {sB}"))
    e(salu(f"s_lshl_b32 s3, s3, 3"))
    e(salu(f"s_add_u32 s3, s3, {sG}"))
    e(salu(f"s_mul_i32 s3, s3, {PART}"))
    srd(SRD_WS, 14, "s3", PART)
    e(salu(f"s_mov_b32 {sC}, {f32bits(CSCALE):#x}"))
    e(salu(f"s_mov_b32 {sTRAW}, {f32bits(TRAW):#x}"))
    e(salu(f"s_mov_b32 {sFLAG}, 0"))
    e(salu(f"s_mul_i32 {sM0K}, {sW}, {4 * KSTR}"))
    e(salu(f"s_lshl_b32 {sOFFKV}, {sW}, 11"))
    e(salu(f"s_lshl_b32 {sM0WO}, {sW}, 13"))
    e(salu(f"s_mul_i32 {sOFFWO}, {sW}, {64 * 896}"))
    e(salu(f"s_mul_i32 {sOFFWS}, {sW}, {14 * 2048}"))
    e(valu("v_lshrrev_b32", tA, 5, lane))
    e(valu("v_and_b32", tB, 31, lane))
    e(valu("v_lshlrev_b32", tC, 13, tA))
    e(valu("v_lshl_add_u32", vOFFKV, tB, 4, tC))
    e(valu("v_bfe_u32", tC, tB, 1, 3))
    e(valu("v_xor_b32", tC, tC, tA))
    e(valu("v_lshlrev_b32", tC, 4, tC))
    e(valu("v_lshl_add_u32", tC, tB, 7, tC))
    e(valu("v_add_u32", vAX[0], sM0X, tC))
    for sp in range(1, 4):
        e(valu("v_xor_b32", vAX[sp], sp << 5, vAX[0]))
    e(valu("v_and_b32", tC, 3, tB))
    e(valu("v_and_b32", tD, 4, tB))
    e(valu("v_lshl_add_u32", tC, tD, 1, tC))
    e(valu("v_and_b32", tD, 8, tB))
    e(valu("v_lshrrev_b32", tD, 1, tD))
    e(valu("v_add_u32", tC, tC, tD))
    e(valu("v_mul_u32_u24", vAK, KSTR, tC))
    e(valu("v_lshrrev_b32", tD, 4, tB))
    e(valu("v_lshl_add_u32", vAK, tD, 9, vAK))
    e(valu("v_lshl_add_u32", vAK, tA, 4, vAK))
    e(valu("v_bfe_u32", tE, lane, 2, 2))
    e(valu("v_lshl_add_u32", tC, tA, 3, tE))
    e(valu("v_and_b32", tD, 1, lane))
    e(valu("v_lshlrev_b32", tD, 4, tD))
    e(valu("v_and_b32", tB, 2, lane))
    e(valu("v_lshl_add_u32", tD, tB, 2, tD))
    e(valu("v_bfe_u32", tB, lane, 4, 1))
    e(valu("v_lshl_add_u32", tD, tB, 5, tD))
    e(valu("v_mul_u32_u24", vAV, VSTR, tC))
    e(valu("v_add_u32", vAV, vAV, tD))
    e(valu("v_add_u32", vAWQ, P1BASE, vAV))
    e(valu("v_add_u32", vAV, VBASE, vAV))
    e(valu("v_lshl_add_u32", tC, tC, 7, tD))
    e(valu("v_lshrrev_b32", tE, 1, tE))
    e(valu("v_lshlrev_b32", tE, 6, tE))
    e(valu("v_add_u32", vAWO[0][0], tC, tE))
    e(valu("v_xor_b32", tE, 64, tE))
    e(valu("v_add_u32", vAWO[0][1], tC, tE))
    e(valu("v_add_u32", vAWO[1][0], 2 * WOSLOT, vAWO[0][0]))
    e(valu("v_add_u32", vAWO[1][1], 2 * WOSLOT, vAWO[0][1]))
    e(valu("v_lshrrev_b32", tC, 3, lane))
    e(valu("v_mul_u32_u24", tC, 896, tC))
    e(valu("v_and_b32", tD, 7, lane))
    e(valu("v_lshlrev_b32", tB, 2, tB))
    e(valu("v_xor_b32", tD, tD, tB))
    e(valu("v_lshl_add_u32", vOFFWO, tD, 4, tC))
    if PFN:
        e(valu("v_lshlrev_b32", vL128, 7, lane))
        e(salu(f"s_cmp_lt_u32 {sW}, 2"))
        e(salu(f"s_cselect_b32 s96, s20, s24"))
        e(salu(f"s_cselect_b32 s97, s21, s25"))
        e(salu(f"s_mov_b32 s98, 262144"))
        e(salu(f"s_mov_b32 s99, 0x00020000"))
        e(salu(f"s_cselect_b32 {sPFOFF}, 5, 4"))
        e(salu(f"s_lshl_b32 {sPFOFF}, {sPFOFF}, 14"))
        e(salu(f"s_and_b32 s3, {sW}, 1"))
        e(salu(f"s_lshl_b32 s3, s3, 13"))
        e(salu(f"s_add_u32 {sPFOFF}, {sPFOFF}, s3"))
    if WARM:
        e(valu("v_lshrrev_b32", tA, 3, lane))
        e(valu("v_and_b32", tB, 7, lane))
        e(valu("v_lshlrev_b32", tA, 13, tA))
        e(valu("v_lshl_add_u32", vPFWQ, tB, 7, tA))
        if MAP == 0:
            e(salu(f"s_and_b32 s3, {sB}, 7"))
            e(salu(f"s_mul_i32 s3, s3, {56 * 8192}"))
            e(salu(f"s_lshl_b32 {sT2}, {sW}, 16"))
            e(salu(f"s_add_u32 {sT2}, {sT2}, s3"))
            e(pfload(vDUMMY, vPFWQ, SRD_WQ, sT2, tag=("pfw", 0), n=1))
            e(salu(f"s_add_u32 {sT2}, {sT2}, {4 << 16}"))
            e(pfload(vDUMMY, vPFWQ, SRD_WQ, sT2, tag=("pfw", 1), n=1))
        else:
            e(salu(f"s_mul_i32 s3, {sB}, {28 * 8192}"))
            e(salu(f"s_lshl_b32 {sT2}, {sW}, 16"))
            e(salu(f"s_add_u32 {sT2}, {sT2}, s3"))
            warm = [pfload(vDUMMY, vPFWQ, SRD_WQ, sT2, tag=("pfw", 0), n=1, flags=WRMF)]
            if WARM == 2:
                warm.append(pfload(vDUMMY, vPFWQ, SRD_WQ, sT2, off=64, tag=("pfw", 1), n=1, flags=WRMF))
            if WARMAT < 0:
                ext(warm)
    e(WaitVM(("x", 0)))
    for s in range(4):
        ext(rd_x(s))
    e(barrier())

    LA = 6
    for f in range(LA):
        ext(rd_wq(f))
    pre = [dma_k(0), dma_k(1), dma_v(0), stage_ld(0, "v", 1), stage_ld(1, "v", 2), stage_ld(2, "v", 3),
           stage_ld(3, "v", 4), dma_k(2), dma_k(3)]
    kv_at = {}
    if SMOOTH:
        units = []
        for g_ in pre:
            head, rest = g_[0], g_[1:]
            per = len(rest) // 4
            for i in range(4):
                units.append([head] + rest[i * per: (i + 1) * per])
        lo, hi = SMOOTH, 23
        for u in range(28):
            kv_at.setdefault(lo + u * (hi - lo) // 28, []).extend(units[u])
        for u in range(8):
            kv_at.setdefault(23 + u // 2, []).extend(units[28 + u])
    else:
        for st_, g_ in zip(KVAT, pre):
            kv_at.setdefault(st_, []).extend(g_)
    for s in range(28):
        if STAMP and s in STS:
            ext(stamp())
        slots = []
        for nt in range(16):
            f = 16 * s + nt
            sl = [mfma(Qacc(nt), Wf(f), Xf(s), Qacc(nt) if s > 0 else 0)]
            if f + LA < 448:
                sl += rd_wq(f + LA)
            if nt == 3 and s + 1 < 28:
                if s == 23:
                    sl += [WaitAll(vm=False, lgkm=True)]
                sl += [WaitVM(("wq", s + 1)), barrier()]
            slots.append(sl)
        fill = []
        if s + NP1 - 1 < 28:
            fill += dma_wq(s + NP1 - 1)
        if WARM and s == WARMAT:
            fill += warm
        if s in kv_at:
            fill += kv_at[s]
        if CODEW and s % 2 == 1 and CW0 + (s - 1) // 2 < 6:
            fill += cw[CW0 + (s - 1) // 2]
        if PFN and s >= PFAT and (s - PFAT) % 2 == 0 and (s - PFAT) // 2 < PFN:
            fill += [salu(f"s_add_u32 {sT2}, {sPFOFF}, {((s - PFAT) // 2) * 16384}", defs=[sT2]),
                     pfload(vDUMMY, vL128, SRD_PF, sT2, tag=("pf", s), n=1, flags=PFF)]
        if s % 4 == 1 and (s + 3) // 4 < 7:
            pc = (s + 3) // 4
            fill += [WaitVM(("x", pc))]
            for s2 in range(4):
                fill += rd_x(4 * pc + s2)
        if s % 4 == 0 and s // 4 + 2 < 7:
            fill += [WaitAll(vm=False, lgkm=True)] if s == 0 else []
            fill += dma_x(s // 4 + 2)
        ext(interleave(slots, fill, start=4, end=14))

    ext(stamp())
    e(WaitVM(("k", 0)))
    e(barrier())
    for s3 in range(3):
        ext(rd_k(0, s3))
    e(valu("v_add_u32", vT[0], sM0V, vL16))
    e(valu("v_add_u32", vT[0], VBASE + VSLOT, vT[0]))
    e(valu("v_add_u32", vAV2, VS[4], vAV))
    drain = []
    for t in range(4):
        for i in range(4):
            drain.append(ds_write_b128(vT[0], STG(t)[4 * i: 4 * i + 4], VS[t] + i * VSTR))
    for qb in range(2):
        for s in range(16):
            acc = Qacc(qb * 8 + s // 2)
            for ee in range(8):
                e(valu("v_accvgpr_read_b32", vTMP[ee], acc[(s % 2) * 8 + ee]))
            for jj in range(4):
                e(valu("v_cvt_pk_bf16_f32", Qf(qb, s)[jj], vTMP[2 * jj], vTMP[2 * jj + 1]))
            if qb == 0:
                e(drain[s])
    e(WaitAll(vm=False, lgkm=True))

    ext(stamp())
    for j in range(17):
        p = j % 2
        if j in (4, 12) and not FINE:
            ext(stamp())
        fillA = softmax2(j - 1) if j >= 1 else []
        if j < 16:
            slots = []
            for s in range(16):
                for qb in range(2):
                    sl = [mfma(Sb(p, qb), Kf(s), Qf(qb, s), Sb(p, qb) if s > 0 else 0)]
                    if qb == 0:
                        if s + 3 < 16:
                            sl += rd_k(j, s + 3)
                        elif j >= 1:
                            sl += rd_v(j - 1, s + 3 - 16)
                    slots.append(sl)
            ext(interleave(slots, fillA, start=0, end=30))
        if j >= 2:
            ext(resc_check())
        waits = []
        if j + 1 < 16:
            waits.append(("k", j + 1))
        if j < 16:
            waits.append(("v", j))
        grp = []
        if NV <= j + NV - 2 < 16:
            grp += dma_v(j + NV - 2)
        if j + NK < 16:
            grp += dma_k(j + NK)
        if j == WOWARM:
            grp += [valu("v_lshlrev_b32", vTMP[0], 2, vL16),
                    salu(f"s_mul_i32 s3, {sB}, 28672"), salu(f"s_lshl_b32 {sT2}, {sW}, 12"),
                    salu(f"s_add_u32 {sT2}, {sT2}, s3", defs=[sT2]),
                    pfload(vTMP[1], vTMP[0], SRD_WO, sT2, tag=("pfo", 0), n=1, flags=WRMF),
                    salu(f"s_add_u32 {sT2}, {sT2}, 16384", defs=[sT2]),
                    pfload(vTMP[1], vTMP[0], SRD_WO, sT2, tag=("pfo", 1), n=1, flags=WRMF)]
        if j == 13:
            grp += dma_wo(0)
        if j == 15:
            grp += dma_wo(1) + dma_wo(3)
        sync = [WaitVM(waits), barrier()] if j < 16 else []
        fillB = softmax1(j) if j < 16 else []
        if j == 16:
            for qb in range(2):
                fillB.append(valu("v_mov_b32", vU[qb], vL[qb]))
            for qb in range(2):
                fillB.append(Ins(f"v_permlane32_swap_b32 {vL[qb]}, {vU[qb]}", "perm",
                                 defs=[vL[qb], vU[qb]], uses=[vL[qb], vU[qb]]))
            for qb in range(2):
                fillB.append(valu("v_add_f32", vL[qb], vL[qb], vU[qb]))
            for qb in range(2):
                fillB.append(valu("v_rcp_f32", vL[qb], vL[qb]))
        if j >= 1:
            slots = []
            for f in range(16):
                dt, ks = divmod(f, 2)
                for qb in range(2):
                    sl = [mfma(Oacc(dt, qb), Vf(f), Pf(1 - p, qb, ks),
                               Oacc(dt, qb) if (j > 1 or ks > 0) else 0)]
                    if qb == 0:
                        if f + 3 < 16:
                            sl += rd_v(j - 1, f + 3)
                        elif j + 1 < 16:
                            sl += rd_k(j + 1, f + 3 - 16)
                        elif j == 15:
                            sl += rd_v(15, f + 3 - 16)
                    if f == 0 and qb == 1:
                        sl += sync
                    slots.append(sl)
            if j == 16:
                for k in range(NPRE):
                    cv = conv_o(k)
                    for q4 in range(4):
                        slots[7 + 4 * k + q4] += cv[5 * q4: 5 * q4 + 5]
                ext(interleave(slots, fillB, start=0, end=6))
            else:
                ext(interleave(slots, grp + fillB, start=2, end=32))
        else:
            ext(sync)
            ext(grp)
            for s3 in range(3):
                ext(rd_k(1, s3))
            ext(fillB)

    ext(stamp())
    e(WaitVM(("wo", 0)))
    e(barrier())
    ext(dma_wo(2))
    if NWO == 5:
        ext(dma_wo(4))
        for tt in range(2):
            e(valu("v_add_u32", vAWO[2][tt], 4 * WOSLOT, vAWO[0][tt]))
    for f in range(LA):
        ext(rd_wo(f))
    cvl = []
    for ksg in range(NPRE, 32):
        cvl += conv_o(ksg)

    ext(stamp())
    for sg in range(14):
        ps, hs = divmod(sg, 2)
        if sg in (2, 8) and not FINE:
            ext(stamp())
        slots = []
        for r in range(32):
            f = 32 * sg + r
            ks, tt = divmod(r, 2)
            ksg = 16 * hs + ks
            acc = Wacc(ps % 2, tt)
            sl = [mfma(acc, Wf(f), Of(ksg), acc if ksg > 0 else 0)]
            if f + LA < 448:
                sl += rd_wo(f + LA)
            if ps == 0 and f < 60:
                sl += cvl[f * len(cvl) // 60: (f + 1) * len(cvl) // 60]
            if r == 3 and sg + 1 < 14:
                sl += [WaitVM(("wo", sg + 1)), barrier()]
            slots.append(sl)
        fill = []
        if sg >= 1 and sg + NWO - 1 < 14:
            fill += dma_wo(sg + NWO - 1)
        if ps >= 1:
            sp_ = store_pass(ps - 1)
            for k in range(2):
                if not env("NOST", 0):
                    slots[10 + 12 * k] += sp_[2 * hs + k]
        ext(interleave(slots, fill, start=4, end=26))

    ext(stamp())
    for g_ in store_pass(6):
        ext(g_)
    if STAMP:
        e(WaitAll())
    ext(stamp())
    ext(stamp(True))
    ext(stamp_store())
    e(label("L_end"))
    e(raw("s_endpgm"))

    lines = finalize(st)

    sub = []
    s_ = sub.append
    s_(label("L_slow"))
    s_(nop(2))
    for qb in range(2):
        s_(valu("v_max_f32", vMR[qb], vMR[qb], vT[qb]))
        s_(valu("v_mul_f32", vU[qb], sC, vMR[qb]))
        s_(valu("v_sub_f32", vAL[qb], vM[qb], vU[qb]))
        s_(valu("v_exp_f32", vAL[qb], vAL[qb]))
        s_(valu("v_mov_b32", vM[qb], vU[qb]))
        s_(valu("v_add_f32", vTHR[qb], sTRAW, vMR[qb]))
        s_(valu("v_mul_f32", vL[qb], vL[qb], vAL[qb]))
    s_(salu(f"s_mov_b32 {sFLAG}, 1"))
    s_(nop(2))
    s_(raw(f"s_setpc_b64 {sRET}"))
    s_(label("L_resc"))
    s_(nop(16))
    tt = [vU[0], vU[1], vT[0], vT[1]]
    for dt in range(8):
        for qb in range(2):
            acc = Oacc(dt, qb)
            for r0 in range(0, 16, 4):
                for k in range(4):
                    s_(valu("v_accvgpr_read_b32", tt[k], acc[r0 + k]))
                for k in range(4):
                    s_(valu("v_mul_f32", tt[k], tt[k], vAL[qb]))
                for k in range(4):
                    s_(valu("v_accvgpr_write_b32", acc[r0 + k], tt[k]))
    s_(salu(f"s_mov_b32 {sFLAG}, 0"))
    s_(nop(4))
    s_(raw(f"s_setpc_b64 {sRET}"))
    lines += finalize(sub)
    return lines


NPC = env("NPC", 4)
K2_WGS = 896 // NPC


def gen_k2():
    st = []
    e = st.append
    per = 28 // NPC
    magic = (65536 + per - 1) // per
    assert all((i * magic) >> 16 == i // per for i in range(K2_WGS))
    e(salu(f"s_cmp_ge_u32 s2, {K2_WGS}"))
    e(salu("s_cbranch_scc1 L2_end"))
    e(salu("s_load_dwordx2 s[4:5], s[0:1], 80"))
    e(salu("s_load_dwordx2 s[6:7], s[0:1], 96"))
    e(salu(f"s_mul_i32 s10, s2, {magic}"))
    e(salu("s_lshr_b32 s10, s10, 16"))
    e(salu(f"s_mul_i32 s11, s10, {per}"))
    e(salu("s_sub_u32 s11, s2, s11"))
    e(salu(f"s_mul_i32 s11, s11, {NPC}"))
    lane, w, t1, t2 = V(1), V(2), V(3), V(4)
    e(valu("v_and_b32", lane, 63, V(0)))
    e(valu("v_lshrrev_b32", w, 6, V(0)))
    e(valu("v_mul_u32_u24", t1, 14 * 2048, w))
    e(valu("v_lshl_add_u32", t1, lane, 4, t1))
    e(salu("s_lshl_b32 s12, s11, 10"))
    e(valu("v_add_u32", t1, S(12), t1))
    e(salu("s_and_b32 s13, s10, 15"))
    e(salu("s_lshr_b32 s14, s10, 4"))
    e(salu("s_mul_i32 s13, s13, 229376"))
    e(salu("s_mul_i32 s14, s14, 896"))
    e(salu("s_add_u32 s13, s13, s14"))
    e(salu("s_lshl_b32 s14, s11, 5"))
    e(salu("s_add_u32 s13, s13, s14"))
    e(valu("v_and_b32", t2, 31, lane))
    e(valu("v_lshl_add_u32", t2, w, 5, t2))
    e(valu("v_mul_u32_u24", t2, 1792, t2))
    e(valu("v_lshrrev_b32", lane, 5, lane))
    e(valu("v_lshl_add_u32", t2, lane, 4, t2))
    e(valu("v_add_u32", t2, S(13), t2))
    e(raw("s_waitcnt lgkmcnt(0)", "wait"))
    e(salu("s_mov_b32 s16, s4"))
    e(salu("s_mov_b32 s17, s5"))
    e(salu(f"s_mov_b32 s18, {16 * 128 * 896 * 2}"))
    e(salu("s_mov_b32 s19, 0x00020000"))
    e(salu(f"s_mul_i32 s14, s10, {8 * PART}"))
    e(salu("s_add_u32 s20, s6, s14"))
    e(salu("s_addc_u32 s21, s7, 0"))
    e(salu(f"s_mov_b32 s22, {8 * PART}"))
    e(salu("s_mov_b32 s23, 0x00020000"))
    e(salu("s_mov_b32 s32, 0xffff0000"))
    so, sw = S(16, 4), S(20, 4)
    for g in range(8):
        e(salu(f"s_mov_b32 s{24 + g}, {g * PART}"))
    D0 = 32
    for pc in range(NPC):
        for g in range(8):
            e(bload(V(D0 + (pc * 8 + g) * 4, 4), t1, sw, S(24 + g), off=pc * 1024, flags=K2F))
    acc = V(8, 8)
    tmp = V(16, 8)
    for pc in range(NPC):
        for g in range(8):
            for jj in range(4):
                src = V(D0 + (pc * 8 + g) * 4 + jj)
                dlo, dhi = (acc[2 * jj], acc[2 * jj + 1]) if g == 0 else (tmp[2 * jj], tmp[2 * jj + 1])
                e(valu("v_lshlrev_b32", dlo, 16, src))
                e(valu("v_and_b32", dhi, S(32), src))
            if g:
                for k in range(8):
                    e(valu("v_add_f32", acc[k], acc[k], tmp[k]))
        res = V(24 + (pc % 2) * 4, 4)
        for jj in range(4):
            e(valu("v_cvt_pk_bf16_f32", res[jj], acc[2 * jj], acc[2 * jj + 1]))
        e(bstore(res, t2, so, 0, off=pc * 32))
    if STAMP == 3:
        e(salu("s_cmp_lg_u32 s2, 0"))
        e(salu("s_cbranch_scc1 L2_end"))
        e(salu("s_load_dwordx2 s[16:17], s[0:1], 88"))
        e(salu(f"s_add_u32 s20, s6, {64 << 20}"))
        e(salu("s_addc_u32 s21, s7, 0"))
        e(salu("s_mov_b32 s22, 64"))
        e(salu("s_mov_b32 s18, 64"))
        e(valu("v_lshlrev_b32", V(3), 2, V(0)))
        e(raw("s_waitcnt lgkmcnt(0)", "wait"))
        e(bload(V(5), V(3), sw, 0, n=1))
        e(bstore(V(5), V(3), so, 0, n=1))
    e(label("L2_end"))
    e(raw("s_endpgm"))
    return finalize(st)


HEADER = open(os.path.join(os.path.dirname(os.path.abspath(__file__)), "header.txt")).read()


def kd(name, vgpr, accum, sgpr):
    return f""".amdhsa_kernel {name}
  .amdhsa_next_free_vgpr {vgpr}
  .amdhsa_next_free_sgpr {sgpr}
  .amdhsa_accum_offset {accum}
  .amdhsa_group_segment_fixed_size 0
  .amdhsa_kernarg_size 104
  .amdhsa_user_sgpr_count 2
  .amdhsa_user_sgpr_kernarg_segment_ptr 1
  .amdhsa_system_sgpr_workgroup_id_x 1
.end_amdhsa_kernel
"""


def main():
    out = HEADER
    out += f"; @launch kernel={K1} grid=(256,1,1) block=(256,1,1) lds={LDS_BYTES}\n"
    out += f"; @launch kernel={K2} grid=({K2_WGS},1,1) block=(256,1,1) lds=0\n"
    out += '.amdgcn_target "amdgcn-amd-amdhsa--gfx950"\n.text\n'
    for name, gen in ((K1, gen_k1), (K2, gen_k2)):
        out += f".globl {name}\n.p2align 8\n.type {name},@function\n{name}:\n"
        out += "\n".join(gen()) + "\n"
    out += "L_text_end:\n"
    out += '.section .rodata,"a"\n.p2align 6\n'
    out += kd(K1, 512, 256, 102)
    out += ".p2align 6\n"
    out += kd(K2, 32 + 32 * NPC, 32 + 32 * NPC, 40)
    dst = sys.argv[1] if len(sys.argv) > 1 else f"cdna_kernels/{NAME}.s"
    open(dst, "w").write(out)
    print("wrote", dst, len(out), "bytes", out.count("\n"), "lines")


if __name__ == "__main__":
    main()
```

```python
import math
import struct
import sys
import os

sys.path.insert(0, os.path.dirname(os.path.abspath(__file__)))
from asmir import *

NAME = "concat_heads__gqa_block_cached__gqa_block_cached__near_ridge"
K1 = NAME + "_kernel"
K2 = "reduce_out_kernel"


def f32bits(x):
    return struct.unpack("<I", struct.pack("<f", x))[0]


def env(k, d):
    return type(d)(os.environ.get(k, d))


CSCALE = math.log2(math.e) / 16.0
TLOG2 = 8.0
TRAW = TLOG2 / CSCALE
KVF = env("KVF", "nt")
WQF = env("WQF", "")
XF = env("XF", "")
WOF = env("WOF", "")
STF = env("STF", "")
K2F = env("K2F", "")
STAMP = env("STAMP", 0)
WARM = env("WARM", 2)
SMOOTH = env("SMOOTH", 3)
MAP = env("MAP", 1)
KVAT = [int(x) for x in env("KVAT", "2,4,6,8,10,12,14,23,25").split(",")]
NG1 = env("NG1", 3)
NPRE = 6
LOOPX = env("LOOPX", 0)
WRMF = env("WRMF", "")
WOWARM = env("WOWARM", 12)
WARMAT = env("WARMAT", 1)
TLBT = env("TLBT", 0)
CODEW = env("CODEW", 2)
CW0 = env("CW0", 1)
FINE = env("FINE", 0)
STS = (0, 1, 2, 4, 8, 14) if FINE else (0, 14)

SRD_X, SRD_K, SRD_V, SRD_WQ, SRD_WO, SRD_WS = (S(16, 4), S(20, 4), S(24, 4), S(28, 4), S(32, 4), S(36, 4))
sW, sG, sB, sBLK, sC = S(40), S(41), S(42), S(43), S(44)
sM0V, sOFFWQ, sM0K, sM0X, sOFFKV = S(45), S(46), S(47), S(48), S(49)
sT0, sT1 = S(50), S(51)
sMASK0, sMASK1 = S(52, 2), S(54, 2)
sFLAG = S(56)
sOFFX = S(57)
sRET = S(58, 2)
sM0WO = S(60)
sOFFWS = S(61)
sTRAW = S(62)
sOFFWO = S(63)
sT2 = S(100)


def Qf(qb, s):
    return V((qb * 16 + s) * 4, 4)


def Xf(s):
    return V(s * 4, 4)


def Of(ks):
    return V(ks * 4, 4)


def Sb(p, qb):
    return V(128 + p * 32 + qb * 16, 16)


def Kf(i):
    return V(192 + (i % 4) * 4, 4)


def Vf(i):
    return V(208 + (i % 4) * 4, 4)


def Wf(i):
    return V(192 + (i % 8) * 4, 4)


def Wacc(buf, tt):
    return V(128 + buf * 32 + tt * 16, 16)


vAK, vAV, vOFFKV, vL16 = V(224), V(225), V(226), V(227)
vM = [V(228), V(229)]
vTHR = [V(230), V(231)]
vL = [V(232), V(233)]
vAL = [V(234), V(235)]
vT = [V(236), V(237)]
vU = [V(238), V(239)]
vTMP = V(240, 8)
vMR = [V(248), V(249)]
vAWQ = V(250)
vOFFWO = V(251)
vAWO = [[V(252), V(253)], [V(254), V(255)], [V(228), V(229)]]
NWO = env("NWO", 4)
vXO = [V(112), V(113)]
vAX = V(114, 4)
vDUMMY, vPFWQ, vL128, vCW = V(118), V(119), V(120), V(121)
SRD_PF = S(96, 4)
sPFOFF = S(101)
PFN = env("PFN", 0)
PFF = env("PFF", "")
PFAT = env("PFAT", 16)
vAV2 = vAWQ


def STG(t):
    return V(128 + 16 * t, 16)

KSTR, VSTR = 1040, 1088
KSLOT, VSLOT = 16 * KSTR, 16 * VSTR
VBASE = 4 * KSLOT
NK, NV = 4, 5
KS = [i * KSLOT for i in range(4)]
VS = [i * VSLOT for i in range(NV)]
P1BASE = VBASE + VSLOT
NP1 = 4
XBASE = 2 * KSLOT
assert XBASE + 32768 <= 4 * KSLOT
WOSLOT = 32768
LDS_BYTES = 163840
PART = 4 * 14 * 2048
assert P1BASE + NP1 * VSLOT <= LDS_BYTES


def Oacc(dt, qb):
    return A((dt * 2 + qb) * 16, 16)


def Qacc(nt):
    return A(nt * 16, 16)


def barrier():
    return raw("s_barrier", "other", cost=4)


_nst = 0


def stamp(real=False):
    global _nst
    if not STAMP:
        return []
    i = _nst
    _nst += 1
    assert i < 16
    op = "s_memrealtime" if (real or STAMP >= 2) else "s_memtime"
    return [raw(f"{op} s[{64 + 2 * i}:{65 + 2 * i}]", "salu", cost=2)]


def stamp_store():
    if not STAMP:
        return []
    if STAMP == 3:
        out = [raw("s_waitcnt lgkmcnt(0)", "wait"),
               salu(f"s_cmp_lg_u32 {sW}, 0"), salu("s_cbranch_scc1 L_end"),
               salu(f"s_cmp_lg_u32 s2, 77"), salu("s_cbranch_scc1 L_end"),
               salu(f"s_add_u32 s4, s14, {64 << 20}"), salu("s_addc_u32 s5, s15, 0"),
               salu("s_mov_b32 s6, 256"), salu("s_mov_b32 s7, 0x00020000"),
               valu("v_mov_b32", V(2), 0)]
        for i in range(_nst):
            out.append(salu(f"s_sub_u32 s3, s{64 + 2 * i}, s64"))
            out.append(valu("v_mov_b32", V(4 + i), S(3)))
            out.append(bstore(V(4 + i), V(2), S(4, 4), 0, off=i * 4, n=1))
        return out
    out = [raw("s_waitcnt lgkmcnt(0)", "wait"),
           salu(f"s_cmp_lg_u32 {sW}, 0"), salu("s_cbranch_scc1 L_end"),
           salu("s_lshl_b32 s3, s2, 7"), salu(f"s_add_u32 s3, s3, {64 << 20}"),
           salu("s_add_u32 s4, s14, s3"), salu("s_addc_u32 s5, s15, 0"),
           salu("s_mov_b32 s6, 128"), salu("s_mov_b32 s7, 0x00020000"),
           valu("v_mov_b32", V(2), 0)]
    for i in range(_nst):
        out.append(valu("v_mov_b32", V(4 + 2 * i), S(64 + 2 * i)))
        out.append(valu("v_mov_b32", V(5 + 2 * i), S(65 + 2 * i)))
        out.append(bstore(V(4 + 2 * i, 2), V(2), S(4, 4), 0, off=i * 8, n=2))
    return out


def dma_wq(s):
    out = []
    for i in range(4):
        out.append(setm0(f"s_add_u32 m0, {sM0V}, {P1BASE + (s % NP1) * VSLOT + i * VSTR}"))
        out.append(salu(f"s_add_u32 {sT0}, {sOFFWQ}, {(16 * s + i) * 8192}", defs=[sT0]))
        out.append(dma(vL16, SRD_WQ, sT0, tag=("wq", s), flags=WQF))
    return out


def dma_x(pc):
    out = []
    for i in range(4):
        out.append(setm0(f"s_add_u32 m0, {sM0X}, {(pc % 2) * 16384 + i * 1024}"))
        out.append(salu(f"s_add_u32 {sT1}, {sOFFX}, {pc * 128 + i * 8 * 896}", defs=[sT1]))
        out.append(dma(vXO[i % 2], SRD_X, sT1, tag=("x", pc), flags=XF))
    return out


def dma_k(j):
    out = [salu(f"s_add_u32 {sT1}, {sOFFKV}, {j * 16384}", defs=[sT1])]
    for i in range(4):
        out.append(setm0(f"s_add_u32 m0, {sM0K}, {KS[j % NK] + i * (KSTR - 512)}"))
        out.append(dma(vOFFKV, SRD_K, sT1, off=i * 512, tag=("k", j), flags=KVF))
    return out


def dma_v(j):
    out = [salu(f"s_add_u32 {sT1}, {sOFFKV}, {j * 16384}", defs=[sT1])]
    for i in range(4):
        out.append(setm0(f"s_add_u32 m0, {sM0V}, {VBASE + VS[j % NV] + i * (VSTR - 512)}"))
        out.append(dma(vOFFKV, SRD_V, sT1, off=i * 512, tag=("v", j), flags=KVF))
    return out


def dma_wo(sg):
    ps, hs = divmod(sg, 2)
    out = []
    for i in range(8):
        out.append(setm0(f"s_add_u32 m0, {sM0WO}, {(sg % NWO) * WOSLOT + i * 1024}"))
        out.append(salu(f"s_add_u32 {sT1}, {sOFFWO}, {(256 * hs + 8 * i) * 896 + 128 * ps}", defs=[sT1]))
        out.append(dma(vOFFWO, SRD_WO, sT1, tag=("wo", sg), flags=WOF))
    return out


def pfload(*a, **kw):
    i = bload(*a, **kw)
    i.defs = set()
    return i


def rd_wq(f):
    s, nt = divmod(f, 16)
    d = Wf(f)
    off = (s % NP1) * VSLOT + nt * 64
    return [ds_read_tr(d[0:2], vAWQ, off), ds_read_tr(d[2:4], vAWQ, off + 4 * VSTR)]


def rd_x(s):
    pc, sp = divmod(s, 4)
    return [ds_read_b128(Xf(s), vAX[sp], (pc % 2) * 16384)]


def rd_k(j, s):
    return [ds_read_b128(Kf(s), vAK, KS[j % NK] + s * 32)]


def stage_ld(t, kind, j):
    out = [salu(f"s_add_u32 {sT1}, {sOFFKV}, {j * 16384}", defs=[sT1])]
    for i in range(4):
        out.append(bload(STG(t)[4 * i: 4 * i + 4], vOFFKV, SRD_K if kind == "k" else SRD_V, sT1,
                         off=i * 512, tag=("stg", t), flags=KVF))
    return out


def rd_v(j, f):
    dt, ks = divmod(f, 2)
    d = Vf(f)
    base, off = (vAV2, 0) if j % NV == 4 else (vAV, VS[j % NV])
    off += ks * 512 + dt * 64
    return [ds_read_tr(d[0:2], base, off), ds_read_tr(d[2:4], base, off + 4 * VSTR)]


def rd_wo(f):
    sg, r = divmod(f, 32)
    ks, tt = divmod(r, 2)
    slot = sg % NWO
    base = vAWO[slot // 2][tt]
    off = (slot % 2) * WOSLOT + ks * 2048
    d = Wf(f)
    return [ds_read_tr(d[0:2], base, off), ds_read_tr(d[2:4], base, off + 512)]


def sm_max(p):
    out = []
    for qb in range(2):
        s_ = Sb(p, qb)
        t = vT[qb]
        out.append(valu("v_max3_f32", t, s_[0], s_[1], s_[2]))
        for r in range(3, 15, 2):
            out.append(valu("v_max3_f32", t, t, s_[r], s_[r + 1]))
        out.append(valu("v_max_f32", t, t, s_[15]))
    for qb in range(2):
        out.append(valu("v_mov_b32", vU[qb], vT[qb]))
    for qb in range(2):
        out.append(Ins(f"v_permlane32_swap_b32 {vT[qb]}, {vU[qb]}", "perm", defs=[vT[qb], vU[qb]],
                       uses=[vT[qb], vU[qb]]))
    for qb in range(2):
        out.append(valu("v_max_f32", vT[qb], vT[qb], vU[qb]))
    return out


_lbl = 0


def sm_check(first):
    global _lbl
    out = []
    if first:
        for qb in range(2):
            out.append(valu("v_mov_b32", vMR[qb], vT[qb]))
            out.append(valu("v_mul_f32", vM[qb], sC, vT[qb]))
            out.append(valu("v_add_f32", vTHR[qb], sTRAW, vT[qb]))
            out.append(valu("v_mov_b32", vL[qb], 0))
        return out
    out.append(valu("v_cmp_gt_f32", sMASK0, vT[0], vTHR[0]))
    out.append(valu("v_cmp_gt_f32", sMASK1, vT[1], vTHR[1]))
    _lbl += 1
    out.append(Group([
        salu(f"s_or_b64 {sMASK0}, {sMASK0}, {sMASK1}", defs=[sMASK0], uses=[sMASK0, sMASK1]),
        salu(f"s_cbranch_scc0 L_noslow{_lbl}"),
        Ins(f"s_call_b64 {sRET}, L_slow", "salu", cost=2,
            defs=vM + vTHR + vL + vAL + vMR + vU, uses=vM + vTHR + vL + vT + vMR),
        label(f"L_noslow{_lbl}")]))
    return out


def sm_exp(p, qb, grp):
    s_ = Sb(p, qb)
    out = []
    rs = range(4 * grp, 4 * grp + 4)
    for r in rs:
        out.append(valu("v_fma_f32", s_[r], s_[r], sC, ("-", vM[qb])))
    for r in rs:
        out.append(valu("v_exp_f32", s_[r], s_[r]))
    for r in rs:
        out.append(valu("v_add_f32", vL[qb], vL[qb], s_[r]))
    ks, g2 = divmod(grp, 2)
    for jj in range(2):
        j = 2 * g2 + jj
        out.append(valu("v_cvt_pk_bf16_f32", s_[8 * ks + j], s_[8 * ks + 2 * j], s_[8 * ks + 2 * j + 1]))
    return out


def Pf(p, qb, ks):
    return Sb(p, qb)[8 * ks: 8 * ks + 4]


def resc_check():
    global _lbl
    _lbl += 1
    return [
        salu(f"s_cmp_eq_u32 {sFLAG}, 0", uses=[sFLAG]),
        salu(f"s_cbranch_scc1 L_nores{_lbl}"),
        Ins(f"s_call_b64 {sRET}, L_resc", "salu", cost=2),
        label(f"L_nores{_lbl}"),
    ]


def softmax1(j):
    p = j % 2
    if j == 0:
        return []
    out = sm_max(p) + sm_check(False)
    for gi in range(8 if j == 15 else NG1):
        out += sm_exp(p, gi // 4, gi % 4)
    return out


def softmax2(j):
    p = j % 2
    if j == 15:
        return []
    out = []
    if j == 0:
        out = sm_max(p) + sm_check(True)
    for gi in range(0 if j == 0 else NG1, 8):
        out += sm_exp(p, gi // 4, gi % 4)
    return out


def conv_o(ksg):
    qb, s = divmod(ksg, 16)
    dt, hf = divmod(s, 2)
    acc = Oacc(dt, qb)
    out = []
    for ee in range(8):
        out.append(valu("v_accvgpr_read_b32", vTMP[ee], acc[hf * 8 + ee]))
    for ee in range(8):
        out.append(valu("v_mul_f32", vTMP[ee], vTMP[ee], vL[qb]))
    for jj in range(4):
        out.append(valu("v_cvt_pk_bf16_f32", Of(ksg)[jj], vTMP[2 * jj], vTMP[2 * jj + 1]))
    return out


def store_pass(ps):
    out = []
    for tt in range(2):
        acc = Wacc(ps % 2, tt)
        for sp in range(2):
            g = []
            for jj in range(4):
                g.append(valu("v_cvt_pk_bf16_f32", acc[8 * sp + jj], acc[8 * sp + 2 * jj], acc[8 * sp + 2 * jj + 1]))
            g.append(salu(f"s_add_u32 {sT0}, {sOFFWS}, {ps * 4096}", defs=[sT0]))
            g.append(bstore(acc[8 * sp: 8 * sp + 4], vL16, SRD_WS, sT0, off=(2 * tt + sp) * 1024, flags=STF))
            out.append(g)
    return out


def gen_k1():
    st = []
    e = st.append
    ext = st.extend
    ext(stamp(True))
    ext(stamp())
    e(salu("s_cmp_ge_u32 s2, 256"))
    e(salu("s_cbranch_scc1 L_end"))
    if MAP == 0:
        e(salu(f"s_and_b32 {sG}, s2, 7"))
        e(salu(f"s_lshr_b32 s3, s2, 6"))
        e(salu(f"s_xor_b32 {sG}, {sG}, s3"))
        e(salu(f"s_lshr_b32 {sB}, s2, 3"))
        e(salu(f"s_and_b32 {sB}, {sB}, 15"))
        e(salu(f"s_lshr_b32 {sBLK}, s2, 7"))
    else:
        e(salu(f"s_bfe_u32 {sBLK}, s2, 0x10002"))
        e(salu(f"s_and_b32 {sG}, s2, 3"))
        e(salu(f"s_lshl_b32 {sG}, {sG}, 1"))
        e(salu(f"s_bfe_u32 s3, s2, 0x10003"))
        e(salu(f"s_or_b32 {sG}, {sG}, s3"))
        e(salu(f"s_lshr_b32 {sB}, s2, 4"))
    e(salu(f"s_load_dwordx2 s[14:15], s[0:1], 96"))
    e(salu(f"s_mul_i32 s3, {sBLK}, 40"))
    e(salu("s_add_u32 s0, s0, s3"))
    e(salu("s_addc_u32 s1, s1, 0"))
    e(salu("s_load_dwordx8 s[4:11], s[0:1], 0"))
    e(salu("s_load_dwordx2 s[12:13], s[0:1], 32"))
    lane, tA, tB, tC, tD, tE = (vTMP[i] for i in range(6))
    e(valu("v_and_b32", lane, 63, V(0)))
    e(valu("v_lshrrev_b32", tA, 6, V(0)))
    e(Ins(f"v_readfirstlane_b32 {sW}, {tA}", "valu", defs=[sW], uses=[tA]))
    e(valu("v_lshlrev_b32", vL16, 4, lane))
    cw = []
    if CODEW:
        e(raw("s_getpc_b64 s[96:97]", "salu"))
        e(label("L_pc"))
        e(valu("v_lshlrev_b32", vCW, 6, V(0)))
        e(salu("s_mov_b32 s98, L_text_end-L_pc-4"))
        if CODEW == 2:
            e(salu("s_bfe_u32 s99, s2, 0x30003"))
            e(salu("s_mul_i32 s99, s99, 11264"))
            e(valu("v_add_u32", vCW, S(99), vCW))
            e(valu("v_min_u32", vCW, S(98), vCW))
            cw = [[Ins(f"global_load_dword {vDUMMY}, {vCW}, s[96:97]", "vmem", uses=[vCW], tag=("cw", 0), cost=8)]]
            cw += [[] for _ in range(5)]
        else:
            for i in range(6):
                cw.append([Ins(f"global_load_dword {vDUMMY}, {vCW}, s[96:97]", "vmem", uses=[vCW], tag=("cw", i), cost=8),
                           valu("v_add_u32", vCW, 16384, vCW), valu("v_min_u32", vCW, S(98), vCW)])
        for i in range(CW0):
            ext(cw[i])
    e(valu("v_lshrrev_b32", tA, 3, lane))
    e(valu("v_mul_u32_u24", tA, 896, tA))
    e(valu("v_and_b32", tB, 7, lane))
    e(valu("v_lshrrev_b32", tC, 4, lane))
    e(valu("v_xor_b32", tB, tB, tC))
    e(valu("v_lshl_add_u32", vXO[0], tB, 4, tA))
    e(valu("v_xor_b32", vXO[1], 64, vXO[0]))
    e(salu(f"s_mul_i32 {sM0V}, {sW}, {4 * VSTR}", uses=[sW]))
    e(salu(f"s_lshl_b32 {sOFFWQ}, {sW}, 15"))
    e(salu(f"s_lshl_b32 {sM0X}, {sW}, 12"))
    e(salu(f"s_add_u32 {sM0X}, {sM0X}, {XBASE}"))
    e(salu(f"s_mul_i32 {sOFFX}, {sW}, {32 * 896}"))
    e(raw("s_waitcnt lgkmcnt(0)", "wait"))

    def srd(d, ptr_lo, off_expr_reg, size):
        e(salu(f"s_add_u32 s{d.b}, s{ptr_lo}, {off_expr_reg}"))
        e(salu(f"s_addc_u32 s{d.b + 1}, s{ptr_lo + 1}, 0"))
        e(salu(f"s_mov_b32 s{d.b + 2}, {size}"))
        e(salu(f"s_mov_b32 s{d.b + 3}, 0x00020000"))

    e(salu(f"s_lshl_b32 s3, {sG}, 10"))
    srd(SRD_WQ, 10, "s3", 447 * 8192 + 1024)
    e(salu(f"s_mul_i32 s3, {sB}, 114688"))
    srd(SRD_X, 4, "s3", 114688)
    if TLBT:
        e(valu("v_lshlrev_b32", vPFWQ, 13, V(0)))
        e(pfload(vDUMMY, vPFWQ, SRD_WQ, 0, tag=("tl", 0), n=1))
        e(valu("v_lshlrev_b32", vCW, 12, lane))
        e(pfload(vDUMMY, vCW, SRD_X, 0, tag=("tl", 1), n=1))
        if TLBT == 2:
            e(salu(f"s_mov_b32 {sT2}, {256 * 8192}"))
            e(pfload(vDUMMY, vPFWQ, SRD_WQ, sT2, tag=("tl", 2), n=1))
    ext(dma_wq(0))
    ext(dma_x(0))
    ext(dma_wq(1))
    ext(dma_x(1))
    ext(dma_wq(2))
    e(salu(f"s_lshl_b32 s3, {sB}, 3"))
    e(salu(f"s_add_u32 s3, s3, {sG}"))
    e(salu(f"s_lshl_b32 s3, s3, 18"))
    srd(SRD_K, 6, "s3", 262144)
    srd(SRD_V, 8, "s3", 262144)
    e(salu(f"s_mul_i32 s3, {sG}, 458752"))
    srd(SRD_WO, 12, "s3", 458752)
    e(salu(f"s_lshl_b32 s3, {sBLK}, 4"))
    e(salu(f"s_add_u32 s3, s3, {sB}"))
    e(salu(f"s_lshl_b32 s3, s3, 3"))
    e(salu(f"s_add_u32 s3, s3, {sG}"))
    e(salu(f"s_mul_i32 s3, s3, {PART}"))
    srd(SRD_WS, 14, "s3", PART)
    e(salu(f"s_mov_b32 {sC}, {f32bits(CSCALE):#x}"))
    e(salu(f"s_mov_b32 {sTRAW}, {f32bits(TRAW):#x}"))
    e(salu(f"s_mov_b32 {sFLAG}, 0"))
    e(salu(f"s_mul_i32 {sM0K}, {sW}, {4 * KSTR}"))
    e(salu(f"s_lshl_b32 {sOFFKV}, {sW}, 11"))
    e(salu(f"s_lshl_b32 {sM0WO}, {sW}, 13"))
    e(salu(f"s_mul_i32 {sOFFWO}, {sW}, {64 * 896}"))
    e(salu(f"s_mul_i32 {sOFFWS}, {sW}, {14 * 2048}"))
    e(valu("v_lshrrev_b32", tA, 5, lane))
    e(valu("v_and_b32", tB, 31, lane))
    e(valu("v_lshlrev_b32", tC, 13, tA))
    e(valu("v_lshl_add_u32", vOFFKV, tB, 4, tC))
    e(valu("v_bfe_u32", tC, tB, 1, 3))
    e(valu("v_xor_b32", tC, tC, tA))
    e(valu("v_lshlrev_b32", tC, 4, tC))
    e(valu("v_lshl_add_u32", tC, tB, 7, tC))
    e(valu("v_add_u32", vAX[0], sM0X, tC))
    for sp in range(1, 4):
        e(valu("v_xor_b32", vAX[sp], sp << 5, vAX[0]))
    e(valu("v_and_b32", tC, 3, tB))
    e(valu("v_and_b32", tD, 4, tB))
    e(valu("v_lshl_add_u32", tC, tD, 1, tC))
    e(valu("v_and_b32", tD, 8, tB))
    e(valu("v_lshrrev_b32", tD, 1, tD))
    e(valu("v_add_u32", tC, tC, tD))
    e(valu("v_mul_u32_u24", vAK, KSTR, tC))
    e(valu("v_lshrrev_b32", tD, 4, tB))
    e(valu("v_lshl_add_u32", vAK, tD, 9, vAK))
    e(valu("v_lshl_add_u32", vAK, tA, 4, vAK))
    e(valu("v_bfe_u32", tE, lane, 2, 2))
    e(valu("v_lshl_add_u32", tC, tA, 3, tE))
    e(valu("v_and_b32", tD, 1, lane))
    e(valu("v_lshlrev_b32", tD, 4, tD))
    e(valu("v_and_b32", tB, 2, lane))
    e(valu("v_lshl_add_u32", tD, tB, 2, tD))
    e(valu("v_bfe_u32", tB, lane, 4, 1))
    e(valu("v_lshl_add_u32", tD, tB, 5, tD))
    e(valu("v_mul_u32_u24", vAV, VSTR, tC))
    e(valu("v_add_u32", vAV, vAV, tD))
    e(valu("v_add_u32", vAWQ, P1BASE, vAV))
    e(valu("v_add_u32", vAV, VBASE, vAV))
    e(valu("v_lshl_add_u32", tC, tC, 7, tD))
    e(valu("v_lshrrev_b32", tE, 1, tE))
    e(valu("v_lshlrev_b32", tE, 6, tE))
    e(valu("v_add_u32", vAWO[0][0], tC, tE))
    e(valu("v_xor_b32", tE, 64, tE))
    e(valu("v_add_u32", vAWO[0][1], tC, tE))
    e(valu("v_add_u32", vAWO[1][0], 2 * WOSLOT, vAWO[0][0]))
    e(valu("v_add_u32", vAWO[1][1], 2 * WOSLOT, vAWO[0][1]))
    e(valu("v_lshrrev_b32", tC, 3, lane))
    e(valu("v_mul_u32_u24", tC, 896, tC))
    e(valu("v_and_b32", tD, 7, lane))
    e(valu("v_lshlrev_b32", tB, 2, tB))
    e(valu("v_xor_b32", tD, tD, tB))
    e(valu("v_lshl_add_u32", vOFFWO, tD, 4, tC))
    if PFN:
        e(valu("v_lshlrev_b32", vL128, 7, lane))
        e(salu(f"s_cmp_lt_u32 {sW}, 2"))
        e(salu(f"s_cselect_b32 s96, s20, s24"))
        e(salu(f"s_cselect_b32 s97, s21, s25"))
        e(salu(f"s_mov_b32 s98, 262144"))
        e(salu(f"s_mov_b32 s99, 0x00020000"))
        e(salu(f"s_cselect_b32 {sPFOFF}, 5, 4"))
        e(salu(f"s_lshl_b32 {sPFOFF}, {sPFOFF}, 14"))
        e(salu(f"s_and_b32 s3, {sW}, 1"))
        e(salu(f"s_lshl_b32 s3, s3, 13"))
        e(salu(f"s_add_u32 {sPFOFF}, {sPFOFF}, s3"))
    if WARM:
        e(valu("v_lshrrev_b32", tA, 3, lane))
        e(valu("v_and_b32", tB, 7, lane))
        e(valu("v_lshlrev_b32", tA, 13, tA))
        e(valu("v_lshl_add_u32", vPFWQ, tB, 7, tA))
        if MAP == 0:
            e(salu(f"s_and_b32 s3, {sB}, 7"))
            e(salu(f"s_mul_i32 s3, s3, {56 * 8192}"))
            e(salu(f"s_lshl_b32 {sT2}, {sW}, 16"))
            e(salu(f"s_add_u32 {sT2}, {sT2}, s3"))
            e(pfload(vDUMMY, vPFWQ, SRD_WQ, sT2, tag=("pfw", 0), n=1))
            e(salu(f"s_add_u32 {sT2}, {sT2}, {4 << 16}"))
            e(pfload(vDUMMY, vPFWQ, SRD_WQ, sT2, tag=("pfw", 1), n=1))
        else:
            e(salu(f"s_mul_i32 s3, {sB}, {28 * 8192}"))
            e(salu(f"s_lshl_b32 {sT2}, {sW}, 16"))
            e(salu(f"s_add_u32 {sT2}, {sT2}, s3"))
            warm = [pfload(vDUMMY, vPFWQ, SRD_WQ, sT2, tag=("pfw", 0), n=1, flags=WRMF)]
            if WARM == 2:
                warm.append(pfload(vDUMMY, vPFWQ, SRD_WQ, sT2, off=64, tag=("pfw", 1), n=1, flags=WRMF))
            if WARMAT < 0:
                ext(warm)
    e(WaitVM(("x", 0)))
    for s in range(4):
        ext(rd_x(s))
    e(barrier())

    LA = 6
    for f in range(LA):
        ext(rd_wq(f))
    pre = [dma_k(0), dma_k(1), dma_v(0), stage_ld(0, "v", 1), stage_ld(1, "v", 2), stage_ld(2, "v", 3),
           stage_ld(3, "v", 4), dma_k(2), dma_k(3)]
    kv_at = {}
    if SMOOTH:
        units = []
        for g_ in pre:
            head, rest = g_[0], g_[1:]
            per = len(rest) // 4
            for i in range(4):
                units.append([head] + rest[i * per: (i + 1) * per])
        lo, hi = SMOOTH, 23
        for u in range(28):
            kv_at.setdefault(lo + u * (hi - lo) // 28, []).extend(units[u])
        for u in range(8):
            kv_at.setdefault(23 + u // 2, []).extend(units[28 + u])
    else:
        for st_, g_ in zip(KVAT, pre):
            kv_at.setdefault(st_, []).extend(g_)
    for s in range(28):
        if STAMP and s in STS:
            ext(stamp())
        slots = []
        for nt in range(16):
            f = 16 * s + nt
            sl = [mfma(Qacc(nt), Wf(f), Xf(s), Qacc(nt) if s > 0 else 0)]
            if f + LA < 448:
                sl += rd_wq(f + LA)
            if nt == 3 and s + 1 < 28:
                if s == 23:
                    sl += [WaitAll(vm=False, lgkm=True)]
                sl += [WaitVM(("wq", s + 1)), barrier()]
            slots.append(sl)
        fill = []
        if s + NP1 - 1 < 28:
            fill += dma_wq(s + NP1 - 1)
        if WARM and s == WARMAT:
            fill += warm
        if s in kv_at:
            fill += kv_at[s]
        if CODEW and s % 2 == 1 and CW0 + (s - 1) // 2 < 6:
            fill += cw[CW0 + (s - 1) // 2]
        if PFN and s >= PFAT and (s - PFAT) % 2 == 0 and (s - PFAT) // 2 < PFN:
            fill += [salu(f"s_add_u32 {sT2}, {sPFOFF}, {((s - PFAT) // 2) * 16384}", defs=[sT2]),
                     pfload(vDUMMY, vL128, SRD_PF, sT2, tag=("pf", s), n=1, flags=PFF)]
        if s % 4 == 1 and (s + 3) // 4 < 7:
            pc = (s + 3) // 4
            fill += [WaitVM(("x", pc))]
            for s2 in range(4):
                fill += rd_x(4 * pc + s2)
        if s % 4 == 0 and s // 4 + 2 < 7:
            fill += [WaitAll(vm=False, lgkm=True)] if s == 0 else []
            fill += dma_x(s // 4 + 2)
        ext(interleave(slots, fill, start=4, end=14))

    ext(stamp())
    e(WaitVM(("k", 0)))
    e(barrier())
    for s3 in range(3):
        ext(rd_k(0, s3))
    e(valu("v_add_u32", vT[0], sM0V, vL16))
    e(valu("v_add_u32", vT[0], VBASE + VSLOT, vT[0]))
    e(valu("v_add_u32", vAV2, VS[4], vAV))
    drain = []
    for t in range(4):
        for i in range(4):
            drain.append(ds_write_b128(vT[0], STG(t)[4 * i: 4 * i + 4], VS[t] + i * VSTR))
    for qb in range(2):
        for s in range(16):
            acc = Qacc(qb * 8 + s // 2)
            for ee in range(8):
                e(valu("v_accvgpr_read_b32", vTMP[ee], acc[(s % 2) * 8 + ee]))
            for jj in range(4):
                e(valu("v_cvt_pk_bf16_f32", Qf(qb, s)[jj], vTMP[2 * jj], vTMP[2 * jj + 1]))
            if qb == 0:
                e(drain[s])
    e(WaitAll(vm=False, lgkm=True))

    ext(stamp())
    for j in range(17):
        p = j % 2
        if LOOPX:
            if j == 6:
                e(salu("s_mov_b32 s99, 0"))
                e(label("L_loopx"))
            if j == 8:
                e(salu("s_add_u32 s99, s99, 1"))
                e(salu("s_cmp_lt_u32 s99, 3"))
                e(salu("s_cbranch_scc1 L_loopx"))
            if 8 <= j < 12:
                continue
        if j in (4, 12) and not FINE:
            ext(stamp())
        fillA = softmax2(j - 1) if j >= 1 else []
        if j < 16:
            slots = []
            for s in range(16):
                for qb in range(2):
                    sl = [mfma(Sb(p, qb), Kf(s), Qf(qb, s), Sb(p, qb) if s > 0 else 0)]
                    if qb == 0:
                        if s + 3 < 16:
                            sl += rd_k(j, s + 3)
                        elif j >= 1:
                            sl += rd_v(j - 1, s + 3 - 16)
                    slots.append(sl)
            ext(interleave(slots, fillA, start=0, end=30))
        if j >= 2:
            ext(resc_check())
        waits = []
        if j + 1 < 16:
            waits.append(("k", j + 1))
        if j < 16:
            waits.append(("v", j))
        grp = []
        if NV <= j + NV - 2 < 16:
            grp += dma_v(j + NV - 2)
        if j + NK < 16:
            grp += dma_k(j + NK)
        if j == WOWARM:
            grp += [valu("v_lshlrev_b32", vTMP[0], 2, vL16),
                    salu(f"s_mul_i32 s3, {sB}, 28672"), salu(f"s_lshl_b32 {sT2}, {sW}, 12"),
                    salu(f"s_add_u32 {sT2}, {sT2}, s3", defs=[sT2]),
                    pfload(vTMP[1], vTMP[0], SRD_WO, sT2, tag=("pfo", 0), n=1, flags=WRMF),
                    salu(f"s_add_u32 {sT2}, {sT2}, 16384", defs=[sT2]),
                    pfload(vTMP[1], vTMP[0], SRD_WO, sT2, tag=("pfo", 1), n=1, flags=WRMF)]
        if j == 13:
            grp += dma_wo(0)
        if j == 15:
            grp += dma_wo(1) + dma_wo(3)
        sync = [WaitVM(waits), barrier()] if j < 16 else []
        fillB = softmax1(j) if j < 16 else []
        if j == 16:
            for qb in range(2):
                fillB.append(valu("v_mov_b32", vU[qb], vL[qb]))
            for qb in range(2):
                fillB.append(Ins(f"v_permlane32_swap_b32 {vL[qb]}, {vU[qb]}", "perm",
                                 defs=[vL[qb], vU[qb]], uses=[vL[qb], vU[qb]]))
            for qb in range(2):
                fillB.append(valu("v_add_f32", vL[qb], vL[qb], vU[qb]))
            for qb in range(2):
                fillB.append(valu("v_rcp_f32", vL[qb], vL[qb]))
        if j >= 1:
            slots = []
            for f in range(16):
                dt, ks = divmod(f, 2)
                for qb in range(2):
                    sl = [mfma(Oacc(dt, qb), Vf(f), Pf(1 - p, qb, ks),
                               Oacc(dt, qb) if (j > 1 or ks > 0) else 0)]
                    if qb == 0:
                        if f + 3 < 16:
                            sl += rd_v(j - 1, f + 3)
                        elif j + 1 < 16:
                            sl += rd_k(j + 1, f + 3 - 16)
                        elif j == 15:
                            sl += rd_v(15, f + 3 - 16)
                    if f == 0 and qb == 1:
                        sl += sync
                    slots.append(sl)
            if j == 16:
                for k in range(NPRE):
                    cv = conv_o(k)
                    for q4 in range(4):
                        slots[7 + 4 * k + q4] += cv[5 * q4: 5 * q4 + 5]
                ext(interleave(slots, fillB, start=0, end=6))
            else:
                ext(interleave(slots, grp + fillB, start=2, end=32))
        else:
            ext(sync)
            ext(grp)
            for s3 in range(3):
                ext(rd_k(1, s3))
            ext(fillB)

    ext(stamp())
    e(WaitVM(("wo", 0)))
    e(barrier())
    ext(dma_wo(2))
    if NWO == 5:
        ext(dma_wo(4))
        for tt in range(2):
            e(valu("v_add_u32", vAWO[2][tt], 4 * WOSLOT, vAWO[0][tt]))
    for f in range(LA):
        ext(rd_wo(f))
    cvl = []
    for ksg in range(NPRE, 32):
        cvl += conv_o(ksg)

    ext(stamp())
    for sg in range(14):
        ps, hs = divmod(sg, 2)
        if sg in (2, 8) and not FINE:
            ext(stamp())
        slots = []
        for r in range(32):
            f = 32 * sg + r
            ks, tt = divmod(r, 2)
            ksg = 16 * hs + ks
            acc = Wacc(ps % 2, tt)
            sl = [mfma(acc, Wf(f), Of(ksg), acc if ksg > 0 else 0)]
            if f + LA < 448:
                sl += rd_wo(f + LA)
            if ps == 0 and f < 60:
                sl += cvl[f * len(cvl) // 60: (f + 1) * len(cvl) // 60]
            if r == 3 and sg + 1 < 14:
                sl += [WaitVM(("wo", sg + 1)), barrier()]
            slots.append(sl)
        fill = []
        if sg >= 1 and sg + NWO - 1 < 14:
            fill += dma_wo(sg + NWO - 1)
        if ps >= 1:
            sp_ = store_pass(ps - 1)
            for k in range(2):
                if not env("NOST", 0):
                    slots[10 + 12 * k] += sp_[2 * hs + k]
        ext(interleave(slots, fill, start=4, end=26))

    ext(stamp())
    for g_ in store_pass(6):
        ext(g_)
    if STAMP:
        e(WaitAll())
    ext(stamp())
    ext(stamp(True))
    ext(stamp_store())
    e(label("L_end"))
    e(raw("s_endpgm"))

    lines = finalize(st)

    sub = []
    s_ = sub.append
    s_(label("L_slow"))
    s_(nop(2))
    for qb in range(2):
        s_(valu("v_max_f32", vMR[qb], vMR[qb], vT[qb]))
        s_(valu("v_mul_f32", vU[qb], sC, vMR[qb]))
        s_(valu("v_sub_f32", vAL[qb], vM[qb], vU[qb]))
        s_(valu("v_exp_f32", vAL[qb], vAL[qb]))
        s_(valu("v_mov_b32", vM[qb], vU[qb]))
        s_(valu("v_add_f32", vTHR[qb], sTRAW, vMR[qb]))
        s_(valu("v_mul_f32", vL[qb], vL[qb], vAL[qb]))
    s_(salu(f"s_mov_b32 {sFLAG}, 1"))
    s_(nop(2))
    s_(raw(f"s_setpc_b64 {sRET}"))
    s_(label("L_resc"))
    s_(nop(16))
    tt = [vU[0], vU[1], vT[0], vT[1]]
    for dt in range(8):
        for qb in range(2):
            acc = Oacc(dt, qb)
            for r0 in range(0, 16, 4):
                for k in range(4):
                    s_(valu("v_accvgpr_read_b32", tt[k], acc[r0 + k]))
                for k in range(4):
                    s_(valu("v_mul_f32", tt[k], tt[k], vAL[qb]))
                for k in range(4):
                    s_(valu("v_accvgpr_write_b32", acc[r0 + k], tt[k]))
    s_(salu(f"s_mov_b32 {sFLAG}, 0"))
    s_(nop(4))
    s_(raw(f"s_setpc_b64 {sRET}"))
    lines += finalize(sub)
    return lines


NPC = env("NPC", 4)
K2_WGS = 896 // NPC


def gen_k2():
    st = []
    e = st.append
    per = 28 // NPC
    magic = (65536 + per - 1) // per
    assert all((i * magic) >> 16 == i // per for i in range(K2_WGS))
    e(salu(f"s_cmp_ge_u32 s2, {K2_WGS}"))
    e(salu("s_cbranch_scc1 L2_end"))
    e(salu("s_load_dwordx2 s[4:5], s[0:1], 80"))
    e(salu("s_load_dwordx2 s[6:7], s[0:1], 96"))
    e(salu(f"s_mul_i32 s10, s2, {magic}"))
    e(salu("s_lshr_b32 s10, s10, 16"))
    e(salu(f"s_mul_i32 s11, s10, {per}"))
    e(salu("s_sub_u32 s11, s2, s11"))
    e(salu(f"s_mul_i32 s11, s11, {NPC}"))
    lane, w, t1, t2 = V(1), V(2), V(3), V(4)
    e(valu("v_and_b32", lane, 63, V(0)))
    e(valu("v_lshrrev_b32", w, 6, V(0)))
    e(valu("v_mul_u32_u24", t1, 14 * 2048, w))
    e(valu("v_lshl_add_u32", t1, lane, 4, t1))
    e(salu("s_lshl_b32 s12, s11, 10"))
    e(valu("v_add_u32", t1, S(12), t1))
    e(salu("s_and_b32 s13, s10, 15"))
    e(salu("s_lshr_b32 s14, s10, 4"))
    e(salu("s_mul_i32 s13, s13, 229376"))
    e(salu("s_mul_i32 s14, s14, 896"))
    e(salu("s_add_u32 s13, s13, s14"))
    e(salu("s_lshl_b32 s14, s11, 5"))
    e(salu("s_add_u32 s13, s13, s14"))
    e(valu("v_and_b32", t2, 31, lane))
    e(valu("v_lshl_add_u32", t2, w, 5, t2))
    e(valu("v_mul_u32_u24", t2, 1792, t2))
    e(valu("v_lshrrev_b32", lane, 5, lane))
    e(valu("v_lshl_add_u32", t2, lane, 4, t2))
    e(valu("v_add_u32", t2, S(13), t2))
    e(raw("s_waitcnt lgkmcnt(0)", "wait"))
    e(salu("s_mov_b32 s16, s4"))
    e(salu("s_mov_b32 s17, s5"))
    e(salu(f"s_mov_b32 s18, {16 * 128 * 896 * 2}"))
    e(salu("s_mov_b32 s19, 0x00020000"))
    e(salu(f"s_mul_i32 s14, s10, {8 * PART}"))
    e(salu("s_add_u32 s20, s6, s14"))
    e(salu("s_addc_u32 s21, s7, 0"))
    e(salu(f"s_mov_b32 s22, {8 * PART}"))
    e(salu("s_mov_b32 s23, 0x00020000"))
    e(salu("s_mov_b32 s32, 0xffff0000"))
    so, sw = S(16, 4), S(20, 4)
    for g in range(8):
        e(salu(f"s_mov_b32 s{24 + g}, {g * PART}"))
    D0 = 32
    for pc in range(NPC):
        for g in range(8):
            e(bload(V(D0 + (pc * 8 + g) * 4, 4), t1, sw, S(24 + g), off=pc * 1024, flags=K2F))
    acc = V(8, 8)
    tmp = V(16, 8)
    for pc in range(NPC):
        for g in range(8):
            for jj in range(4):
                src = V(D0 + (pc * 8 + g) * 4 + jj)
                dlo, dhi = (acc[2 * jj], acc[2 * jj + 1]) if g == 0 else (tmp[2 * jj], tmp[2 * jj + 1])
                e(valu("v_lshlrev_b32", dlo, 16, src))
                e(valu("v_and_b32", dhi, S(32), src))
            if g:
                for k in range(8):
                    e(valu("v_add_f32", acc[k], acc[k], tmp[k]))
        res = V(24 + (pc % 2) * 4, 4)
        for jj in range(4):
            e(valu("v_cvt_pk_bf16_f32", res[jj], acc[2 * jj], acc[2 * jj + 1]))
        e(bstore(res, t2, so, 0, off=pc * 32))
    if STAMP == 3:
        e(salu("s_cmp_lg_u32 s2, 0"))
        e(salu("s_cbranch_scc1 L2_end"))
        e(salu("s_load_dwordx2 s[16:17], s[0:1], 88"))
        e(salu(f"s_add_u32 s20, s6, {64 << 20}"))
        e(salu("s_addc_u32 s21, s7, 0"))
        e(salu("s_mov_b32 s22, 64"))
        e(salu("s_mov_b32 s18, 64"))
        e(valu("v_lshlrev_b32", V(3), 2, V(0)))
        e(raw("s_waitcnt lgkmcnt(0)", "wait"))
        e(bload(V(5), V(3), sw, 0, n=1))
        e(bstore(V(5), V(3), so, 0, n=1))
    e(label("L2_end"))
    e(raw("s_endpgm"))
    return finalize(st)


HEADER = open(os.path.join(os.path.dirname(os.path.abspath(__file__)), "header.txt")).read()


def kd(name, vgpr, accum, sgpr):
    return f""".amdhsa_kernel {name}
  .amdhsa_next_free_vgpr {vgpr}
  .amdhsa_next_free_sgpr {sgpr}
  .amdhsa_accum_offset {accum}
  .amdhsa_group_segment_fixed_size 0
  .amdhsa_kernarg_size 104
  .amdhsa_user_sgpr_count 2
  .amdhsa_user_sgpr_kernarg_segment_ptr 1
  .amdhsa_system_sgpr_workgroup_id_x 1
.end_amdhsa_kernel
"""


def main():
    out = HEADER
    out += f"; @launch kernel={K1} grid=(256,1,1) block=(256,1,1) lds={LDS_BYTES}\n"
    out += f"; @launch kernel={K2} grid=({K2_WGS},1,1) block=(256,1,1) lds=0\n"
    out += '.amdgcn_target "amdgcn-amd-amdhsa--gfx950"\n.text\n'
    for name, gen in ((K1, gen_k1), (K2, gen_k2)):
        out += f".globl {name}\n.p2align 8\n.type {name},@function\n{name}:\n"
        out += "\n".join(gen()) + "\n"
    out += "L_text_end:\n"
    out += '.section .rodata,"a"\n.p2align 6\n'
    out += kd(K1, 512, 256, 102)
    out += ".p2align 6\n"
    out += kd(K2, 32 + 32 * NPC, 32 + 32 * NPC, 40)
    dst = sys.argv[1] if len(sys.argv) > 1 else f"cdna_kernels/{NAME}.s"
    open(dst, "w").write(out)
    print("wrote", dst, len(out), "bytes", out.count("\n"), "lines")


if __name__ == "__main__":
    main()
```

```python
import math
import struct
import sys
import os

sys.path.insert(0, os.path.dirname(os.path.abspath(__file__)))
from asmir import *

NAME = "concat_heads__gqa_block_cached__gqa_block_cached__near_ridge"
K1 = NAME + "_kernel"
K2 = "reduce_out_kernel"


def f32bits(x):
    return struct.unpack("<I", struct.pack("<f", x))[0]


def env(k, d):
    return type(d)(os.environ.get(k, d))


CSCALE = math.log2(math.e) / 16.0
TLOG2 = 8.0
TRAW = TLOG2 / CSCALE
KVF = env("KVF", "nt")
WQF = env("WQF", "")
XF = env("XF", "")
WOF = env("WOF", "")
STF = env("STF", "")
K2F = env("K2F", "")
STAMP = env("STAMP", 0)
WARM = env("WARM", 2)
SMOOTH = env("SMOOTH", 3)
MAP = env("MAP", 1)
KVAT = [int(x) for x in env("KVAT", "2,4,6,8,10,12,14,23,25").split(",")]
NG1 = env("NG1", 3)
NPRE = 6
T1OV = env("T1OV", 1)
LOOPX = env("LOOPX", 0)
WRMF = env("WRMF", "")
WOWARM = env("WOWARM", 12)
WARMAT = env("WARMAT", 1)
TLBT = env("TLBT", 0)
CODEW = env("CODEW", 2)
CW0 = env("CW0", 1)
FINE = env("FINE", 0)
STS = (0, 1, 2, 4, 8, 14) if FINE else (0, 14)

SRD_X, SRD_K, SRD_V, SRD_WQ, SRD_WO, SRD_WS = (S(16, 4), S(20, 4), S(24, 4), S(28, 4), S(32, 4), S(36, 4))
sW, sG, sB, sBLK, sC = S(40), S(41), S(42), S(43), S(44)
sM0V, sOFFWQ, sM0K, sM0X, sOFFKV = S(45), S(46), S(47), S(48), S(49)
sT0, sT1 = S(50), S(51)
sMASK0, sMASK1 = S(52, 2), S(54, 2)
sFLAG = S(56)
sOFFX = S(57)
sRET = S(58, 2)
sM0WO = S(60)
sOFFWS = S(61)
sTRAW = S(62)
sOFFWO = S(63)
sT2 = S(100)


def Qf(qb, s):
    return V((qb * 16 + s) * 4, 4)


def Xf(s):
    return V(s * 4, 4)


def Of(ks):
    return V(ks * 4, 4)


def Sb(p, qb):
    return V(128 + p * 32 + qb * 16, 16)


def Kf(i):
    return V(192 + (i % 4) * 4, 4)


def Vf(i):
    return V(208 + (i % 4) * 4, 4)


def Wf(i):
    return V(192 + (i % 8) * 4, 4)


def Wacc(buf, tt):
    return V(128 + buf * 32 + tt * 16, 16)


vAK, vAV, vOFFKV, vL16 = V(224), V(225), V(226), V(227)
vM = [V(228), V(229)]
vTHR = [V(230), V(231)]
vL = [V(232), V(233)]
vAL = [V(234), V(235)]
vT = [V(236), V(237)]
vU = [V(238), V(239)]
vTMP = V(240, 8)
vMR = [V(248), V(249)]
vAWQ = V(250)
vOFFWO = V(251)
vAWO = [[V(252), V(253)], [V(254), V(255)], [V(228), V(229)]]
NWO = env("NWO", 4)
vXO = [V(112), V(113)]
vAX = V(114, 4)
vDUMMY, vPFWQ, vL128, vCW = V(118), V(119), V(120), V(121)
SRD_PF = S(96, 4)
sPFOFF = S(101)
PFN = env("PFN", 0)
PFF = env("PFF", "")
PFAT = env("PFAT", 16)
vAV2 = vAWQ


def STG(t):
    return V(128 + 16 * t, 16)

KSTR, VSTR = 1040, 1088
KSLOT, VSLOT = 16 * KSTR, 16 * VSTR
VBASE = 4 * KSLOT
NK, NV = 4, 5
KS = [i * KSLOT for i in range(4)]
VS = [i * VSLOT for i in range(NV)]
P1BASE = VBASE + VSLOT
NP1 = 4
XBASE = 2 * KSLOT
assert XBASE + 32768 <= 4 * KSLOT
WOSLOT = 32768
LDS_BYTES = 163840
PART = 4 * 14 * 2048
assert P1BASE + NP1 * VSLOT <= LDS_BYTES


def Oacc(dt, qb):
    return A((dt * 2 + qb) * 16, 16)


def Qacc(nt):
    return A(nt * 16, 16)


def barrier():
    return raw("s_barrier", "other", cost=4)


_nst = 0


def stamp(real=False):
    global _nst
    if not STAMP:
        return []
    i = _nst
    _nst += 1
    assert i < 16
    op = "s_memrealtime" if (real or STAMP >= 2) else "s_memtime"
    return [raw(f"{op} s[{64 + 2 * i}:{65 + 2 * i}]", "salu", cost=2)]


def stamp_store():
    if not STAMP:
        return []
    if STAMP == 3:
        out = [raw("s_waitcnt lgkmcnt(0)", "wait"),
               salu(f"s_cmp_lg_u32 {sW}, 0"), salu("s_cbranch_scc1 L_end"),
               salu(f"s_cmp_lg_u32 s2, 77"), salu("s_cbranch_scc1 L_end"),
               salu(f"s_add_u32 s4, s14, {64 << 20}"), salu("s_addc_u32 s5, s15, 0"),
               salu("s_mov_b32 s6, 256"), salu("s_mov_b32 s7, 0x00020000"),
               valu("v_mov_b32", V(2), 0)]
        for i in range(_nst):
            out.append(salu(f"s_sub_u32 s3, s{64 + 2 * i}, s64"))
            out.append(valu("v_mov_b32", V(4 + i), S(3)))
            out.append(bstore(V(4 + i), V(2), S(4, 4), 0, off=i * 4, n=1))
        return out
    out = [raw("s_waitcnt lgkmcnt(0)", "wait"),
           salu(f"s_cmp_lg_u32 {sW}, 0"), salu("s_cbranch_scc1 L_end"),
           salu("s_lshl_b32 s3, s2, 7"), salu(f"s_add_u32 s3, s3, {64 << 20}"),
           salu("s_add_u32 s4, s14, s3"), salu("s_addc_u32 s5, s15, 0"),
           salu("s_mov_b32 s6, 128"), salu("s_mov_b32 s7, 0x00020000"),
           valu("v_mov_b32", V(2), 0)]
    for i in range(_nst):
        out.append(valu("v_mov_b32", V(4 + 2 * i), S(64 + 2 * i)))
        out.append(valu("v_mov_b32", V(5 + 2 * i), S(65 + 2 * i)))
        out.append(bstore(V(4 + 2 * i, 2), V(2), S(4, 4), 0, off=i * 8, n=2))
    return out


def dma_wq(s):
    out = []
    for i in range(4):
        out.append(setm0(f"s_add_u32 m0, {sM0V}, {P1BASE + (s % NP1) * VSLOT + i * VSTR}"))
        out.append(salu(f"s_add_u32 {sT0}, {sOFFWQ}, {(16 * s + i) * 8192}", defs=[sT0]))
        out.append(dma(vL16, SRD_WQ, sT0, tag=("wq", s), flags=WQF))
    return out


def dma_x(pc):
    out = []
    for i in range(4):
        out.append(setm0(f"s_add_u32 m0, {sM0X}, {(pc % 2) * 16384 + i * 1024}"))
        out.append(salu(f"s_add_u32 {sT1}, {sOFFX}, {pc * 128 + i * 8 * 896}", defs=[sT1]))
        out.append(dma(vXO[i % 2], SRD_X, sT1, tag=("x", pc), flags=XF))
    return out


def dma_k(j):
    out = [salu(f"s_add_u32 {sT1}, {sOFFKV}, {j * 16384}", defs=[sT1])]
    for i in range(4):
        out.append(setm0(f"s_add_u32 m0, {sM0K}, {KS[j % NK] + i * (KSTR - 512)}"))
        out.append(dma(vOFFKV, SRD_K, sT1, off=i * 512, tag=("k", j), flags=KVF))
    return out


def dma_v(j):
    out = [salu(f"s_add_u32 {sT1}, {sOFFKV}, {j * 16384}", defs=[sT1])]
    for i in range(4):
        out.append(setm0(f"s_add_u32 m0, {sM0V}, {VBASE + VS[j % NV] + i * (VSTR - 512)}"))
        out.append(dma(vOFFKV, SRD_V, sT1, off=i * 512, tag=("v", j), flags=KVF))
    return out


def dma_wo(sg):
    ps, hs = divmod(sg, 2)
    out = []
    for i in range(8):
        out.append(setm0(f"s_add_u32 m0, {sM0WO}, {(sg % NWO) * WOSLOT + i * 1024}"))
        out.append(salu(f"s_add_u32 {sT1}, {sOFFWO}, {(256 * hs + 8 * i) * 896 + 128 * ps}", defs=[sT1]))
        out.append(dma(vOFFWO, SRD_WO, sT1, tag=("wo", sg), flags=WOF))
    return out


def pfload(*a, **kw):
    i = bload(*a, **kw)
    i.defs = set()
    return i


def rd_wq(f):
    s, nt = divmod(f, 16)
    d = Wf(f)
    off = (s % NP1) * VSLOT + nt * 64
    return [ds_read_tr(d[0:2], vAWQ, off), ds_read_tr(d[2:4], vAWQ, off + 4 * VSTR)]


def rd_x(s):
    pc, sp = divmod(s, 4)
    return [ds_read_b128(Xf(s), vAX[sp], (pc % 2) * 16384)]


def rd_k(j, s):
    return [ds_read_b128(Kf(s), vAK, KS[j % NK] + s * 32)]


def stage_ld(t, kind, j):
    out = [salu(f"s_add_u32 {sT1}, {sOFFKV}, {j * 16384}", defs=[sT1])]
    for i in range(4):
        out.append(bload(STG(t)[4 * i: 4 * i + 4], vOFFKV, SRD_K if kind == "k" else SRD_V, sT1,
                         off=i * 512, tag=("stg", t), flags=KVF))
    return out


def rd_v(j, f):
    dt, ks = divmod(f, 2)
    d = Vf(f)
    base, off = (vAV2, 0) if j % NV == 4 else (vAV, VS[j % NV])
    off += ks * 512 + dt * 64
    return [ds_read_tr(d[0:2], base, off), ds_read_tr(d[2:4], base, off + 4 * VSTR)]


def rd_wo(f):
    sg, r = divmod(f, 32)
    ks, tt = divmod(r, 2)
    slot = sg % NWO
    base = vAWO[slot // 2][tt]
    off = (slot % 2) * WOSLOT + ks * 2048
    d = Wf(f)
    return [ds_read_tr(d[0:2], base, off), ds_read_tr(d[2:4], base, off + 512)]


def sm_max(p):
    out = []
    for qb in range(2):
        s_ = Sb(p, qb)
        t = vT[qb]
        out.append(valu("v_max3_f32", t, s_[0], s_[1], s_[2]))
        for r in range(3, 15, 2):
            out.append(valu("v_max3_f32", t, t, s_[r], s_[r + 1]))
        out.append(valu("v_max_f32", t, t, s_[15]))
    for qb in range(2):
        out.append(valu("v_mov_b32", vU[qb], vT[qb]))
    for qb in range(2):
        out.append(Ins(f"v_permlane32_swap_b32 {vT[qb]}, {vU[qb]}", "perm", defs=[vT[qb], vU[qb]],
                       uses=[vT[qb], vU[qb]]))
    for qb in range(2):
        out.append(valu("v_max_f32", vT[qb], vT[qb], vU[qb]))
    return out


_lbl = 0


def sm_check(first):
    global _lbl
    out = []
    if first:
        for qb in range(2):
            out.append(valu("v_mov_b32", vMR[qb], vT[qb]))
            out.append(valu("v_mul_f32", vM[qb], sC, vT[qb]))
            out.append(valu("v_add_f32", vTHR[qb], sTRAW, vT[qb]))
            out.append(valu("v_mov_b32", vL[qb], 0))
        return out
    out.append(valu("v_cmp_gt_f32", sMASK0, vT[0], vTHR[0]))
    out.append(valu("v_cmp_gt_f32", sMASK1, vT[1], vTHR[1]))
    _lbl += 1
    out.append(Group([
        salu(f"s_or_b64 {sMASK0}, {sMASK0}, {sMASK1}", defs=[sMASK0], uses=[sMASK0, sMASK1]),
        salu(f"s_cbranch_scc0 L_noslow{_lbl}"),
        Ins(f"s_call_b64 {sRET}, L_slow", "salu", cost=2,
            defs=vM + vTHR + vL + vAL + vMR + vU, uses=vM + vTHR + vL + vT + vMR),
        label(f"L_noslow{_lbl}")]))
    return out


def sm_exp(p, qb, grp):
    s_ = Sb(p, qb)
    out = []
    rs = range(4 * grp, 4 * grp + 4)
    for r in rs:
        out.append(valu("v_fma_f32", s_[r], s_[r], sC, ("-", vM[qb])))
    for r in rs:
        out.append(valu("v_exp_f32", s_[r], s_[r]))
    for r in rs:
        out.append(valu("v_add_f32", vL[qb], vL[qb], s_[r]))
    ks, g2 = divmod(grp, 2)
    for jj in range(2):
        j = 2 * g2 + jj
        out.append(valu("v_cvt_pk_bf16_f32", s_[8 * ks + j], s_[8 * ks + 2 * j], s_[8 * ks + 2 * j + 1]))
    return out


def Pf(p, qb, ks):
    return Sb(p, qb)[8 * ks: 8 * ks + 4]


def resc_check():
    global _lbl
    _lbl += 1
    return [
        salu(f"s_cmp_eq_u32 {sFLAG}, 0", uses=[sFLAG]),
        salu(f"s_cbranch_scc1 L_nores{_lbl}"),
        Ins(f"s_call_b64 {sRET}, L_resc", "salu", cost=2),
        label(f"L_nores{_lbl}"),
    ]


def softmax1(j):
    p = j % 2
    if j == 0:
        return []
    out = sm_max(p) + sm_check(False)
    for gi in range(8 if j == 15 else NG1):
        out += sm_exp(p, gi // 4, gi % 4)
    return out


def softmax2(j):
    p = j % 2
    if j == 15:
        return []
    out = []
    if j == 0:
        out = sm_max(p) + sm_check(True)
    for gi in range(0 if j == 0 else NG1, 8):
        out += sm_exp(p, gi // 4, gi % 4)
    return out


def conv_o(ksg):
    qb, s = divmod(ksg, 16)
    dt, hf = divmod(s, 2)
    acc = Oacc(dt, qb)
    out = []
    for ee in range(8):
        out.append(valu("v_accvgpr_read_b32", vTMP[ee], acc[hf * 8 + ee]))
    for ee in range(8):
        out.append(valu("v_mul_f32", vTMP[ee], vTMP[ee], vL[qb]))
    for jj in range(4):
        out.append(valu("v_cvt_pk_bf16_f32", Of(ksg)[jj], vTMP[2 * jj], vTMP[2 * jj + 1]))
    return out


def store_pass(ps):
    out = []
    for tt in range(2):
        acc = Wacc(ps % 2, tt)
        for sp in range(2):
            g = []
            for jj in range(4):
                g.append(valu("v_cvt_pk_bf16_f32", acc[8 * sp + jj], acc[8 * sp + 2 * jj], acc[8 * sp + 2 * jj + 1]))
            g.append(salu(f"s_add_u32 {sT0}, {sOFFWS}, {ps * 4096}", defs=[sT0]))
            g.append(bstore(acc[8 * sp: 8 * sp + 4], vL16, SRD_WS, sT0, off=(2 * tt + sp) * 1024, flags=STF))
            out.append(g)
    return out


def gen_k1():
    st = []
    e = st.append
    ext = st.extend
    ext(stamp(True))
    ext(stamp())
    e(salu("s_cmp_ge_u32 s2, 256"))
    e(salu("s_cbranch_scc1 L_end"))
    if MAP == 0:
        e(salu(f"s_and_b32 {sG}, s2, 7"))
        e(salu(f"s_lshr_b32 s3, s2, 6"))
        e(salu(f"s_xor_b32 {sG}, {sG}, s3"))
        e(salu(f"s_lshr_b32 {sB}, s2, 3"))
        e(salu(f"s_and_b32 {sB}, {sB}, 15"))
        e(salu(f"s_lshr_b32 {sBLK}, s2, 7"))
    else:
        e(salu(f"s_bfe_u32 {sBLK}, s2, 0x10002"))
        e(salu(f"s_and_b32 {sG}, s2, 3"))
        e(salu(f"s_lshl_b32 {sG}, {sG}, 1"))
        e(salu(f"s_bfe_u32 s3, s2, 0x10003"))
        e(salu(f"s_or_b32 {sG}, {sG}, s3"))
        e(salu(f"s_lshr_b32 {sB}, s2, 4"))
    e(salu(f"s_load_dwordx2 s[14:15], s[0:1], 96"))
    e(salu(f"s_mul_i32 s3, {sBLK}, 40"))
    e(salu("s_add_u32 s0, s0, s3"))
    e(salu("s_addc_u32 s1, s1, 0"))
    e(salu("s_load_dwordx8 s[4:11], s[0:1], 0"))
    e(salu("s_load_dwordx2 s[12:13], s[0:1], 32"))
    lane, tA, tB, tC, tD, tE = (vTMP[i] for i in range(6))
    e(valu("v_and_b32", lane, 63, V(0)))
    e(valu("v_lshrrev_b32", tA, 6, V(0)))
    e(Ins(f"v_readfirstlane_b32 {sW}, {tA}", "valu", defs=[sW], uses=[tA]))
    e(valu("v_lshlrev_b32", vL16, 4, lane))
    cw = []
    if CODEW:
        e(raw("s_getpc_b64 s[96:97]", "salu"))
        e(label("L_pc"))
        e(valu("v_lshlrev_b32", vCW, 6, V(0)))
        e(salu("s_mov_b32 s98, L_text_end-L_pc-4"))
        if CODEW == 2:
            e(salu("s_bfe_u32 s99, s2, 0x30003"))
            e(salu("s_mul_i32 s99, s99, 11264"))
            e(valu("v_add_u32", vCW, S(99), vCW))
            e(valu("v_min_u32", vCW, S(98), vCW))
            cw = [[Ins(f"global_load_dword {vDUMMY}, {vCW}, s[96:97]", "vmem", uses=[vCW], tag=("cw", 0), cost=8)]]
            cw += [[] for _ in range(5)]
        else:
            for i in range(6):
                cw.append([Ins(f"global_load_dword {vDUMMY}, {vCW}, s[96:97]", "vmem", uses=[vCW], tag=("cw", i), cost=8),
                           valu("v_add_u32", vCW, 16384, vCW), valu("v_min_u32", vCW, S(98), vCW)])
        for i in range(CW0):
            ext(cw[i])
    e(valu("v_lshrrev_b32", tA, 3, lane))
    e(valu("v_mul_u32_u24", tA, 896, tA))
    e(valu("v_and_b32", tB, 7, lane))
    e(valu("v_lshrrev_b32", tC, 4, lane))
    e(valu("v_xor_b32", tB, tB, tC))
    e(valu("v_lshl_add_u32", vXO[0], tB, 4, tA))
    e(valu("v_xor_b32", vXO[1], 64, vXO[0]))
    e(salu(f"s_mul_i32 {sM0V}, {sW}, {4 * VSTR}", uses=[sW]))
    e(salu(f"s_lshl_b32 {sOFFWQ}, {sW}, 15"))
    e(salu(f"s_lshl_b32 {sM0X}, {sW}, 12"))
    e(salu(f"s_add_u32 {sM0X}, {sM0X}, {XBASE}"))
    e(salu(f"s_mul_i32 {sOFFX}, {sW}, {32 * 896}"))
    e(raw("s_waitcnt lgkmcnt(0)", "wait"))

    def srd(d, ptr_lo, off_expr_reg, size):
        e(salu(f"s_add_u32 s{d.b}, s{ptr_lo}, {off_expr_reg}"))
        e(salu(f"s_addc_u32 s{d.b + 1}, s{ptr_lo + 1}, 0"))
        e(salu(f"s_mov_b32 s{d.b + 2}, {size}"))
        e(salu(f"s_mov_b32 s{d.b + 3}, 0x00020000"))

    e(salu(f"s_lshl_b32 s3, {sG}, 10"))
    srd(SRD_WQ, 10, "s3", 447 * 8192 + 1024)
    e(salu(f"s_mul_i32 s3, {sB}, 114688"))
    srd(SRD_X, 4, "s3", 114688)
    if TLBT:
        e(valu("v_lshlrev_b32", vPFWQ, 13, V(0)))
        e(pfload(vDUMMY, vPFWQ, SRD_WQ, 0, tag=("tl", 0), n=1))
        e(valu("v_lshlrev_b32", vCW, 12, lane))
        e(pfload(vDUMMY, vCW, SRD_X, 0, tag=("tl", 1), n=1))
        if TLBT == 2:
            e(salu(f"s_mov_b32 {sT2}, {256 * 8192}"))
            e(pfload(vDUMMY, vPFWQ, SRD_WQ, sT2, tag=("tl", 2), n=1))
    ext(dma_wq(0))
    ext(dma_x(0))
    ext(dma_wq(1))
    ext(dma_x(1))
    ext(dma_wq(2))
    e(salu(f"s_lshl_b32 s3, {sB}, 3"))
    e(salu(f"s_add_u32 s3, s3, {sG}"))
    e(salu(f"s_lshl_b32 s3, s3, 18"))
    srd(SRD_K, 6, "s3", 262144)
    srd(SRD_V, 8, "s3", 262144)
    e(salu(f"s_mul_i32 s3, {sG}, 458752"))
    srd(SRD_WO, 12, "s3", 458752)
    e(salu(f"s_lshl_b32 s3, {sBLK}, 4"))
    e(salu(f"s_add_u32 s3, s3, {sB}"))
    e(salu(f"s_lshl_b32 s3, s3, 3"))
    e(salu(f"s_add_u32 s3, s3, {sG}"))
    e(salu(f"s_mul_i32 s3, s3, {PART}"))
    srd(SRD_WS, 14, "s3", PART)
    e(salu(f"s_mov_b32 {sC}, {f32bits(CSCALE):#x}"))
    e(salu(f"s_mov_b32 {sTRAW}, {f32bits(TRAW):#x}"))
    e(salu(f"s_mov_b32 {sFLAG}, 0"))
    e(salu(f"s_mul_i32 {sM0K}, {sW}, {4 * KSTR}"))
    e(salu(f"s_lshl_b32 {sOFFKV}, {sW}, 11"))
    e(salu(f"s_lshl_b32 {sM0WO}, {sW}, 13"))
    e(salu(f"s_mul_i32 {sOFFWO}, {sW}, {64 * 896}"))
    e(salu(f"s_mul_i32 {sOFFWS}, {sW}, {14 * 2048}"))
    e(valu("v_lshrrev_b32", tA, 5, lane))
    e(valu("v_and_b32", tB, 31, lane))
    e(valu("v_lshlrev_b32", tC, 13, tA))
    e(valu("v_lshl_add_u32", vOFFKV, tB, 4, tC))
    e(valu("v_bfe_u32", tC, tB, 1, 3))
    e(valu("v_xor_b32", tC, tC, tA))
    e(valu("v_lshlrev_b32", tC, 4, tC))
    e(valu("v_lshl_add_u32", tC, tB, 7, tC))
    e(valu("v_add_u32", vAX[0], sM0X, tC))
    for sp in range(1, 4):
        e(valu("v_xor_b32", vAX[sp], sp << 5, vAX[0]))
    e(valu("v_and_b32", tC, 3, tB))
    e(valu("v_and_b32", tD, 4, tB))
    e(valu("v_lshl_add_u32", tC, tD, 1, tC))
    e(valu("v_and_b32", tD, 8, tB))
    e(valu("v_lshrrev_b32", tD, 1, tD))
    e(valu("v_add_u32", tC, tC, tD))
    e(valu("v_mul_u32_u24", vAK, KSTR, tC))
    e(valu("v_lshrrev_b32", tD, 4, tB))
    e(valu("v_lshl_add_u32", vAK, tD, 9, vAK))
    e(valu("v_lshl_add_u32", vAK, tA, 4, vAK))
    e(valu("v_bfe_u32", tE, lane, 2, 2))
    e(valu("v_lshl_add_u32", tC, tA, 3, tE))
    e(valu("v_and_b32", tD, 1, lane))
    e(valu("v_lshlrev_b32", tD, 4, tD))
    e(valu("v_and_b32", tB, 2, lane))
    e(valu("v_lshl_add_u32", tD, tB, 2, tD))
    e(valu("v_bfe_u32", tB, lane, 4, 1))
    e(valu("v_lshl_add_u32", tD, tB, 5, tD))
    e(valu("v_mul_u32_u24", vAV, VSTR, tC))
    e(valu("v_add_u32", vAV, vAV, tD))
    e(valu("v_add_u32", vAWQ, P1BASE, vAV))
    e(valu("v_add_u32", vAV, VBASE, vAV))
    e(valu("v_lshl_add_u32", tC, tC, 7, tD))
    e(valu("v_lshrrev_b32", tE, 1, tE))
    e(valu("v_lshlrev_b32", tE, 6, tE))
    e(valu("v_add_u32", vAWO[0][0], tC, tE))
    e(valu("v_xor_b32", tE, 64, tE))
    e(valu("v_add_u32", vAWO[0][1], tC, tE))
    e(valu("v_add_u32", vAWO[1][0], 2 * WOSLOT, vAWO[0][0]))
    e(valu("v_add_u32", vAWO[1][1], 2 * WOSLOT, vAWO[0][1]))
    e(valu("v_lshrrev_b32", tC, 3, lane))
    e(valu("v_mul_u32_u24", tC, 896, tC))
    e(valu("v_and_b32", tD, 7, lane))
    e(valu("v_lshlrev_b32", tB, 2, tB))
    e(valu("v_xor_b32", tD, tD, tB))
    e(valu("v_lshl_add_u32", vOFFWO, tD, 4, tC))
    if PFN:
        e(valu("v_lshlrev_b32", vL128, 7, lane))
        e(salu(f"s_cmp_lt_u32 {sW}, 2"))
        e(salu(f"s_cselect_b32 s96, s20, s24"))
        e(salu(f"s_cselect_b32 s97, s21, s25"))
        e(salu(f"s_mov_b32 s98, 262144"))
        e(salu(f"s_mov_b32 s99, 0x00020000"))
        e(salu(f"s_cselect_b32 {sPFOFF}, 5, 4"))
        e(salu(f"s_lshl_b32 {sPFOFF}, {sPFOFF}, 14"))
        e(salu(f"s_and_b32 s3, {sW}, 1"))
        e(salu(f"s_lshl_b32 s3, s3, 13"))
        e(salu(f"s_add_u32 {sPFOFF}, {sPFOFF}, s3"))
    if WARM:
        e(valu("v_lshrrev_b32", tA, 3, lane))
        e(valu("v_and_b32", tB, 7, lane))
        e(valu("v_lshlrev_b32", tA, 13, tA))
        e(valu("v_lshl_add_u32", vPFWQ, tB, 7, tA))
        if MAP == 0:
            e(salu(f"s_and_b32 s3, {sB}, 7"))
            e(salu(f"s_mul_i32 s3, s3, {56 * 8192}"))
            e(salu(f"s_lshl_b32 {sT2}, {sW}, 16"))
            e(salu(f"s_add_u32 {sT2}, {sT2}, s3"))
            e(pfload(vDUMMY, vPFWQ, SRD_WQ, sT2, tag=("pfw", 0), n=1))
            e(salu(f"s_add_u32 {sT2}, {sT2}, {4 << 16}"))
            e(pfload(vDUMMY, vPFWQ, SRD_WQ, sT2, tag=("pfw", 1), n=1))
        else:
            e(salu(f"s_mul_i32 s3, {sB}, {28 * 8192}"))
            e(salu(f"s_lshl_b32 {sT2}, {sW}, 16"))
            e(salu(f"s_add_u32 {sT2}, {sT2}, s3"))
            warm = [pfload(vDUMMY, vPFWQ, SRD_WQ, sT2, tag=("pfw", 0), n=1, flags=WRMF)]
            if WARM == 2:
                warm.append(pfload(vDUMMY, vPFWQ, SRD_WQ, sT2, off=64, tag=("pfw", 1), n=1, flags=WRMF))
            if WARMAT < 0:
                ext(warm)
    e(WaitVM(("x", 0)))
    for s in range(4):
        ext(rd_x(s))
    e(barrier())

    LA = 6
    for f in range(LA):
        ext(rd_wq(f))
    pre = [dma_k(0), dma_k(1), dma_v(0), stage_ld(0, "v", 1), stage_ld(1, "v", 2), stage_ld(2, "v", 3),
           stage_ld(3, "v", 4), dma_k(2), dma_k(3)]
    kv_at = {}
    if SMOOTH:
        units = []
        for g_ in pre:
            head, rest = g_[0], g_[1:]
            per = len(rest) // 4
            for i in range(4):
                units.append([head] + rest[i * per: (i + 1) * per])
        lo, hi = SMOOTH, 23
        for u in range(28):
            kv_at.setdefault(lo + u * (hi - lo) // 28, []).extend(units[u])
        for u in range(8):
            kv_at.setdefault(23 + u // 2, []).extend(units[28 + u])
    else:
        for st_, g_ in zip(KVAT, pre):
            kv_at.setdefault(st_, []).extend(g_)
    for s in range(28):
        if STAMP and s in STS:
            ext(stamp())
        slots = []
        for nt in range(16):
            f = 16 * s + nt
            sl = [mfma(Qacc(nt), Wf(f), Xf(s), Qacc(nt) if s > 0 else 0)]
            if f + LA < 448:
                sl += rd_wq(f + LA)
            if nt == 3 and s + 1 < 28:
                if s == 23:
                    sl += [WaitAll(vm=False, lgkm=True)]
                sl += [WaitVM(("wq", s + 1)), barrier()]
            slots.append(sl)
        fill = []
        if s + NP1 - 1 < 28:
            fill += dma_wq(s + NP1 - 1)
        if WARM and s == WARMAT:
            fill += warm
        if s in kv_at:
            fill += kv_at[s]
        if CODEW and s % 2 == 1 and CW0 + (s - 1) // 2 < 6:
            fill += cw[CW0 + (s - 1) // 2]
        if PFN and s >= PFAT and (s - PFAT) % 2 == 0 and (s - PFAT) // 2 < PFN:
            fill += [salu(f"s_add_u32 {sT2}, {sPFOFF}, {((s - PFAT) // 2) * 16384}", defs=[sT2]),
                     pfload(vDUMMY, vL128, SRD_PF, sT2, tag=("pf", s), n=1, flags=PFF)]
        if s % 4 == 1 and (s + 3) // 4 < 7:
            pc = (s + 3) // 4
            fill += [WaitVM(("x", pc))]
            for s2 in range(4):
                fill += rd_x(4 * pc + s2)
        if s % 4 == 0 and s // 4 + 2 < 7:
            fill += [WaitAll(vm=False, lgkm=True)] if s == 0 else []
            fill += dma_x(s // 4 + 2)
        ext(interleave(slots, fill, start=4, end=14))

    ext(stamp())
    e(WaitVM(("k", 0)))
    e(barrier())
    for s3 in range(3):
        ext(rd_k(0, s3))
    e(valu("v_add_u32", vT[0], sM0V, vL16))
    e(valu("v_add_u32", vT[0], VBASE + VSLOT, vT[0]))
    e(valu("v_add_u32", vAV2, VS[4], vAV))
    drain = []
    for t in range(4):
        for i in range(4):
            drain.append(ds_write_b128(vT[0], STG(t)[4 * i: 4 * i + 4], VS[t] + i * VSTR))
    def conv_q(qb, s):
        acc = Qacc(qb * 8 + s // 2)
        out = []
        for ee in range(8):
            out.append(valu("v_accvgpr_read_b32", vTMP[ee], acc[(s % 2) * 8 + ee]))
        for jj in range(4):
            out.append(valu("v_cvt_pk_bf16_f32", Qf(qb, s)[jj], vTMP[2 * jj], vTMP[2 * jj + 1]))
        return out

    QLA = 4 if T1OV else 16
    for s in range(QLA):
        for qb in range(2):
            ext(conv_q(qb, s))
            k = 2 * s + qb
            ext(drain[2 * k: 2 * k + 2])
    e(WaitAll(vm=False, lgkm=True))

    ext(stamp())
    for j in range(17):
        p = j % 2
        if LOOPX:
            if j == 6:
                e(salu("s_mov_b32 s99, 0"))
                e(label("L_loopx"))
            if j == 8:
                e(salu("s_add_u32 s99, s99, 1"))
                e(salu("s_cmp_lt_u32 s99, 3"))
                e(salu("s_cbranch_scc1 L_loopx"))
            if 8 <= j < 12:
                continue
        if j in (4, 12) and not FINE:
            ext(stamp())
        fillA = softmax2(j - 1) if j >= 1 else []
        if j < 16:
            slots = []
            for s in range(16):
                for qb in range(2):
                    sl = [mfma(Sb(p, qb), Kf(s), Qf(qb, s), Sb(p, qb) if s > 0 else 0)]
                    if qb == 0:
                        if s + 3 < 16:
                            sl += rd_k(j, s + 3)
                        elif j >= 1:
                            sl += rd_v(j - 1, s + 3 - 16)
                    if j == 0 and s + QLA < 16:
                        sl += conv_q(qb, s + QLA)
                    slots.append(sl)
            ext(interleave(slots, fillA, start=0, end=30))
        if j >= 2:
            ext(resc_check())
        waits = []
        if j + 1 < 16:
            waits.append(("k", j + 1))
        if j < 16:
            waits.append(("v", j))
        if j == 15:
            waits.append(("pfo", 1))
        grp = []
        if NV <= j + NV - 2 < 16:
            grp += dma_v(j + NV - 2)
        if j + NK < 16:
            grp += dma_k(j + NK)
        if j == WOWARM:
            grp += [valu("v_lshlrev_b32", vTMP[0], 2, vL16),
                    salu(f"s_mul_i32 s3, {sB}, 28672"), salu(f"s_lshl_b32 {sT2}, {sW}, 12"),
                    salu(f"s_add_u32 {sT2}, {sT2}, s3", defs=[sT2]),
                    pfload(vTMP[1], vTMP[0], SRD_WO, sT2, tag=("pfo", 0), n=1, flags=WRMF),
                    salu(f"s_add_u32 {sT2}, {sT2}, 16384", defs=[sT2]),
                    pfload(vTMP[1], vTMP[0], SRD_WO, sT2, tag=("pfo", 1), n=1, flags=WRMF)]
        if j == 13:
            grp += dma_wo(0)
        if j == 15:
            grp += dma_wo(1) + dma_wo(3)
        sync = [WaitVM(waits), barrier()] if j < 16 else []
        fillB = softmax1(j) if j < 16 else []
        if j == 16:
            for qb in range(2):
                fillB.append(valu("v_mov_b32", vU[qb], vL[qb]))
            for qb in range(2):
                fillB.append(Ins(f"v_permlane32_swap_b32 {vL[qb]}, {vU[qb]}", "perm",
                                 defs=[vL[qb], vU[qb]], uses=[vL[qb], vU[qb]]))
            for qb in range(2):
                fillB.append(valu("v_add_f32", vL[qb], vL[qb], vU[qb]))
            for qb in range(2):
                fillB.append(valu("v_rcp_f32", vL[qb], vL[qb]))
        if j >= 1:
            slots = []
            for f in range(16):
                dt, ks = divmod(f, 2)
                for qb in range(2):
                    sl = [mfma(Oacc(dt, qb), Vf(f), Pf(1 - p, qb, ks),
                               Oacc(dt, qb) if (j > 1 or ks > 0) else 0)]
                    if qb == 0:
                        if f + 3 < 16:
                            sl += rd_v(j - 1, f + 3)
                        elif j + 1 < 16:
                            sl += rd_k(j + 1, f + 3 - 16)
                        elif j == 15:
                            sl += rd_v(15, f + 3 - 16)
                    if f == 0 and qb == 1:
                        sl += sync
                    slots.append(sl)
            if j == 16:
                for k in range(NPRE):
                    cv = conv_o(k)
                    for q4 in range(4):
                        slots[7 + 4 * k + q4] += cv[5 * q4: 5 * q4 + 5]
                ext(interleave(slots, fillB, start=0, end=6))
            else:
                ext(interleave(slots, grp + fillB, start=2, end=32))
        else:
            ext(sync)
            ext(grp)
            for s3 in range(3):
                ext(rd_k(1, s3))
            ext(fillB)

    ext(stamp())
    e(WaitVM(("wo", 0)))
    e(barrier())
    ext(dma_wo(2))
    if NWO == 5:
        ext(dma_wo(4))
        for tt in range(2):
            e(valu("v_add_u32", vAWO[2][tt], 4 * WOSLOT, vAWO[0][tt]))
    for f in range(LA):
        ext(rd_wo(f))
    cvl = []
    for ksg in range(NPRE, 32):
        cvl += conv_o(ksg)

    ext(stamp())
    for sg in range(14):
        ps, hs = divmod(sg, 2)
        if sg in (2, 8) and not FINE:
            ext(stamp())
        slots = []
        for r in range(32):
            f = 32 * sg + r
            ks, tt = divmod(r, 2)
            ksg = 16 * hs + ks
            acc = Wacc(ps % 2, tt)
            sl = [mfma(acc, Wf(f), Of(ksg), acc if ksg > 0 else 0)]
            if f + LA < 448:
                sl += rd_wo(f + LA)
            if ps == 0 and f < 60:
                sl += cvl[f * len(cvl) // 60: (f + 1) * len(cvl) // 60]
            if r == 3 and sg + 1 < 14:
                sl += [WaitVM(("wo", sg + 1)), barrier()]
            slots.append(sl)
        fill = []
        if sg >= 1 and sg + NWO - 1 < 14:
            fill += dma_wo(sg + NWO - 1)
        if ps >= 1:
            sp_ = store_pass(ps - 1)
            for k in range(2):
                if not env("NOST", 0):
                    slots[10 + 12 * k] += sp_[2 * hs + k]
        ext(interleave(slots, fill, start=4, end=26))

    ext(stamp())
    for g_ in store_pass(6):
        ext(g_)
    if STAMP:
        e(WaitAll())
    ext(stamp())
    ext(stamp(True))
    ext(stamp_store())
    e(label("L_end"))
    e(raw("s_endpgm"))

    lines = finalize(st)

    sub = []
    s_ = sub.append
    s_(label("L_slow"))
    s_(nop(2))
    for qb in range(2):
        s_(valu("v_max_f32", vMR[qb], vMR[qb], vT[qb]))
        s_(valu("v_mul_f32", vU[qb], sC, vMR[qb]))
        s_(valu("v_sub_f32", vAL[qb], vM[qb], vU[qb]))
        s_(valu("v_exp_f32", vAL[qb], vAL[qb]))
        s_(valu("v_mov_b32", vM[qb], vU[qb]))
        s_(valu("v_add_f32", vTHR[qb], sTRAW, vMR[qb]))
        s_(valu("v_mul_f32", vL[qb], vL[qb], vAL[qb]))
    s_(salu(f"s_mov_b32 {sFLAG}, 1"))
    s_(nop(2))
    s_(raw(f"s_setpc_b64 {sRET}"))
    s_(label("L_resc"))
    s_(nop(16))
    tt = [vU[0], vU[1], vT[0], vT[1]]
    for dt in range(8):
        for qb in range(2):
            acc = Oacc(dt, qb)
            for r0 in range(0, 16, 4):
                for k in range(4):
                    s_(valu("v_accvgpr_read_b32", tt[k], acc[r0 + k]))
                for k in range(4):
                    s_(valu("v_mul_f32", tt[k], tt[k], vAL[qb]))
                for k in range(4):
                    s_(valu("v_accvgpr_write_b32", acc[r0 + k], tt[k]))
    s_(salu(f"s_mov_b32 {sFLAG}, 0"))
    s_(nop(4))
    s_(raw(f"s_setpc_b64 {sRET}"))
    lines += finalize(sub)
    return lines


NPC = env("NPC", 4)
K2_WGS = 896 // NPC


def gen_k2():
    st = []
    e = st.append
    per = 28 // NPC
    magic = (65536 + per - 1) // per
    assert all((i * magic) >> 16 == i // per for i in range(K2_WGS))
    e(salu(f"s_cmp_ge_u32 s2, {K2_WGS}"))
    e(salu("s_cbranch_scc1 L2_end"))
    e(salu("s_load_dwordx2 s[4:5], s[0:1], 80"))
    e(salu("s_load_dwordx2 s[6:7], s[0:1], 96"))
    e(salu(f"s_mul_i32 s10, s2, {magic}"))
    e(salu("s_lshr_b32 s10, s10, 16"))
    e(salu(f"s_mul_i32 s11, s10, {per}"))
    e(salu("s_sub_u32 s11, s2, s11"))
    e(salu(f"s_mul_i32 s11, s11, {NPC}"))
    lane, w, t1, t2 = V(1), V(2), V(3), V(4)
    e(valu("v_and_b32", lane, 63, V(0)))
    e(valu("v_lshrrev_b32", w, 6, V(0)))
    e(valu("v_mul_u32_u24", t1, 14 * 2048, w))
    e(valu("v_lshl_add_u32", t1, lane, 4, t1))
    e(salu("s_lshl_b32 s12, s11, 10"))
    e(valu("v_add_u32", t1, S(12), t1))
    e(salu("s_and_b32 s13, s10, 15"))
    e(salu("s_lshr_b32 s14, s10, 4"))
    e(salu("s_mul_i32 s13, s13, 229376"))
    e(salu("s_mul_i32 s14, s14, 896"))
    e(salu("s_add_u32 s13, s13, s14"))
    e(salu("s_lshl_b32 s14, s11, 5"))
    e(salu("s_add_u32 s13, s13, s14"))
    e(valu("v_and_b32", t2, 31, lane))
    e(valu("v_lshl_add_u32", t2, w, 5, t2))
    e(valu("v_mul_u32_u24", t2, 1792, t2))
    e(valu("v_lshrrev_b32", lane, 5, lane))
    e(valu("v_lshl_add_u32", t2, lane, 4, t2))
    e(valu("v_add_u32", t2, S(13), t2))
    e(raw("s_waitcnt lgkmcnt(0)", "wait"))
    e(salu("s_mov_b32 s16, s4"))
    e(salu("s_mov_b32 s17, s5"))
    e(salu(f"s_mov_b32 s18, {16 * 128 * 896 * 2}"))
    e(salu("s_mov_b32 s19, 0x00020000"))
    e(salu(f"s_mul_i32 s14, s10, {8 * PART}"))
    e(salu("s_add_u32 s20, s6, s14"))
    e(salu("s_addc_u32 s21, s7, 0"))
    e(salu(f"s_mov_b32 s22, {8 * PART}"))
    e(salu("s_mov_b32 s23, 0x00020000"))
    e(salu("s_mov_b32 s32, 0xffff0000"))
    so, sw = S(16, 4), S(20, 4)
    for g in range(8):
        e(salu(f"s_mov_b32 s{24 + g}, {g * PART}"))
    D0 = 32
    for pc in range(NPC):
        for g in range(8):
            e(bload(V(D0 + (pc * 8 + g) * 4, 4), t1, sw, S(24 + g), off=pc * 1024, flags=K2F))
    acc = V(8, 8)
    tmp = V(16, 8)
    for pc in range(NPC):
        for g in range(8):
            for jj in range(4):
                src = V(D0 + (pc * 8 + g) * 4 + jj)
                dlo, dhi = (acc[2 * jj], acc[2 * jj + 1]) if g == 0 else (tmp[2 * jj], tmp[2 * jj + 1])
                e(valu("v_lshlrev_b32", dlo, 16, src))
                e(valu("v_and_b32", dhi, S(32), src))
            if g:
                for k in range(8):
                    e(valu("v_add_f32", acc[k], acc[k], tmp[k]))
        res = V(24 + (pc % 2) * 4, 4)
        for jj in range(4):
            e(valu("v_cvt_pk_bf16_f32", res[jj], acc[2 * jj], acc[2 * jj + 1]))
        e(bstore(res, t2, so, 0, off=pc * 32))
    if STAMP == 3:
        e(salu("s_cmp_lg_u32 s2, 0"))
        e(salu("s_cbranch_scc1 L2_end"))
        e(salu("s_load_dwordx2 s[16:17], s[0:1], 88"))
        e(salu(f"s_add_u32 s20, s6, {64 << 20}"))
        e(salu("s_addc_u32 s21, s7, 0"))
        e(salu("s_mov_b32 s22, 64"))
        e(salu("s_mov_b32 s18, 64"))
        e(valu("v_lshlrev_b32", V(3), 2, V(0)))
        e(raw("s_waitcnt lgkmcnt(0)", "wait"))
        e(bload(V(5), V(3), sw, 0, n=1))
        e(bstore(V(5), V(3), so, 0, n=1))
    e(label("L2_end"))
    e(raw("s_endpgm"))
    return finalize(st)


HEADER = open(os.path.join(os.path.dirname(os.path.abspath(__file__)), "header.txt")).read()


def kd(name, vgpr, accum, sgpr):
    return f""".amdhsa_kernel {name}
  .amdhsa_next_free_vgpr {vgpr}
  .amdhsa_next_free_sgpr {sgpr}
  .amdhsa_accum_offset {accum}
  .amdhsa_group_segment_fixed_size 0
  .amdhsa_kernarg_size 104
  .amdhsa_user_sgpr_count 2
  .amdhsa_user_sgpr_kernarg_segment_ptr 1
  .amdhsa_system_sgpr_workgroup_id_x 1
.end_amdhsa_kernel
"""


def main():
    out = HEADER
    out += f"; @launch kernel={K1} grid=(256,1,1) block=(256,1,1) lds={LDS_BYTES}\n"
    out += f"; @launch kernel={K2} grid=({K2_WGS},1,1) block=(256,1,1) lds=0\n"
    out += '.amdgcn_target "amdgcn-amd-amdhsa--gfx950"\n.text\n'
    for name, gen in ((K1, gen_k1), (K2, gen_k2)):
        out += f".globl {name}\n.p2align 8\n.type {name},@function\n{name}:\n"
        out += "\n".join(gen()) + "\n"
    out += "L_text_end:\n"
    out += '.section .rodata,"a"\n.p2align 6\n'
    out += kd(K1, 512, 256, 102)
    out += ".p2align 6\n"
    out += kd(K2, 32 + 32 * NPC, 32 + 32 * NPC, 40)
    dst = sys.argv[1] if len(sys.argv) > 1 else f"cdna_kernels/{NAME}.s"
    open(dst, "w").write(out)
    print("wrote", dst, len(out), "bytes", out.count("\n"), "lines")


if __name__ == "__main__":
    main()
```

```python
import math
import struct
import sys
import os

sys.path.insert(0, os.path.dirname(os.path.abspath(__file__)))
from asmir import *

NAME = "concat_heads__gqa_block_cached__gqa_block_cached__near_ridge"
K1 = NAME + "_kernel"
K2 = "reduce_out_kernel"


def f32bits(x):
    return struct.unpack("<I", struct.pack("<f", x))[0]


def env(k, d):
    return type(d)(os.environ.get(k, d))


CSCALE = math.log2(math.e) / 16.0
TLOG2 = 8.0
TRAW = TLOG2 / CSCALE
KVF = env("KVF", "nt")
WQF = env("WQF", "")
XF = env("XF", "")
WOF = env("WOF", "")
STF = env("STF", "sc1")
FUSE = env("FUSE", 0)
K2F = env("K2F", "")
OUTF = env("OUTF", "")
STAMP = env("STAMP", 0)
WARM = env("WARM", 2)
SMOOTH = env("SMOOTH", 3)
MAP = env("MAP", 1)
KVAT = [int(x) for x in env("KVAT", "2,4,6,8,10,12,14,23,25").split(",")]
NG1 = env("NG1", 3)
NPRE = 6
T1OV = env("T1OV", 1)
LOOPX = env("LOOPX", 0)
WRMF = env("WRMF", "")
WOWARM = env("WOWARM", 12)
WARMAT = env("WARMAT", 1)
TLBT = env("TLBT", 0)
CODEW = env("CODEW", 2)
CW0 = env("CW0", 1)
FINE = env("FINE", 0)
STS = (0, 1, 2, 4, 8, 14) if FINE else ((0,) if FUSE else (0, 14))

SRD_X, SRD_K, SRD_V, SRD_WQ, SRD_WO, SRD_WS = (S(16, 4), S(20, 4), S(24, 4), S(28, 4), S(32, 4), S(36, 4))
sW, sG, sB, sBLK, sC = S(40), S(41), S(42), S(43), S(44)
sM0V, sOFFWQ, sM0K, sM0X, sOFFKV = S(45), S(46), S(47), S(48), S(49)
sT0, sT1 = S(50), S(51)
sMASK0, sMASK1 = S(52, 2), S(54, 2)
sFLAG = S(56)
sOFFX = S(57)
sRET = S(58, 2)
sM0WO = S(60)
sOFFWS = S(61)
sTRAW = S(62)
sOFFWO = S(63)
sT2 = S(100)


def Qf(qb, s):
    return V((qb * 16 + s) * 4, 4)


def Xf(s):
    return V(s * 4, 4)


def Of(ks):
    return V(ks * 4, 4)


def Sb(p, qb):
    return V(128 + p * 32 + qb * 16, 16)


def Kf(i):
    return V(192 + (i % 4) * 4, 4)


def Vf(i):
    return V(208 + (i % 4) * 4, 4)


def Wf(i):
    return V(192 + (i % 8) * 4, 4)


def Wacc(buf, tt):
    return V(128 + buf * 32 + tt * 16, 16)


vAK, vAV, vOFFKV, vL16 = V(224), V(225), V(226), V(227)
vM = [V(228), V(229)]
vTHR = [V(230), V(231)]
vL = [V(232), V(233)]
vAL = [V(234), V(235)]
vT = [V(236), V(237)]
vU = [V(238), V(239)]
vTMP = V(240, 8)
vMR = [V(248), V(249)]
vAWQ = V(250)
vOFFWO = V(251)
vAWO = [[V(252), V(253)], [V(254), V(255)], [V(228), V(229)]]
NWO = env("NWO", 4)
vXO = [V(112), V(113)]
vAX = V(114, 4)
vDUMMY, vPFWQ, vL128, vCW = V(118), V(119), V(120), V(121)
SRD_PF = S(96, 4)
sPFOFF = S(101)
PFN = env("PFN", 0)
PFF = env("PFF", "")
PFAT = env("PFAT", 16)
vAV2 = vAWQ


def STG(t):
    return V(128 + 16 * t, 16)

KSTR, VSTR = 1040, 1088
KSLOT, VSLOT = 16 * KSTR, 16 * VSTR
VBASE = 4 * KSLOT
NK, NV = 4, 5
KS = [i * KSLOT for i in range(4)]
VS = [i * VSLOT for i in range(NV)]
P1BASE = VBASE + VSLOT
NP1 = 4
XBASE = 2 * KSLOT
assert XBASE + 32768 <= 4 * KSLOT
WOSLOT = 32768
LDS_BYTES = 163840
PART = 4 * 14 * 2048
assert P1BASE + NP1 * VSLOT <= LDS_BYTES


def Oacc(dt, qb):
    return A((dt * 2 + qb) * 16, 16)


def Qacc(nt):
    return A(nt * 16, 16)


def barrier():
    return raw("s_barrier", "other", cost=4)


_nst = 0


def stamp(real=False):
    global _nst
    if not STAMP:
        return []
    i = _nst
    _nst += 1
    assert i < (12 if FUSE else 16)
    op = "s_memrealtime" if (real or STAMP >= 2) else "s_memtime"
    return [raw(f"{op} s[{64 + 2 * i}:{65 + 2 * i}]", "salu", cost=2)]


def stamp_store():
    if not STAMP:
        return []
    if STAMP == 3:
        out = [raw("s_waitcnt lgkmcnt(0)", "wait"),
               salu(f"s_cmp_lg_u32 {sW}, 0"), salu("s_cbranch_scc1 L_end"),
               salu(f"s_cmp_lg_u32 s2, 77"), salu("s_cbranch_scc1 L_end"),
               salu(f"s_add_u32 s4, s14, {64 << 20}"), salu("s_addc_u32 s5, s15, 0"),
               salu("s_mov_b32 s6, 256"), salu("s_mov_b32 s7, 0x00020000"),
               valu("v_mov_b32", V(2), 0)]
        for i in range(_nst):
            out.append(salu(f"s_sub_u32 s3, s{64 + 2 * i}, s64"))
            out.append(valu("v_mov_b32", V(4 + i), S(3)))
            out.append(bstore(V(4 + i), V(2), S(4, 4), 0, off=i * 4, n=1))
        return out
    out = [raw("s_waitcnt lgkmcnt(0)", "wait"),
           salu(f"s_cmp_lg_u32 {sW}, 0"), salu("s_cbranch_scc1 L_end"),
           salu("s_lshl_b32 s3, s2, 7"), salu(f"s_add_u32 s3, s3, {64 << 20}"),
           salu("s_add_u32 s4, s14, s3"), salu("s_addc_u32 s5, s15, 0"),
           salu("s_mov_b32 s6, 128"), salu("s_mov_b32 s7, 0x00020000"),
           valu("v_mov_b32", V(2), 0)]
    for i in range(_nst):
        out.append(valu("v_mov_b32", V(4 + 2 * i), S(64 + 2 * i)))
        out.append(valu("v_mov_b32", V(5 + 2 * i), S(65 + 2 * i)))
        out.append(bstore(V(4 + 2 * i, 2), V(2), S(4, 4), 0, off=i * 8, n=2))
    return out


def dma_wq(s):
    out = []
    for i in range(4):
        out.append(setm0(f"s_add_u32 m0, {sM0V}, {P1BASE + (s % NP1) * VSLOT + i * VSTR}"))
        out.append(salu(f"s_add_u32 {sT0}, {sOFFWQ}, {(16 * s + i) * 8192}", defs=[sT0]))
        out.append(dma(vL16, SRD_WQ, sT0, tag=("wq", s), flags=WQF))
    return out


def dma_x(pc):
    out = []
    for i in range(4):
        out.append(setm0(f"s_add_u32 m0, {sM0X}, {(pc % 2) * 16384 + i * 1024}"))
        out.append(salu(f"s_add_u32 {sT1}, {sOFFX}, {pc * 128 + i * 8 * 896}", defs=[sT1]))
        out.append(dma(vXO[i % 2], SRD_X, sT1, tag=("x", pc), flags=XF))
    return out


def dma_k(j):
    out = [salu(f"s_add_u32 {sT1}, {sOFFKV}, {j * 16384}", defs=[sT1])]
    for i in range(4):
        out.append(setm0(f"s_add_u32 m0, {sM0K}, {KS[j % NK] + i * (KSTR - 512)}"))
        out.append(dma(vOFFKV, SRD_K, sT1, off=i * 512, tag=("k", j), flags=KVF))
    return out


def dma_v(j):
    out = [salu(f"s_add_u32 {sT1}, {sOFFKV}, {j * 16384}", defs=[sT1])]
    for i in range(4):
        out.append(setm0(f"s_add_u32 m0, {sM0V}, {VBASE + VS[j % NV] + i * (VSTR - 512)}"))
        out.append(dma(vOFFKV, SRD_V, sT1, off=i * 512, tag=("v", j), flags=KVF))
    return out


def dma_wo(sg):
    ps, hs = divmod(sg, 2)
    out = []
    for i in range(8):
        out.append(setm0(f"s_add_u32 m0, {sM0WO}, {(sg % NWO) * WOSLOT + i * 1024}"))
        out.append(salu(f"s_add_u32 {sT1}, {sOFFWO}, {(256 * hs + 8 * i) * 896 + 128 * ps}", defs=[sT1]))
        out.append(dma(vOFFWO, SRD_WO, sT1, tag=("wo", sg), flags=WOF))
    return out


def pfload(*a, **kw):
    i = bload(*a, **kw)
    i.defs = set()
    return i


def rd_wq(f):
    s, nt = divmod(f, 16)
    d = Wf(f)
    off = (s % NP1) * VSLOT + nt * 64
    return [ds_read_tr(d[0:2], vAWQ, off), ds_read_tr(d[2:4], vAWQ, off + 4 * VSTR)]


def rd_x(s):
    pc, sp = divmod(s, 4)
    return [ds_read_b128(Xf(s), vAX[sp], (pc % 2) * 16384)]


def rd_k(j, s):
    return [ds_read_b128(Kf(s), vAK, KS[j % NK] + s * 32)]


def stage_ld(t, kind, j):
    out = [salu(f"s_add_u32 {sT1}, {sOFFKV}, {j * 16384}", defs=[sT1])]
    for i in range(4):
        out.append(bload(STG(t)[4 * i: 4 * i + 4], vOFFKV, SRD_K if kind == "k" else SRD_V, sT1,
                         off=i * 512, tag=("stg", t), flags=KVF))
    return out


def rd_v(j, f):
    dt, ks = divmod(f, 2)
    d = Vf(f)
    base, off = (vAV2, 0) if j % NV == 4 else (vAV, VS[j % NV])
    off += ks * 512 + dt * 64
    return [ds_read_tr(d[0:2], base, off), ds_read_tr(d[2:4], base, off + 4 * VSTR)]


def rd_wo(f):
    sg, r = divmod(f, 32)
    ks, tt = divmod(r, 2)
    slot = sg % NWO
    base = vAWO[slot // 2][tt]
    off = (slot % 2) * WOSLOT + ks * 2048
    d = Wf(f)
    return [ds_read_tr(d[0:2], base, off), ds_read_tr(d[2:4], base, off + 512)]


def sm_max(p):
    out = []
    for qb in range(2):
        s_ = Sb(p, qb)
        t = vT[qb]
        out.append(valu("v_max3_f32", t, s_[0], s_[1], s_[2]))
        for r in range(3, 15, 2):
            out.append(valu("v_max3_f32", t, t, s_[r], s_[r + 1]))
        out.append(valu("v_max_f32", t, t, s_[15]))
    for qb in range(2):
        out.append(valu("v_mov_b32", vU[qb], vT[qb]))
    for qb in range(2):
        out.append(Ins(f"v_permlane32_swap_b32 {vT[qb]}, {vU[qb]}", "perm", defs=[vT[qb], vU[qb]],
                       uses=[vT[qb], vU[qb]]))
    for qb in range(2):
        out.append(valu("v_max_f32", vT[qb], vT[qb], vU[qb]))
    return out


_lbl = 0


def sm_check(first):
    global _lbl
    out = []
    if first:
        for qb in range(2):
            out.append(valu("v_mov_b32", vMR[qb], vT[qb]))
            out.append(valu("v_mul_f32", vM[qb], sC, vT[qb]))
            out.append(valu("v_add_f32", vTHR[qb], sTRAW, vT[qb]))
            out.append(valu("v_mov_b32", vL[qb], 0))
        return out
    out.append(valu("v_cmp_gt_f32", sMASK0, vT[0], vTHR[0]))
    out.append(valu("v_cmp_gt_f32", sMASK1, vT[1], vTHR[1]))
    _lbl += 1
    out.append(Group([
        salu(f"s_or_b64 {sMASK0}, {sMASK0}, {sMASK1}", defs=[sMASK0], uses=[sMASK0, sMASK1]),
        salu(f"s_cbranch_scc0 L_noslow{_lbl}"),
        Ins(f"s_call_b64 {sRET}, L_slow", "salu", cost=2,
            defs=vM + vTHR + vL + vAL + vMR + vU, uses=vM + vTHR + vL + vT + vMR),
        label(f"L_noslow{_lbl}")]))
    return out


def sm_exp(p, qb, grp):
    s_ = Sb(p, qb)
    out = []
    rs = range(4 * grp, 4 * grp + 4)
    for r in rs:
        out.append(valu("v_fma_f32", s_[r], s_[r], sC, ("-", vM[qb])))
    for r in rs:
        out.append(valu("v_exp_f32", s_[r], s_[r]))
    for r in rs:
        out.append(valu("v_add_f32", vL[qb], vL[qb], s_[r]))
    ks, g2 = divmod(grp, 2)
    for jj in range(2):
        j = 2 * g2 + jj
        out.append(valu("v_cvt_pk_bf16_f32", s_[8 * ks + j], s_[8 * ks + 2 * j], s_[8 * ks + 2 * j + 1]))
    return out


def Pf(p, qb, ks):
    return Sb(p, qb)[8 * ks: 8 * ks + 4]


def resc_check():
    global _lbl
    _lbl += 1
    return [
        salu(f"s_cmp_eq_u32 {sFLAG}, 0", uses=[sFLAG]),
        salu(f"s_cbranch_scc1 L_nores{_lbl}"),
        Ins(f"s_call_b64 {sRET}, L_resc", "salu", cost=2),
        label(f"L_nores{_lbl}"),
    ]


def softmax1(j):
    p = j % 2
    if j == 0:
        return []
    out = sm_max(p) + sm_check(False)
    for gi in range(8 if j == 15 else NG1):
        out += sm_exp(p, gi // 4, gi % 4)
    return out


def softmax2(j):
    p = j % 2
    if j == 15:
        return []
    out = []
    if j == 0:
        out = sm_max(p) + sm_check(True)
    for gi in range(0 if j == 0 else NG1, 8):
        out += sm_exp(p, gi // 4, gi % 4)
    return out


def conv_o(ksg):
    qb, s = divmod(ksg, 16)
    dt, hf = divmod(s, 2)
    acc = Oacc(dt, qb)
    out = []
    for ee in range(8):
        out.append(valu("v_accvgpr_read_b32", vTMP[ee], acc[hf * 8 + ee]))
    for ee in range(8):
        out.append(valu("v_mul_f32", vTMP[ee], vTMP[ee], vL[qb]))
    for jj in range(4):
        out.append(valu("v_cvt_pk_bf16_f32", Of(ksg)[jj], vTMP[2 * jj], vTMP[2 * jj + 1]))
    return out


def store_pass(ps):
    out = []
    for tt in range(2):
        acc = Wacc(ps % 2, tt)
        for sp in range(2):
            g = []
            for jj in range(4):
                g.append(valu("v_cvt_pk_bf16_f32", acc[8 * sp + jj], acc[8 * sp + 2 * jj], acc[8 * sp + 2 * jj + 1]))
            g.append(salu(f"s_add_u32 {sT0}, {sOFFWS}, {ps * 4096}", defs=[sT0]))
            g.append(bstore(acc[8 * sp: 8 * sp + 4], vL16, SRD_WS, sT0, off=(2 * tt + sp) * 1024, flags=STF))
            out.append(g)
    return out


SRD_DBG = S(64, 4) if not STAMP else S(88, 4)
vCNT, vONE = V(230), V(231)


def fused_setup():
    d = SRD_DBG.b
    return [salu(f"s_mov_b32 s{d}, s94"), salu(f"s_mov_b32 s{d + 1}, s95"),
            salu(f"s_mov_b32 s{d + 2}, 256"), salu(f"s_mov_b32 s{d + 3}, 0x00020000"),
            salu(f"s_lshl_b32 s3, {sBLK}, 4"), salu(f"s_add_u32 s3, s3, {sB}"),
            salu("s_lshl_b32 s3, s3, 3"), valu("v_mov_b32", vCNT, S(3))]


def fused_signal(k):
    return [Group([
        valu("v_mov_b32", vONE, 1 << (8 * k)),
        salu(f"s_cmp_lg_u32 {sW}, 0"),
        salu(f"s_cbranch_scc1 L_nosig{k}"),
        salu("s_mov_b64 exec, 1"),
        raw(f"buffer_atomic_add {vONE}, {vCNT}, {SRD_DBG}, 0 offen sc1", "other"),
        salu("s_mov_b64 exec, -1"),
        label(f"L_nosig{k}")])]


def fused_poll(k):
    return [
        salu(f"s_cmp_lg_u32 {sW}, 0"),
        salu(f"s_cbranch_scc1 L_pdone{k}"),
        salu("s_mov_b32 s34, 0"),
        label(f"L_poll{k}"),
        raw(f"buffer_load_dword {vTMP[4]}, {vCNT}, {SRD_DBG}, 0 offen sc1", "other"),
        raw("s_waitcnt vmcnt(0)", "wait"),
        raw(f"v_readfirstlane_b32 s35, {vTMP[4]}", "other"),
        nop(4),
        salu(f"s_bfe_u32 s35, s35, {0x80000 + 8 * k:#x}"),
        salu("s_cmp_ge_u32 s35, 8"),
        salu(f"s_cbranch_scc1 L_pdone{k}"),
        raw("s_sleep 1", "other"),
        salu("s_add_u32 s34, s34, 1"),
        salu("s_cmp_lt_u32 s34, 0x40000"),
        salu(f"s_cbranch_scc1 L_poll{k}"),
        label(f"L_pdone{k}"),
        barrier()]


def fused_tail():
    st = []
    e = st.append
    ext = st.extend
    SO, SG = S(4, 4), S(8, 4)
    t1, t2, t3 = vTMP[0], vTMP[1], vTMP[2]
    tB1, tB2 = vTMP[5], vTMP[6]
    e(salu("s_mov_b32 s4, s92"))
    e(salu("s_mov_b32 s5, s93"))
    e(salu(f"s_mov_b32 s6, {16 * 128 * 896 * 2}"))
    e(salu("s_mov_b32 s7, 0x00020000"))
    e(salu(f"s_lshl_b32 s20, {sBLK}, 4"))
    e(salu(f"s_add_u32 s20, s20, {sB}"))
    e(salu(f"s_mul_i32 s3, s20, {8 * PART}"))
    e(salu("s_add_u32 s8, s14, s3"))
    e(salu("s_addc_u32 s9, s15, 0"))
    e(salu(f"s_mov_b32 s10, {8 * PART}"))
    e(salu("s_mov_b32 s11, 0x00020000"))
    e(salu(f"s_and_b32 s21, {sG}, 1"))
    e(salu("s_lshl_b32 s21, s21, 2"))
    e(salu(f"s_add_u32 s21, s21, {sW}"))
    e(salu("s_mul_i32 s22, s21, 3"))
    e(salu("s_lshr_b32 s22, s22, 1"))
    e(salu("s_add_u32 s22, s22, 16"))
    e(salu("s_lshl_b32 s21, s21, 1"))
    e(salu(f"s_lshr_b32 s23, {sG}, 1"))
    e(salu("s_mul_i32 s3, s23, 28"))
    e(salu("s_add_u32 s16, s3, s21"))
    e(salu("s_lshl_b32 s16, s16, 10"))
    e(salu("s_add_u32 s17, s3, s22"))
    e(salu("s_lshl_b32 s17, s17, 10"))
    e(valu("v_add_u32", t1, S(16), vL16))
    e(valu("v_add_u32", tB1, S(17), vL16))
    e(salu(f"s_lshl_b32 s16, {sB}, 7"))
    e(salu("s_lshl_b32 s3, s23, 5"))
    e(salu("s_add_u32 s16, s16, s3"))
    e(salu("s_mul_i32 s16, s16, 1792"))
    e(salu(f"s_mul_i32 s3, {sBLK}, 896"))
    e(salu("s_add_u32 s16, s16, s3"))
    e(salu("s_lshl_b32 s21, s21, 5"))
    e(salu("s_lshl_b32 s22, s22, 5"))
    e(salu("s_add_u32 s17, s16, s22"))
    e(salu("s_add_u32 s16, s16, s21"))
    e(valu("v_lshrrev_b32", t3, 4, vL16))
    e(valu("v_and_b32", t2, 31, t3))
    e(valu("v_mul_u32_u24", t2, 1792, t2))
    e(valu("v_lshrrev_b32", t3, 5, t3))
    e(valu("v_lshl_add_u32", t2, t3, 4, t2))
    e(valu("v_add_u32", tB2, S(17), t2))
    e(valu("v_add_u32", t2, S(16), t2))
    for g in range(8):
        e(salu(f"s_mov_b32 s{24 + g}, {g * PART}"))
    e(salu("s_mov_b32 s32, 0xffff0000"))
    acc = V(128, 8)
    tmp = V(136, 8)

    def loads(k, vin):
        for pc in range(2):
            for g in range(8):
                e(bload(V(k * 64 + (pc * 8 + g) * 4, 4), vin, SG, S(24 + g), off=pc * 1024, flags="sc1"))

    def reduce(k, vout):
        for pc in range(2):
            for g in range(8):
                for jj in range(4):
                    src = V(k * 64 + (pc * 8 + g) * 4 + jj)
                    dlo, dhi = (acc[2 * jj], acc[2 * jj + 1]) if g == 0 else (tmp[2 * jj], tmp[2 * jj + 1])
                    e(valu("v_lshlrev_b32", dlo, 16, src))
                    e(valu("v_and_b32", dhi, S(32), src))
                if g:
                    for kk in range(8):
                        e(valu("v_add_f32", acc[kk], acc[kk], tmp[kk]))
            res = V(144 + (2 * k + pc) * 4, 4)
            for jj in range(4):
                e(valu("v_cvt_pk_bf16_f32", res[jj], acc[2 * jj], acc[2 * jj + 1]))
            e(bstore(res, vout, SO, 0, off=pc * 32, flags=OUTF))

    p0 = fused_poll(0)
    ext(p0[:-1])
    e(WaitAll(vm=True, lgkm=True))
    e(p0[-1])
    ext(stamp())
    ext(fused_signal(1))
    e(salu(f"s_cmp_eq_u32 {sW}, 0"))
    e(salu("s_cbranch_scc1 L_skipA"))
    n0 = len(st)
    loads(0, t1)
    for it in st[n0:]:
        it.kind, it.defs = "other", set()
    e(label("L_skipA"))
    ext(fused_poll(1))
    ext(stamp())
    e(salu(f"s_cmp_lg_u32 {sW}, 0"))
    e(salu("s_cbranch_scc1 L_skipA2"))
    loads(0, t1)
    e(label("L_skipA2"))
    loads(1, tB1)
    reduce(0, t2)
    reduce(1, tB2)
    ext(stamp())
    return st


def gen_k1():
    st = []
    e = st.append
    ext = st.extend
    ext(stamp(True))
    ext(stamp())
    e(salu("s_cmp_ge_u32 s2, 256"))
    e(salu("s_cbranch_scc1 L_end"))
    if MAP == 0:
        e(salu(f"s_and_b32 {sG}, s2, 7"))
        e(salu(f"s_lshr_b32 s3, s2, 6"))
        e(salu(f"s_xor_b32 {sG}, {sG}, s3"))
        e(salu(f"s_lshr_b32 {sB}, s2, 3"))
        e(salu(f"s_and_b32 {sB}, {sB}, 15"))
        e(salu(f"s_lshr_b32 {sBLK}, s2, 7"))
    else:
        e(salu(f"s_bfe_u32 {sBLK}, s2, 0x10002"))
        e(salu(f"s_and_b32 {sG}, s2, 3"))
        e(salu(f"s_lshl_b32 {sG}, {sG}, 1"))
        e(salu(f"s_bfe_u32 s3, s2, 0x10003"))
        e(salu(f"s_or_b32 {sG}, {sG}, s3"))
        e(salu(f"s_lshr_b32 {sB}, s2, 4"))
    e(salu(f"s_load_dwordx2 s[14:15], s[0:1], 96"))
    if FUSE:
        e(salu(f"s_load_dwordx4 s[92:95], s[0:1], 80"))
    e(salu(f"s_mul_i32 s3, {sBLK}, 40"))
    e(salu("s_add_u32 s0, s0, s3"))
    e(salu("s_addc_u32 s1, s1, 0"))
    e(salu("s_load_dwordx8 s[4:11], s[0:1], 0"))
    e(salu("s_load_dwordx2 s[12:13], s[0:1], 32"))
    lane, tA, tB, tC, tD, tE = (vTMP[i] for i in range(6))
    e(valu("v_and_b32", lane, 63, V(0)))
    e(valu("v_lshrrev_b32", tA, 6, V(0)))
    e(Ins(f"v_readfirstlane_b32 {sW}, {tA}", "valu", defs=[sW], uses=[tA]))
    e(valu("v_lshlrev_b32", vL16, 4, lane))
    cw = []
    if CODEW:
        e(raw("s_getpc_b64 s[96:97]", "salu"))
        e(label("L_pc"))
        e(valu("v_lshlrev_b32", vCW, 6, V(0)))
        e(salu("s_mov_b32 s98, L_text_end-L_pc-4"))
        if CODEW == 2:
            e(salu("s_bfe_u32 s99, s2, 0x30003"))
            e(salu("s_mul_i32 s99, s99, 11264"))
            e(valu("v_add_u32", vCW, S(99), vCW))
            e(valu("v_min_u32", vCW, S(98), vCW))
            cw = [[Ins(f"global_load_dword {vDUMMY}, {vCW}, s[96:97]", "vmem", uses=[vCW], tag=("cw", 0), cost=8)]]
            cw += [[] for _ in range(5)]
        else:
            for i in range(6):
                cw.append([Ins(f"global_load_dword {vDUMMY}, {vCW}, s[96:97]", "vmem", uses=[vCW], tag=("cw", i), cost=8),
                           valu("v_add_u32", vCW, 16384, vCW), valu("v_min_u32", vCW, S(98), vCW)])
        for i in range(CW0):
            ext(cw[i])
    e(valu("v_lshrrev_b32", tA, 3, lane))
    e(valu("v_mul_u32_u24", tA, 896, tA))
    e(valu("v_and_b32", tB, 7, lane))
    e(valu("v_lshrrev_b32", tC, 4, lane))
    e(valu("v_xor_b32", tB, tB, tC))
    e(valu("v_lshl_add_u32", vXO[0], tB, 4, tA))
    e(valu("v_xor_b32", vXO[1], 64, vXO[0]))
    e(salu(f"s_mul_i32 {sM0V}, {sW}, {4 * VSTR}", uses=[sW]))
    e(salu(f"s_lshl_b32 {sOFFWQ}, {sW}, 15"))
    e(salu(f"s_lshl_b32 {sM0X}, {sW}, 12"))
    e(salu(f"s_add_u32 {sM0X}, {sM0X}, {XBASE}"))
    e(salu(f"s_mul_i32 {sOFFX}, {sW}, {32 * 896}"))
    e(raw("s_waitcnt lgkmcnt(0)", "wait"))

    def srd(d, ptr_lo, off_expr_reg, size):
        e(salu(f"s_add_u32 s{d.b}, s{ptr_lo}, {off_expr_reg}"))
        e(salu(f"s_addc_u32 s{d.b + 1}, s{ptr_lo + 1}, 0"))
        e(salu(f"s_mov_b32 s{d.b + 2}, {size}"))
        e(salu(f"s_mov_b32 s{d.b + 3}, 0x00020000"))

    e(salu(f"s_lshl_b32 s3, {sG}, 10"))
    srd(SRD_WQ, 10, "s3", 447 * 8192 + 1024)
    e(salu(f"s_mul_i32 s3, {sB}, 114688"))
    srd(SRD_X, 4, "s3", 114688)
    if TLBT:
        e(valu("v_lshlrev_b32", vPFWQ, 13, V(0)))
        e(pfload(vDUMMY, vPFWQ, SRD_WQ, 0, tag=("tl", 0), n=1))
        e(valu("v_lshlrev_b32", vCW, 12, lane))
        e(pfload(vDUMMY, vCW, SRD_X, 0, tag=("tl", 1), n=1))
        if TLBT == 2:
            e(salu(f"s_mov_b32 {sT2}, {256 * 8192}"))
            e(pfload(vDUMMY, vPFWQ, SRD_WQ, sT2, tag=("tl", 2), n=1))
    ext(dma_wq(0))
    ext(dma_x(0))
    ext(dma_wq(1))
    ext(dma_x(1))
    ext(dma_wq(2))
    e(salu(f"s_lshl_b32 s3, {sB}, 3"))
    e(salu(f"s_add_u32 s3, s3, {sG}"))
    e(salu(f"s_lshl_b32 s3, s3, 18"))
    srd(SRD_K, 6, "s3", 262144)
    srd(SRD_V, 8, "s3", 262144)
    e(salu(f"s_mul_i32 s3, {sG}, 458752"))
    srd(SRD_WO, 12, "s3", 458752)
    e(salu(f"s_lshl_b32 s3, {sBLK}, 4"))
    e(salu(f"s_add_u32 s3, s3, {sB}"))
    e(salu(f"s_lshl_b32 s3, s3, 3"))
    e(salu(f"s_add_u32 s3, s3, {sG}"))
    e(salu(f"s_mul_i32 s3, s3, {PART}"))
    srd(SRD_WS, 14, "s3", PART)
    e(salu(f"s_mov_b32 {sC}, {f32bits(CSCALE):#x}"))
    e(salu(f"s_mov_b32 {sTRAW}, {f32bits(TRAW):#x}"))
    e(salu(f"s_mov_b32 {sFLAG}, 0"))
    e(salu(f"s_mul_i32 {sM0K}, {sW}, {4 * KSTR}"))
    e(salu(f"s_lshl_b32 {sOFFKV}, {sW}, 11"))
    e(salu(f"s_lshl_b32 {sM0WO}, {sW}, 13"))
    e(salu(f"s_mul_i32 {sOFFWO}, {sW}, {64 * 896}"))
    e(salu(f"s_mul_i32 {sOFFWS}, {sW}, {14 * 2048}"))
    e(valu("v_lshrrev_b32", tA, 5, lane))
    e(valu("v_and_b32", tB, 31, lane))
    e(valu("v_lshlrev_b32", tC, 13, tA))
    e(valu("v_lshl_add_u32", vOFFKV, tB, 4, tC))
    e(valu("v_bfe_u32", tC, tB, 1, 3))
    e(valu("v_xor_b32", tC, tC, tA))
    e(valu("v_lshlrev_b32", tC, 4, tC))
    e(valu("v_lshl_add_u32", tC, tB, 7, tC))
    e(valu("v_add_u32", vAX[0], sM0X, tC))
    for sp in range(1, 4):
        e(valu("v_xor_b32", vAX[sp], sp << 5, vAX[0]))
    e(valu("v_and_b32", tC, 3, tB))
    e(valu("v_and_b32", tD, 4, tB))
    e(valu("v_lshl_add_u32", tC, tD, 1, tC))
    e(valu("v_and_b32", tD, 8, tB))
    e(valu("v_lshrrev_b32", tD, 1, tD))
    e(valu("v_add_u32", tC, tC, tD))
    e(valu("v_mul_u32_u24", vAK, KSTR, tC))
    e(valu("v_lshrrev_b32", tD, 4, tB))
    e(valu("v_lshl_add_u32", vAK, tD, 9, vAK))
    e(valu("v_lshl_add_u32", vAK, tA, 4, vAK))
    e(valu("v_bfe_u32", tE, lane, 2, 2))
    e(valu("v_lshl_add_u32", tC, tA, 3, tE))
    e(valu("v_and_b32", tD, 1, lane))
    e(valu("v_lshlrev_b32", tD, 4, tD))
    e(valu("v_and_b32", tB, 2, lane))
    e(valu("v_lshl_add_u32", tD, tB, 2, tD))
    e(valu("v_bfe_u32", tB, lane, 4, 1))
    e(valu("v_lshl_add_u32", tD, tB, 5, tD))
    e(valu("v_mul_u32_u24", vAV, VSTR, tC))
    e(valu("v_add_u32", vAV, vAV, tD))
    e(valu("v_add_u32", vAWQ, P1BASE, vAV))
    e(valu("v_add_u32", vAV, VBASE, vAV))
    e(valu("v_lshl_add_u32", tC, tC, 7, tD))
    e(valu("v_lshrrev_b32", tE, 1, tE))
    e(valu("v_lshlrev_b32", tE, 6, tE))
    e(valu("v_add_u32", vAWO[0][0], tC, tE))
    e(valu("v_xor_b32", tE, 64, tE))
    e(valu("v_add_u32", vAWO[0][1], tC, tE))
    e(valu("v_add_u32", vAWO[1][0], 2 * WOSLOT, vAWO[0][0]))
    e(valu("v_add_u32", vAWO[1][1], 2 * WOSLOT, vAWO[0][1]))
    e(valu("v_lshrrev_b32", tC, 3, lane))
    e(valu("v_mul_u32_u24", tC, 896, tC))
    e(valu("v_and_b32", tD, 7, lane))
    e(valu("v_lshlrev_b32", tB, 2, tB))
    e(valu("v_xor_b32", tD, tD, tB))
    e(valu("v_lshl_add_u32", vOFFWO, tD, 4, tC))
    if PFN:
        e(valu("v_lshlrev_b32", vL128, 7, lane))
        e(salu(f"s_cmp_lt_u32 {sW}, 2"))
        e(salu(f"s_cselect_b32 s96, s20, s24"))
        e(salu(f"s_cselect_b32 s97, s21, s25"))
        e(salu(f"s_mov_b32 s98, 262144"))
        e(salu(f"s_mov_b32 s99, 0x00020000"))
        e(salu(f"s_cselect_b32 {sPFOFF}, 5, 4"))
        e(salu(f"s_lshl_b32 {sPFOFF}, {sPFOFF}, 14"))
        e(salu(f"s_and_b32 s3, {sW}, 1"))
        e(salu(f"s_lshl_b32 s3, s3, 13"))
        e(salu(f"s_add_u32 {sPFOFF}, {sPFOFF}, s3"))
    if WARM:
        e(valu("v_lshrrev_b32", tA, 3, lane))
        e(valu("v_and_b32", tB, 7, lane))
        e(valu("v_lshlrev_b32", tA, 13, tA))
        e(valu("v_lshl_add_u32", vPFWQ, tB, 7, tA))
        if MAP == 0:
            e(salu(f"s_and_b32 s3, {sB}, 7"))
            e(salu(f"s_mul_i32 s3, s3, {56 * 8192}"))
            e(salu(f"s_lshl_b32 {sT2}, {sW}, 16"))
            e(salu(f"s_add_u32 {sT2}, {sT2}, s3"))
            e(pfload(vDUMMY, vPFWQ, SRD_WQ, sT2, tag=("pfw", 0), n=1))
            e(salu(f"s_add_u32 {sT2}, {sT2}, {4 << 16}"))
            e(pfload(vDUMMY, vPFWQ, SRD_WQ, sT2, tag=("pfw", 1), n=1))
        else:
            e(salu(f"s_mul_i32 s3, {sB}, {28 * 8192}"))
            e(salu(f"s_lshl_b32 {sT2}, {sW}, 16"))
            e(salu(f"s_add_u32 {sT2}, {sT2}, s3"))
            warm = [pfload(vDUMMY, vPFWQ, SRD_WQ, sT2, tag=("pfw", 0), n=1, flags=WRMF)]
            if WARM == 2:
                warm.append(pfload(vDUMMY, vPFWQ, SRD_WQ, sT2, off=64, tag=("pfw", 1), n=1, flags=WRMF))
            if WARMAT < 0:
                ext(warm)
    e(WaitVM(("x", 0)))
    for s in range(4):
        ext(rd_x(s))
    e(barrier())

    LA = 6
    for f in range(LA):
        ext(rd_wq(f))
    pre = [dma_k(0), dma_k(1), dma_v(0), stage_ld(0, "v", 1), stage_ld(1, "v", 2), stage_ld(2, "v", 3),
           stage_ld(3, "v", 4), dma_k(2), dma_k(3)]
    kv_at = {}
    if SMOOTH:
        units = []
        for g_ in pre:
            head, rest = g_[0], g_[1:]
            per = len(rest) // 4
            for i in range(4):
                units.append([head] + rest[i * per: (i + 1) * per])
        lo, hi = SMOOTH, 23
        for u in range(28):
            kv_at.setdefault(lo + u * (hi - lo) // 28, []).extend(units[u])
        for u in range(8):
            kv_at.setdefault(23 + u // 2, []).extend(units[28 + u])
    else:
        for st_, g_ in zip(KVAT, pre):
            kv_at.setdefault(st_, []).extend(g_)
    for s in range(28):
        if STAMP and s in STS:
            ext(stamp())
        slots = []
        for nt in range(16):
            f = 16 * s + nt
            sl = [mfma(Qacc(nt), Wf(f), Xf(s), Qacc(nt) if s > 0 else 0)]
            if f + LA < 448:
                sl += rd_wq(f + LA)
            if nt == 3 and s + 1 < 28:
                if s == 23:
                    sl += [WaitAll(vm=False, lgkm=True)]
                sl += [WaitVM(("wq", s + 1)), barrier()]
            slots.append(sl)
        fill = []
        if s + NP1 - 1 < 28:
            fill += dma_wq(s + NP1 - 1)
        if WARM and s == WARMAT:
            fill += warm
        if s in kv_at:
            fill += kv_at[s]
        if CODEW and s % 2 == 1 and CW0 + (s - 1) // 2 < 6:
            fill += cw[CW0 + (s - 1) // 2]
        if PFN and s >= PFAT and (s - PFAT) % 2 == 0 and (s - PFAT) // 2 < PFN:
            fill += [salu(f"s_add_u32 {sT2}, {sPFOFF}, {((s - PFAT) // 2) * 16384}", defs=[sT2]),
                     pfload(vDUMMY, vL128, SRD_PF, sT2, tag=("pf", s), n=1, flags=PFF)]
        if s % 4 == 1 and (s + 3) // 4 < 7:
            pc = (s + 3) // 4
            fill += [WaitVM(("x", pc))]
            for s2 in range(4):
                fill += rd_x(4 * pc + s2)
        if s % 4 == 0 and s // 4 + 2 < 7:
            fill += [WaitAll(vm=False, lgkm=True)] if s == 0 else []
            fill += dma_x(s // 4 + 2)
        ext(interleave(slots, fill, start=4, end=14))

    ext(stamp())
    e(WaitVM(("k", 0)))
    e(barrier())
    for s3 in range(3):
        ext(rd_k(0, s3))
    e(valu("v_add_u32", vT[0], sM0V, vL16))
    e(valu("v_add_u32", vT[0], VBASE + VSLOT, vT[0]))
    e(valu("v_add_u32", vAV2, VS[4], vAV))
    drain = []
    for t in range(4):
        for i in range(4):
            drain.append(ds_write_b128(vT[0], STG(t)[4 * i: 4 * i + 4], VS[t] + i * VSTR))
    def conv_q(qb, s):
        acc = Qacc(qb * 8 + s // 2)
        out = []
        for ee in range(8):
            out.append(valu("v_accvgpr_read_b32", vTMP[ee], acc[(s % 2) * 8 + ee]))
        for jj in range(4):
            out.append(valu("v_cvt_pk_bf16_f32", Qf(qb, s)[jj], vTMP[2 * jj], vTMP[2 * jj + 1]))
        return out

    QLA = 4 if T1OV else 16
    for s in range(QLA):
        for qb in range(2):
            ext(conv_q(qb, s))
            k = 2 * s + qb
            ext(drain[2 * k: 2 * k + 2])
    e(WaitAll(vm=False, lgkm=True))

    ext(stamp())
    for j in range(17):
        p = j % 2
        if LOOPX:
            if j == 6:
                e(salu("s_mov_b32 s99, 0"))
                e(label("L_loopx"))
            if j == 8:
                e(salu("s_add_u32 s99, s99, 1"))
                e(salu("s_cmp_lt_u32 s99, 3"))
                e(salu("s_cbranch_scc1 L_loopx"))
            if 8 <= j < 12:
                continue
        if j in (4, 12) and not FINE and not FUSE:
            ext(stamp())
        fillA = softmax2(j - 1) if j >= 1 else []
        if j < 16:
            slots = []
            for s in range(16):
                for qb in range(2):
                    sl = [mfma(Sb(p, qb), Kf(s), Qf(qb, s), Sb(p, qb) if s > 0 else 0)]
                    if qb == 0:
                        if s + 3 < 16:
                            sl += rd_k(j, s + 3)
                        elif j >= 1:
                            sl += rd_v(j - 1, s + 3 - 16)
                    if j == 0 and s + QLA < 16:
                        sl += conv_q(qb, s + QLA)
                    slots.append(sl)
            ext(interleave(slots, fillA, start=0, end=30))
        if j >= 2:
            ext(resc_check())
        waits = []
        if j + 1 < 16:
            waits.append(("k", j + 1))
        if j < 16:
            waits.append(("v", j))
        if j == 15:
            waits.append(("pfo", 1))
        grp = []
        if NV <= j + NV - 2 < 16:
            grp += dma_v(j + NV - 2)
        if j + NK < 16:
            grp += dma_k(j + NK)
        if j == WOWARM:
            grp += [valu("v_lshlrev_b32", vTMP[0], 2, vL16),
                    salu(f"s_mul_i32 s3, {sB}, 28672"), salu(f"s_lshl_b32 {sT2}, {sW}, 12"),
                    salu(f"s_add_u32 {sT2}, {sT2}, s3", defs=[sT2]),
                    pfload(vTMP[1], vTMP[0], SRD_WO, sT2, tag=("pfo", 0), n=1, flags=WRMF),
                    salu(f"s_add_u32 {sT2}, {sT2}, 16384", defs=[sT2]),
                    pfload(vTMP[1], vTMP[0], SRD_WO, sT2, tag=("pfo", 1), n=1, flags=WRMF)]
        if j == 13:
            grp += dma_wo(0)
        if j == 15:
            grp += dma_wo(1) + dma_wo(3)
        sync = [WaitVM(waits), barrier()] if j < 16 else []
        fillB = softmax1(j) if j < 16 else []
        if j == 16:
            for qb in range(2):
                fillB.append(valu("v_mov_b32", vU[qb], vL[qb]))
            for qb in range(2):
                fillB.append(Ins(f"v_permlane32_swap_b32 {vL[qb]}, {vU[qb]}", "perm",
                                 defs=[vL[qb], vU[qb]], uses=[vL[qb], vU[qb]]))
            for qb in range(2):
                fillB.append(valu("v_add_f32", vL[qb], vL[qb], vU[qb]))
            for qb in range(2):
                fillB.append(valu("v_rcp_f32", vL[qb], vL[qb]))
        if j >= 1:
            slots = []
            for f in range(16):
                dt, ks = divmod(f, 2)
                for qb in range(2):
                    sl = [mfma(Oacc(dt, qb), Vf(f), Pf(1 - p, qb, ks),
                               Oacc(dt, qb) if (j > 1 or ks > 0) else 0)]
                    if qb == 0:
                        if f + 3 < 16:
                            sl += rd_v(j - 1, f + 3)
                        elif j + 1 < 16:
                            sl += rd_k(j + 1, f + 3 - 16)
                        elif j == 15:
                            sl += rd_v(15, f + 3 - 16)
                    if f == 0 and qb == 1:
                        sl += sync
                    slots.append(sl)
            if j == 16:
                for k in range(NPRE):
                    cv = conv_o(k)
                    for q4 in range(4):
                        slots[7 + 4 * k + q4] += cv[5 * q4: 5 * q4 + 5]
                ext(interleave(slots, fillB, start=0, end=6))
            else:
                ext(interleave(slots, grp + fillB, start=2, end=32))
        else:
            ext(sync)
            ext(grp)
            for s3 in range(3):
                ext(rd_k(1, s3))
            ext(fillB)

    if not FUSE:
        ext(stamp())
    e(WaitVM(("wo", 0)))
    e(barrier())
    ext(dma_wo(2))
    if NWO == 5:
        ext(dma_wo(4))
        for tt in range(2):
            e(valu("v_add_u32", vAWO[2][tt], 4 * WOSLOT, vAWO[0][tt]))
    for f in range(LA):
        ext(rd_wo(f))
    cvl = []
    for ksg in range(NPRE, 32):
        cvl += conv_o(ksg)

    ext(stamp())
    for sg in range(14):
        ps, hs = divmod(sg, 2)
        if sg in (2, 8) and not FINE and not FUSE:
            ext(stamp())
        slots = []
        for r in range(32):
            f = 32 * sg + r
            ks, tt = divmod(r, 2)
            ksg = 16 * hs + ks
            acc = Wacc(ps % 2, tt)
            sl = [mfma(acc, Wf(f), Of(ksg), acc if ksg > 0 else 0)]
            if f + LA < 448:
                sl += rd_wo(f + LA)
            if ps == 0 and f < 60:
                sl += cvl[f * len(cvl) // 60: (f + 1) * len(cvl) // 60]
            if r == 3 and sg + 1 < 14:
                sl += [WaitVM(("wo", sg + 1)), barrier()]
            slots.append(sl)
        fill = []
        if sg >= 1 and sg + NWO - 1 < 14:
            fill += dma_wo(sg + NWO - 1)
        if FUSE and sg == 11:
            fill += fused_setup()
        if FUSE and sg == 12:
            assert NWO == 4
            fill += fused_signal(0)
        if ps >= 1:
            sp_ = store_pass(ps - 1)
            for k in range(2):
                if not env("NOST", 0):
                    slots[10 + 12 * k] += sp_[2 * hs + k]
        ext(interleave(slots, fill, start=4, end=26))

    ext(stamp())
    for g_ in store_pass(6):
        ext(g_)
    if FUSE:
        ext(fused_tail())
    if STAMP:
        e(WaitAll())
    ext(stamp())
    ext(stamp(True))
    ext(stamp_store())
    e(label("L_end"))
    e(raw("s_endpgm"))

    lines = finalize(st)

    sub = []
    s_ = sub.append
    s_(label("L_slow"))
    s_(nop(2))
    for qb in range(2):
        s_(valu("v_max_f32", vMR[qb], vMR[qb], vT[qb]))
        s_(valu("v_mul_f32", vU[qb], sC, vMR[qb]))
        s_(valu("v_sub_f32", vAL[qb], vM[qb], vU[qb]))
        s_(valu("v_exp_f32", vAL[qb], vAL[qb]))
        s_(valu("v_mov_b32", vM[qb], vU[qb]))
        s_(valu("v_add_f32", vTHR[qb], sTRAW, vMR[qb]))
        s_(valu("v_mul_f32", vL[qb], vL[qb], vAL[qb]))
    s_(salu(f"s_mov_b32 {sFLAG}, 1"))
    s_(nop(2))
    s_(raw(f"s_setpc_b64 {sRET}"))
    s_(label("L_resc"))
    s_(nop(16))
    tt = [vU[0], vU[1], vT[0], vT[1]]
    for dt in range(8):
        for qb in range(2):
            acc = Oacc(dt, qb)
            for r0 in range(0, 16, 4):
                for k in range(4):
                    s_(valu("v_accvgpr_read_b32", tt[k], acc[r0 + k]))
                for k in range(4):
                    s_(valu("v_mul_f32", tt[k], tt[k], vAL[qb]))
                for k in range(4):
                    s_(valu("v_accvgpr_write_b32", acc[r0 + k], tt[k]))
    s_(salu(f"s_mov_b32 {sFLAG}, 0"))
    s_(nop(4))
    s_(raw(f"s_setpc_b64 {sRET}"))
    lines += finalize(sub)
    return lines


NPC = env("NPC", 4)
K2_WGS = 896 // NPC


def gen_k2():
    st = []
    e = st.append
    per = 28 // NPC
    magic = (65536 + per - 1) // per
    assert all((i * magic) >> 16 == i // per for i in range(K2_WGS))
    e(salu(f"s_cmp_ge_u32 s2, {K2_WGS}"))
    e(salu("s_cbranch_scc1 L2_end"))
    e(salu("s_load_dwordx2 s[4:5], s[0:1], 80"))
    e(salu("s_load_dwordx2 s[6:7], s[0:1], 96"))
    e(salu(f"s_mul_i32 s10, s2, {magic}"))
    e(salu("s_lshr_b32 s10, s10, 16"))
    e(salu(f"s_mul_i32 s11, s10, {per}"))
    e(salu("s_sub_u32 s11, s2, s11"))
    e(salu(f"s_mul_i32 s11, s11, {NPC}"))
    lane, w, t1, t2 = V(1), V(2), V(3), V(4)
    e(valu("v_and_b32", lane, 63, V(0)))
    e(valu("v_lshrrev_b32", w, 6, V(0)))
    e(valu("v_mul_u32_u24", t1, 14 * 2048, w))
    e(valu("v_lshl_add_u32", t1, lane, 4, t1))
    e(salu("s_lshl_b32 s12, s11, 10"))
    e(valu("v_add_u32", t1, S(12), t1))
    e(salu("s_and_b32 s13, s10, 15"))
    e(salu("s_lshr_b32 s14, s10, 4"))
    e(salu("s_mul_i32 s13, s13, 229376"))
    e(salu("s_mul_i32 s14, s14, 896"))
    e(salu("s_add_u32 s13, s13, s14"))
    e(salu("s_lshl_b32 s14, s11, 5"))
    e(salu("s_add_u32 s13, s13, s14"))
    e(valu("v_and_b32", t2, 31, lane))
    e(valu("v_lshl_add_u32", t2, w, 5, t2))
    e(valu("v_mul_u32_u24", t2, 1792, t2))
    e(valu("v_lshrrev_b32", lane, 5, lane))
    e(valu("v_lshl_add_u32", t2, lane, 4, t2))
    e(valu("v_add_u32", t2, S(13), t2))
    e(raw("s_waitcnt lgkmcnt(0)", "wait"))
    e(salu("s_mov_b32 s16, s4"))
    e(salu("s_mov_b32 s17, s5"))
    e(salu(f"s_mov_b32 s18, {16 * 128 * 896 * 2}"))
    e(salu("s_mov_b32 s19, 0x00020000"))
    e(salu(f"s_mul_i32 s14, s10, {8 * PART}"))
    e(salu("s_add_u32 s20, s6, s14"))
    e(salu("s_addc_u32 s21, s7, 0"))
    e(salu(f"s_mov_b32 s22, {8 * PART}"))
    e(salu("s_mov_b32 s23, 0x00020000"))
    e(salu("s_mov_b32 s32, 0xffff0000"))
    so, sw = S(16, 4), S(20, 4)
    for g in range(8):
        e(salu(f"s_mov_b32 s{24 + g}, {g * PART}"))
    D0 = 32
    for pc in range(NPC):
        for g in range(8):
            e(bload(V(D0 + (pc * 8 + g) * 4, 4), t1, sw, S(24 + g), off=pc * 1024, flags=K2F))
    acc = V(8, 8)
    tmp = V(16, 8)
    for pc in range(NPC):
        for g in range(8):
            for jj in range(4):
                src = V(D0 + (pc * 8 + g) * 4 + jj)
                dlo, dhi = (acc[2 * jj], acc[2 * jj + 1]) if g == 0 else (tmp[2 * jj], tmp[2 * jj + 1])
                e(valu("v_lshlrev_b32", dlo, 16, src))
                e(valu("v_and_b32", dhi, S(32), src))
            if g:
                for k in range(8):
                    e(valu("v_add_f32", acc[k], acc[k], tmp[k]))
        res = V(24 + (pc % 2) * 4, 4)
        for jj in range(4):
            e(valu("v_cvt_pk_bf16_f32", res[jj], acc[2 * jj], acc[2 * jj + 1]))
        e(bstore(res, t2, so, 0, off=pc * 32, flags=OUTF))
    if STAMP == 3:
        e(salu("s_cmp_lg_u32 s2, 0"))
        e(salu("s_cbranch_scc1 L2_end"))
        e(salu("s_load_dwordx2 s[16:17], s[0:1], 88"))
        e(salu(f"s_add_u32 s20, s6, {64 << 20}"))
        e(salu("s_addc_u32 s21, s7, 0"))
        e(salu("s_mov_b32 s22, 64"))
        e(salu("s_mov_b32 s18, 64"))
        e(valu("v_lshlrev_b32", V(3), 2, V(0)))
        e(raw("s_waitcnt lgkmcnt(0)", "wait"))
        e(bload(V(5), V(3), sw, 0, n=1))
        e(bstore(V(5), V(3), so, 0, n=1))
    e(label("L2_end"))
    e(raw("s_endpgm"))
    return finalize(st)


HEADER = open(os.path.join(os.path.dirname(os.path.abspath(__file__)), "header.txt")).read()


def kd(name, vgpr, accum, sgpr):
    return f""".amdhsa_kernel {name}
  .amdhsa_next_free_vgpr {vgpr}
  .amdhsa_next_free_sgpr {sgpr}
  .amdhsa_accum_offset {accum}
  .amdhsa_group_segment_fixed_size 0
  .amdhsa_kernarg_size 104
  .amdhsa_user_sgpr_count 2
  .amdhsa_user_sgpr_kernarg_segment_ptr 1
  .amdhsa_system_sgpr_workgroup_id_x 1
.end_amdhsa_kernel
"""


def main():
    out = HEADER
    out += f"; @launch kernel={K1} grid=(256,1,1) block=(256,1,1) lds={LDS_BYTES}\n"
    if not FUSE:
        out += f"; @launch kernel={K2} grid=({K2_WGS},1,1) block=(256,1,1) lds=0\n"
    out += '.amdgcn_target "amdgcn-amd-amdhsa--gfx950"\n.text\n'
    for name, gen in ((K1, gen_k1), (K2, gen_k2))[: 1 if FUSE else 2]:
        out += f".globl {name}\n.p2align 8\n.type {name},@function\n{name}:\n"
        out += "\n".join(gen()) + "\n"
    out += "L_text_end:\n"
    out += '.section .rodata,"a"\n.p2align 6\n'
    out += kd(K1, 512, 256, 102)
    if not FUSE:
        out += ".p2align 6\n"
        out += kd(K2, 32 + 32 * NPC, 32 + 32 * NPC, 40)
    dst = sys.argv[1] if len(sys.argv) > 1 else f"cdna_kernels/{NAME}.s"
    open(dst, "w").write(out)
    print("wrote", dst, len(out), "bytes", out.count("\n"), "lines")


if __name__ == "__main__":
    main()
```

```python
import math
import struct
import sys
import os

sys.path.insert(0, os.path.dirname(os.path.abspath(__file__)))
from asmir import *

NAME = "concat_heads__gqa_block_cached__gqa_block_cached__near_ridge"
K1 = NAME + "_kernel"
K2 = "reduce_out_kernel"


def f32bits(x):
    return struct.unpack("<I", struct.pack("<f", x))[0]


def env(k, d):
    return type(d)(os.environ.get(k, d))


CSCALE = math.log2(math.e) / 16.0
TLOG2 = 8.0
TRAW = TLOG2 / CSCALE
KVF = env("KVF", "nt")
WQF = env("WQF", "")
XF = env("XF", "")
WOF = env("WOF", "")
STF = env("STF", "sc1")
FUSE = env("FUSE", 0)
K2F = env("K2F", "")
OUTF = env("OUTF", "")
STAMP = env("STAMP", 0)
WARM = env("WARM", 2)
SMOOTH = env("SMOOTH", 3)
MAP = env("MAP", 1)
KVAT = [int(x) for x in env("KVAT", "2,4,6,8,10,12,14,23,25").split(",")]
NG1 = env("NG1", 3)
NPRE = 6
T1OV = env("T1OV", 1)
LOOPX = env("LOOPX", 0)
WRMF = env("WRMF", "")
WOWARM = env("WOWARM", 12)
WARMAT = env("WARMAT", 1)
TLBT = env("TLBT", 0)
CODEW = env("CODEW", 2)
CW0 = env("CW0", 1)
FINE = env("FINE", 0)
STS = (0, 1, 2, 4, 8, 14) if FINE else (0, 14)

SRD_X, SRD_K, SRD_V, SRD_WQ, SRD_WO, SRD_WS = (S(16, 4), S(20, 4), S(24, 4), S(28, 4), S(32, 4), S(36, 4))
sW, sG, sB, sBLK, sC = S(40), S(41), S(42), S(43), S(44)
sM0V, sOFFWQ, sM0K, sM0X, sOFFKV = S(45), S(46), S(47), S(48), S(49)
sT0, sT1 = S(50), S(51)
sMASK0, sMASK1 = S(52, 2), S(54, 2)
sFLAG = S(56)
sOFFX = S(57)
sRET = S(58, 2)
sM0WO = S(60)
sOFFWS = S(61)
sTRAW = S(62)
sOFFWO = S(63)
sT2 = S(100)


def Qf(qb, s):
    return V((qb * 16 + s) * 4, 4)


def Xf(s):
    return V(s * 4, 4)


def Of(ks):
    return V(ks * 4, 4)


def Sb(p, qb):
    return V(128 + p * 32 + qb * 16, 16)


def Kf(i):
    return V(192 + (i % 4) * 4, 4)


def Vf(i):
    return V(208 + (i % 4) * 4, 4)


def Wf(i):
    return V(192 + (i % 8) * 4, 4)


def Wacc(buf, tt):
    return V(128 + buf * 32 + tt * 16, 16)


vAK, vAV, vOFFKV, vL16 = V(224), V(225), V(226), V(227)
vM = [V(228), V(229)]
vTHR = [V(230), V(231)]
vL = [V(232), V(233)]
vAL = [V(234), V(235)]
vT = [V(236), V(237)]
vU = [V(238), V(239)]
vTMP = V(240, 8)
vMR = [V(248), V(249)]
vAWQ = V(250)
vOFFWO = V(251)
vAWO = [[V(252), V(253)], [V(254), V(255)], [V(228), V(229)]]
NWO = env("NWO", 4)
vXO = [V(112), V(113)]
vAX = V(114, 4)
vDUMMY, vPFWQ, vL128, vCW = V(118), V(119), V(120), V(121)
SRD_PF = S(96, 4)
sPFOFF = S(101)
PFN = env("PFN", 0)
PFF = env("PFF", "")
PFAT = env("PFAT", 16)
vAV2 = vAWQ


def STG(t):
    return V(128 + 16 * t, 16)

KSTR, VSTR = 1040, 1088
KSLOT, VSLOT = 16 * KSTR, 16 * VSTR
VBASE = 4 * KSLOT
NK, NV = 4, 5
KS = [i * KSLOT for i in range(4)]
VS = [i * VSLOT for i in range(NV)]
P1BASE = VBASE + VSLOT
NP1 = 4
XBASE = 2 * KSLOT
assert XBASE + 32768 <= 4 * KSLOT
WOSLOT = 32768
LDS_BYTES = 163840
PART = 4 * 14 * 2048
assert P1BASE + NP1 * VSLOT <= LDS_BYTES


def Oacc(dt, qb):
    return A((dt * 2 + qb) * 16, 16)


def Qacc(nt):
    return A(nt * 16, 16)


def barrier():
    return raw("s_barrier", "other", cost=4)


_nst = 0


def stamp(real=False):
    global _nst
    if not STAMP:
        return []
    i = _nst
    _nst += 1
    assert i < 16
    op = "s_memrealtime" if (real or STAMP >= 2) else "s_memtime"
    return [raw(f"{op} s[{64 + 2 * i}:{65 + 2 * i}]", "salu", cost=2)]


def stamp_store():
    if not STAMP:
        return []
    if STAMP == 3:
        out = [raw("s_waitcnt lgkmcnt(0)", "wait"),
               salu(f"s_cmp_lg_u32 {sW}, 0"), salu("s_cbranch_scc1 L_end"),
               salu(f"s_cmp_lg_u32 s2, 77"), salu("s_cbranch_scc1 L_end"),
               salu(f"s_add_u32 s4, s14, {64 << 20}"), salu("s_addc_u32 s5, s15, 0"),
               salu("s_mov_b32 s6, 256"), salu("s_mov_b32 s7, 0x00020000"),
               valu("v_mov_b32", V(2), 0)]
        for i in range(_nst):
            out.append(salu(f"s_sub_u32 s3, s{64 + 2 * i}, s64"))
            out.append(valu("v_mov_b32", V(4 + i), S(3)))
            out.append(bstore(V(4 + i), V(2), S(4, 4), 0, off=i * 4, n=1))
        return out
    out = [raw("s_waitcnt lgkmcnt(0)", "wait"),
           salu(f"s_cmp_lg_u32 {sW}, 0"), salu("s_cbranch_scc1 L_end"),
           salu("s_lshl_b32 s3, s2, 7"), salu(f"s_add_u32 s3, s3, {64 << 20}"),
           salu("s_add_u32 s4, s14, s3"), salu("s_addc_u32 s5, s15, 0"),
           salu("s_mov_b32 s6, 128"), salu("s_mov_b32 s7, 0x00020000"),
           valu("v_mov_b32", V(2), 0)]
    for i in range(_nst):
        out.append(valu("v_mov_b32", V(4 + 2 * i), S(64 + 2 * i)))
        out.append(valu("v_mov_b32", V(5 + 2 * i), S(65 + 2 * i)))
        out.append(bstore(V(4 + 2 * i, 2), V(2), S(4, 4), 0, off=i * 8, n=2))
    return out


def dma_wq(s):
    out = []
    for i in range(4):
        out.append(setm0(f"s_add_u32 m0, {sM0V}, {P1BASE + (s % NP1) * VSLOT + i * VSTR}"))
        out.append(salu(f"s_add_u32 {sT0}, {sOFFWQ}, {(16 * s + i) * 8192}", defs=[sT0]))
        out.append(dma(vL16, SRD_WQ, sT0, tag=("wq", s), flags=WQF))
    return out


def dma_x(pc):
    out = []
    for i in range(4):
        out.append(setm0(f"s_add_u32 m0, {sM0X}, {(pc % 2) * 16384 + i * 1024}"))
        out.append(salu(f"s_add_u32 {sT1}, {sOFFX}, {pc * 128 + i * 8 * 896}", defs=[sT1]))
        out.append(dma(vXO[i % 2], SRD_X, sT1, tag=("x", pc), flags=XF))
    return out


def dma_k(j):
    out = [salu(f"s_add_u32 {sT1}, {sOFFKV}, {j * 16384}", defs=[sT1])]
    for i in range(4):
        out.append(setm0(f"s_add_u32 m0, {sM0K}, {KS[j % NK] + i * (KSTR - 512)}"))
        out.append(dma(vOFFKV, SRD_K, sT1, off=i * 512, tag=("k", j), flags=KVF))
    return out


def dma_v(j):
    out = [salu(f"s_add_u32 {sT1}, {sOFFKV}, {j * 16384}", defs=[sT1])]
    for i in range(4):
        out.append(setm0(f"s_add_u32 m0, {sM0V}, {VBASE + VS[j % NV] + i * (VSTR - 512)}"))
        out.append(dma(vOFFKV, SRD_V, sT1, off=i * 512, tag=("v", j), flags=KVF))
    return out


def dma_wo(sg):
    ps, hs = divmod(sg, 2)
    out = []
    for i in range(8):
        out.append(setm0(f"s_add_u32 m0, {sM0WO}, {(sg % NWO) * WOSLOT + i * 1024}"))
        out.append(salu(f"s_add_u32 {sT1}, {sOFFWO}, {(256 * hs + 8 * i) * 896 + 128 * ps}", defs=[sT1]))
        out.append(dma(vOFFWO, SRD_WO, sT1, tag=("wo", sg), flags=WOF))
    return out


def pfload(*a, **kw):
    i = bload(*a, **kw)
    i.defs = set()
    return i


def rd_wq(f):
    s, nt = divmod(f, 16)
    d = Wf(f)
    off = (s % NP1) * VSLOT + nt * 64
    return [ds_read_tr(d[0:2], vAWQ, off), ds_read_tr(d[2:4], vAWQ, off + 4 * VSTR)]


def rd_x(s):
    pc, sp = divmod(s, 4)
    return [ds_read_b128(Xf(s), vAX[sp], (pc % 2) * 16384)]


def rd_k(j, s):
    return [ds_read_b128(Kf(s), vAK, KS[j % NK] + s * 32)]


def stage_ld(t, kind, j):
    out = [salu(f"s_add_u32 {sT1}, {sOFFKV}, {j * 16384}", defs=[sT1])]
    for i in range(4):
        out.append(bload(STG(t)[4 * i: 4 * i + 4], vOFFKV, SRD_K if kind == "k" else SRD_V, sT1,
                         off=i * 512, tag=("stg", t), flags=KVF))
    return out


def rd_v(j, f):
    dt, ks = divmod(f, 2)
    d = Vf(f)
    base, off = (vAV2, 0) if j % NV == 4 else (vAV, VS[j % NV])
    off += ks * 512 + dt * 64
    return [ds_read_tr(d[0:2], base, off), ds_read_tr(d[2:4], base, off + 4 * VSTR)]


def rd_wo(f):
    sg, r = divmod(f, 32)
    ks, tt = divmod(r, 2)
    slot = sg % NWO
    base = vAWO[slot // 2][tt]
    off = (slot % 2) * WOSLOT + ks * 2048
    d = Wf(f)
    return [ds_read_tr(d[0:2], base, off), ds_read_tr(d[2:4], base, off + 512)]


def sm_max(p):
    out = []
    for qb in range(2):
        s_ = Sb(p, qb)
        t = vT[qb]
        out.append(valu("v_max3_f32", t, s_[0], s_[1], s_[2]))
        for r in range(3, 15, 2):
            out.append(valu("v_max3_f32", t, t, s_[r], s_[r + 1]))
        out.append(valu("v_max_f32", t, t, s_[15]))
    for qb in range(2):
        out.append(valu("v_mov_b32", vU[qb], vT[qb]))
    for qb in range(2):
        out.append(Ins(f"v_permlane32_swap_b32 {vT[qb]}, {vU[qb]}", "perm", defs=[vT[qb], vU[qb]],
                       uses=[vT[qb], vU[qb]]))
    for qb in range(2):
        out.append(valu("v_max_f32", vT[qb], vT[qb], vU[qb]))
    return out


_lbl = 0


def sm_check(first):
    global _lbl
    out = []
    if first:
        for qb in range(2):
            out.append(valu("v_mov_b32", vMR[qb], vT[qb]))
            out.append(valu("v_mul_f32", vM[qb], sC, vT[qb]))
            out.append(valu("v_add_f32", vTHR[qb], sTRAW, vT[qb]))
            out.append(valu("v_mov_b32", vL[qb], 0))
        return out
    out.append(valu("v_cmp_gt_f32", sMASK0, vT[0], vTHR[0]))
    out.append(valu("v_cmp_gt_f32", sMASK1, vT[1], vTHR[1]))
    _lbl += 1
    out.append(Group([
        salu(f"s_or_b64 {sMASK0}, {sMASK0}, {sMASK1}", defs=[sMASK0], uses=[sMASK0, sMASK1]),
        salu(f"s_cbranch_scc0 L_noslow{_lbl}"),
        Ins(f"s_call_b64 {sRET}, L_slow", "salu", cost=2,
            defs=vM + vTHR + vL + vAL + vMR + vU, uses=vM + vTHR + vL + vT + vMR),
        label(f"L_noslow{_lbl}")]))
    return out


def sm_exp(p, qb, grp):
    s_ = Sb(p, qb)
    out = []
    rs = range(4 * grp, 4 * grp + 4)
    for r in rs:
        out.append(valu("v_fma_f32", s_[r], s_[r], sC, ("-", vM[qb])))
    for r in rs:
        out.append(valu("v_exp_f32", s_[r], s_[r]))
    for r in rs:
        out.append(valu("v_add_f32", vL[qb], vL[qb], s_[r]))
    ks, g2 = divmod(grp, 2)
    for jj in range(2):
        j = 2 * g2 + jj
        out.append(valu("v_cvt_pk_bf16_f32", s_[8 * ks + j], s_[8 * ks + 2 * j], s_[8 * ks + 2 * j + 1]))
    return out


def Pf(p, qb, ks):
    return Sb(p, qb)[8 * ks: 8 * ks + 4]


def resc_check():
    global _lbl
    _lbl += 1
    return [
        salu(f"s_cmp_eq_u32 {sFLAG}, 0", uses=[sFLAG]),
        salu(f"s_cbranch_scc1 L_nores{_lbl}"),
        Ins(f"s_call_b64 {sRET}, L_resc", "salu", cost=2),
        label(f"L_nores{_lbl}"),
    ]


def softmax1(j):
    p = j % 2
    if j == 0:
        return []
    out = sm_max(p) + sm_check(False)
    for gi in range(8 if j == 15 else NG1):
        out += sm_exp(p, gi // 4, gi % 4)
    return out


def softmax2(j):
    p = j % 2
    if j == 15:
        return []
    out = []
    if j == 0:
        out = sm_max(p) + sm_check(True)
    for gi in range(0 if j == 0 else NG1, 8):
        out += sm_exp(p, gi // 4, gi % 4)
    return out


def conv_o(ksg):
    qb, s = divmod(ksg, 16)
    dt, hf = divmod(s, 2)
    acc = Oacc(dt, qb)
    out = []
    for ee in range(8):
        out.append(valu("v_accvgpr_read_b32", vTMP[ee], acc[hf * 8 + ee]))
    for ee in range(8):
        out.append(valu("v_mul_f32", vTMP[ee], vTMP[ee], vL[qb]))
    for jj in range(4):
        out.append(valu("v_cvt_pk_bf16_f32", Of(ksg)[jj], vTMP[2 * jj], vTMP[2 * jj + 1]))
    return out


def store_pass(ps):
    out = []
    for tt in range(2):
        acc = Wacc(ps % 2, tt)
        for sp in range(2):
            g = []
            for jj in range(4):
                g.append(valu("v_cvt_pk_bf16_f32", acc[8 * sp + jj], acc[8 * sp + 2 * jj], acc[8 * sp + 2 * jj + 1]))
            g.append(salu(f"s_add_u32 {sT0}, {sOFFWS}, {ps * 4096}", defs=[sT0]))
            g.append(bstore(acc[8 * sp: 8 * sp + 4], vL16, SRD_WS, sT0, off=(2 * tt + sp) * 1024, flags=STF))
            out.append(g)
    return out


def fused_tail():
    st = []
    e = st.append
    SO, SG, SD = S(4, 4), S(8, 4), S(16, 4)
    grp = S(20)
    t1, t2, t3, t4 = vTMP[0], vTMP[1], vTMP[2], vTMP[3]
    e(salu(f"s_lshl_b32 {grp}, {sBLK}, 4"))
    e(salu(f"s_add_u32 {grp}, {grp}, {sB}"))
    e(salu("s_mov_b32 s4, s92"))
    e(salu("s_mov_b32 s5, s93"))
    e(salu(f"s_mov_b32 s6, {16 * 128 * 896 * 2}"))
    e(salu("s_mov_b32 s7, 0x00020000"))
    e(salu(f"s_mul_i32 s3, {grp}, {8 * PART}"))
    e(salu("s_add_u32 s8, s14, s3"))
    e(salu("s_addc_u32 s9, s15, 0"))
    e(salu(f"s_mov_b32 s10, {8 * PART}"))
    e(salu("s_mov_b32 s11, 0x00020000"))
    e(salu("s_mov_b32 s16, s94"))
    e(salu("s_mov_b32 s17, s95"))
    e(salu("s_mov_b32 s18, 256"))
    e(salu("s_mov_b32 s19, 0x00020000"))
    e(salu(f"s_mul_i32 s21, {sW}, 3"))
    e(salu(f"s_min_u32 s3, {sW}, 1"))
    e(salu("s_add_u32 s21, s21, s3"))
    e(salu(f"s_mul_i32 s22, {sG}, 14"))
    e(salu("s_add_u32 s22, s22, s21"))
    e(salu("s_lshl_b32 s22, s22, 10"))
    e(valu("v_add_u32", t1, S(22), vL16))
    e(salu(f"s_lshl_b32 s23, {sB}, 7"))
    e(salu(f"s_lshr_b32 s3, {sG}, 1"))
    e(salu("s_lshl_b32 s3, s3, 5"))
    e(salu("s_add_u32 s23, s23, s3"))
    e(salu("s_mul_i32 s23, s23, 1792"))
    e(salu(f"s_mul_i32 s3, {sBLK}, 896"))
    e(salu("s_add_u32 s23, s23, s3"))
    e(salu(f"s_and_b32 s3, {sG}, 1"))
    e(salu("s_mul_i32 s3, s3, 14"))
    e(salu("s_add_u32 s3, s3, s21"))
    e(salu("s_lshl_b32 s3, s3, 5"))
    e(salu("s_add_u32 s23, s23, s3"))
    e(valu("v_lshrrev_b32", t3, 4, vL16))
    e(valu("v_and_b32", t2, 31, t3))
    e(valu("v_mul_u32_u24", t2, 1792, t2))
    e(valu("v_lshrrev_b32", t3, 5, t3))
    e(valu("v_lshl_add_u32", t2, t3, 4, t2))
    e(valu("v_add_u32", t2, S(23), t2))
    for g in range(8):
        e(salu(f"s_mov_b32 s{24 + g}, {g * PART}"))
    e(salu("s_mov_b32 s32, 0xffff0000"))
    e(salu(f"s_lshl_b32 s33, {grp}, 3"))
    e(valu("v_mov_b32", t3, S(33)))
    e(valu("v_mov_b32", t4, 1))
    e(WaitAll(vm=True, lgkm=True))
    e(barrier())
    e(salu(f"s_cmp_lg_u32 {sW}, 0"))
    e(salu("s_cbranch_scc1 L_wait_done"))
    e(salu("s_mov_b64 exec, 1"))
    e(raw(f"buffer_atomic_add {t4}, {t3}, {SD}, 0 offen sc1", "other"))
    e(salu("s_mov_b32 s34, 0"))
    e(label("L_poll"))
    e(raw(f"buffer_load_dword {vTMP[4]}, {t3}, {SD}, 0 offen sc1", "other"))
    e(raw("s_waitcnt vmcnt(0)", "wait"))
    e(raw(f"v_readfirstlane_b32 s35, {vTMP[4]}", "other"))
    e(nop(4))
    e(salu("s_cmp_ge_u32 s35, 8"))
    e(salu("s_cbranch_scc1 L_poll_done"))
    e(raw("s_sleep 2", "other"))
    e(salu("s_add_u32 s34, s34, 1"))
    e(salu("s_cmp_lt_u32 s34, 0x40000"))
    e(salu("s_cbranch_scc1 L_poll"))
    e(label("L_poll_done"))
    e(salu("s_mov_b64 exec, -1"))
    e(label("L_wait_done"))
    e(barrier())
    for pc in range(4):
        for g in range(8):
            e(bload(V((pc * 8 + g) * 4, 4), t1, SG, S(24 + g), off=pc * 1024, flags="sc1"))
    acc = V(128, 8)
    tmp = V(136, 8)
    for pc in range(4):
        for g in range(8):
            for jj in range(4):
                src = V((pc * 8 + g) * 4 + jj)
                dlo, dhi = (acc[2 * jj], acc[2 * jj + 1]) if g == 0 else (tmp[2 * jj], tmp[2 * jj + 1])
                e(valu("v_lshlrev_b32", dlo, 16, src))
                e(valu("v_and_b32", dhi, S(32), src))
            if g:
                for k in range(8):
                    e(valu("v_add_f32", acc[k], acc[k], tmp[k]))
        res = V(144 + (pc % 2) * 4, 4)
        for jj in range(4):
            e(valu("v_cvt_pk_bf16_f32", res[jj], acc[2 * jj], acc[2 * jj + 1]))
        e(bstore(res, t2, SO, 0, off=pc * 32, flags=OUTF))
    return st


def gen_k1():
    st = []
    e = st.append
    ext = st.extend
    ext(stamp(True))
    ext(stamp())
    e(salu("s_cmp_ge_u32 s2, 256"))
    e(salu("s_cbranch_scc1 L_end"))
    if MAP == 0:
        e(salu(f"s_and_b32 {sG}, s2, 7"))
        e(salu(f"s_lshr_b32 s3, s2, 6"))
        e(salu(f"s_xor_b32 {sG}, {sG}, s3"))
        e(salu(f"s_lshr_b32 {sB}, s2, 3"))
        e(salu(f"s_and_b32 {sB}, {sB}, 15"))
        e(salu(f"s_lshr_b32 {sBLK}, s2, 7"))
    else:
        e(salu(f"s_bfe_u32 {sBLK}, s2, 0x10002"))
        e(salu(f"s_and_b32 {sG}, s2, 3"))
        e(salu(f"s_lshl_b32 {sG}, {sG}, 1"))
        e(salu(f"s_bfe_u32 s3, s2, 0x10003"))
        e(salu(f"s_or_b32 {sG}, {sG}, s3"))
        e(salu(f"s_lshr_b32 {sB}, s2, 4"))
    e(salu(f"s_load_dwordx2 s[14:15], s[0:1], 96"))
    if FUSE:
        e(salu(f"s_load_dwordx4 s[92:95], s[0:1], 80"))
    e(salu(f"s_mul_i32 s3, {sBLK}, 40"))
    e(salu("s_add_u32 s0, s0, s3"))
    e(salu("s_addc_u32 s1, s1, 0"))
    e(salu("s_load_dwordx8 s[4:11], s[0:1], 0"))
    e(salu("s_load_dwordx2 s[12:13], s[0:1], 32"))
    lane, tA, tB, tC, tD, tE = (vTMP[i] for i in range(6))
    e(valu("v_and_b32", lane, 63, V(0)))
    e(valu("v_lshrrev_b32", tA, 6, V(0)))
    e(Ins(f"v_readfirstlane_b32 {sW}, {tA}", "valu", defs=[sW], uses=[tA]))
    e(valu("v_lshlrev_b32", vL16, 4, lane))
    cw = []
    if CODEW:
        e(raw("s_getpc_b64 s[96:97]", "salu"))
        e(label("L_pc"))
        e(valu("v_lshlrev_b32", vCW, 6, V(0)))
        e(salu("s_mov_b32 s98, L_text_end-L_pc-4"))
        if CODEW == 2:
            e(salu("s_bfe_u32 s99, s2, 0x30003"))
            e(salu("s_mul_i32 s99, s99, 11264"))
            e(valu("v_add_u32", vCW, S(99), vCW))
            e(valu("v_min_u32", vCW, S(98), vCW))
            cw = [[Ins(f"global_load_dword {vDUMMY}, {vCW}, s[96:97]", "vmem", uses=[vCW], tag=("cw", 0), cost=8)]]
            cw += [[] for _ in range(5)]
        else:
            for i in range(6):
                cw.append([Ins(f"global_load_dword {vDUMMY}, {vCW}, s[96:97]", "vmem", uses=[vCW], tag=("cw", i), cost=8),
                           valu("v_add_u32", vCW, 16384, vCW), valu("v_min_u32", vCW, S(98), vCW)])
        for i in range(CW0):
            ext(cw[i])
    e(valu("v_lshrrev_b32", tA, 3, lane))
    e(valu("v_mul_u32_u24", tA, 896, tA))
    e(valu("v_and_b32", tB, 7, lane))
    e(valu("v_lshrrev_b32", tC, 4, lane))
    e(valu("v_xor_b32", tB, tB, tC))
    e(valu("v_lshl_add_u32", vXO[0], tB, 4, tA))
    e(valu("v_xor_b32", vXO[1], 64, vXO[0]))
    e(salu(f"s_mul_i32 {sM0V}, {sW}, {4 * VSTR}", uses=[sW]))
    e(salu(f"s_lshl_b32 {sOFFWQ}, {sW}, 15"))
    e(salu(f"s_lshl_b32 {sM0X}, {sW}, 12"))
    e(salu(f"s_add_u32 {sM0X}, {sM0X}, {XBASE}"))
    e(salu(f"s_mul_i32 {sOFFX}, {sW}, {32 * 896}"))
    e(raw("s_waitcnt lgkmcnt(0)", "wait"))

    def srd(d, ptr_lo, off_expr_reg, size):
        e(salu(f"s_add_u32 s{d.b}, s{ptr_lo}, {off_expr_reg}"))
        e(salu(f"s_addc_u32 s{d.b + 1}, s{ptr_lo + 1}, 0"))
        e(salu(f"s_mov_b32 s{d.b + 2}, {size}"))
        e(salu(f"s_mov_b32 s{d.b + 3}, 0x00020000"))

    e(salu(f"s_lshl_b32 s3, {sG}, 10"))
    srd(SRD_WQ, 10, "s3", 447 * 8192 + 1024)
    e(salu(f"s_mul_i32 s3, {sB}, 114688"))
    srd(SRD_X, 4, "s3", 114688)
    if TLBT:
        e(valu("v_lshlrev_b32", vPFWQ, 13, V(0)))
        e(pfload(vDUMMY, vPFWQ, SRD_WQ, 0, tag=("tl", 0), n=1))
        e(valu("v_lshlrev_b32", vCW, 12, lane))
        e(pfload(vDUMMY, vCW, SRD_X, 0, tag=("tl", 1), n=1))
        if TLBT == 2:
            e(salu(f"s_mov_b32 {sT2}, {256 * 8192}"))
            e(pfload(vDUMMY, vPFWQ, SRD_WQ, sT2, tag=("tl", 2), n=1))
    ext(dma_wq(0))
    ext(dma_x(0))
    ext(dma_wq(1))
    ext(dma_x(1))
    ext(dma_wq(2))
    e(salu(f"s_lshl_b32 s3, {sB}, 3"))
    e(salu(f"s_add_u32 s3, s3, {sG}"))
    e(salu(f"s_lshl_b32 s3, s3, 18"))
    srd(SRD_K, 6, "s3", 262144)
    srd(SRD_V, 8, "s3", 262144)
    e(salu(f"s_mul_i32 s3, {sG}, 458752"))
    srd(SRD_WO, 12, "s3", 458752)
    e(salu(f"s_lshl_b32 s3, {sBLK}, 4"))
    e(salu(f"s_add_u32 s3, s3, {sB}"))
    e(salu(f"s_lshl_b32 s3, s3, 3"))
    e(salu(f"s_add_u32 s3, s3, {sG}"))
    e(salu(f"s_mul_i32 s3, s3, {PART}"))
    srd(SRD_WS, 14, "s3", PART)
    e(salu(f"s_mov_b32 {sC}, {f32bits(CSCALE):#x}"))
    e(salu(f"s_mov_b32 {sTRAW}, {f32bits(TRAW):#x}"))
    e(salu(f"s_mov_b32 {sFLAG}, 0"))
    e(salu(f"s_mul_i32 {sM0K}, {sW}, {4 * KSTR}"))
    e(salu(f"s_lshl_b32 {sOFFKV}, {sW}, 11"))
    e(salu(f"s_lshl_b32 {sM0WO}, {sW}, 13"))
    e(salu(f"s_mul_i32 {sOFFWO}, {sW}, {64 * 896}"))
    e(salu(f"s_mul_i32 {sOFFWS}, {sW}, {14 * 2048}"))
    e(valu("v_lshrrev_b32", tA, 5, lane))
    e(valu("v_and_b32", tB, 31, lane))
    e(valu("v_lshlrev_b32", tC, 13, tA))
    e(valu("v_lshl_add_u32", vOFFKV, tB, 4, tC))
    e(valu("v_bfe_u32", tC, tB, 1, 3))
    e(valu("v_xor_b32", tC, tC, tA))
    e(valu("v_lshlrev_b32", tC, 4, tC))
    e(valu("v_lshl_add_u32", tC, tB, 7, tC))
    e(valu("v_add_u32", vAX[0], sM0X, tC))
    for sp in range(1, 4):
        e(valu("v_xor_b32", vAX[sp], sp << 5, vAX[0]))
    e(valu("v_and_b32", tC, 3, tB))
    e(valu("v_and_b32", tD, 4, tB))
    e(valu("v_lshl_add_u32", tC, tD, 1, tC))
    e(valu("v_and_b32", tD, 8, tB))
    e(valu("v_lshrrev_b32", tD, 1, tD))
    e(valu("v_add_u32", tC, tC, tD))
    e(valu("v_mul_u32_u24", vAK, KSTR, tC))
    e(valu("v_lshrrev_b32", tD, 4, tB))
    e(valu("v_lshl_add_u32", vAK, tD, 9, vAK))
    e(valu("v_lshl_add_u32", vAK, tA, 4, vAK))
    e(valu("v_bfe_u32", tE, lane, 2, 2))
    e(valu("v_lshl_add_u32", tC, tA, 3, tE))
    e(valu("v_and_b32", tD, 1, lane))
    e(valu("v_lshlrev_b32", tD, 4, tD))
    e(valu("v_and_b32", tB, 2, lane))
    e(valu("v_lshl_add_u32", tD, tB, 2, tD))
    e(valu("v_bfe_u32", tB, lane, 4, 1))
    e(valu("v_lshl_add_u32", tD, tB, 5, tD))
    e(valu("v_mul_u32_u24", vAV, VSTR, tC))
    e(valu("v_add_u32", vAV, vAV, tD))
    e(valu("v_add_u32", vAWQ, P1BASE, vAV))
    e(valu("v_add_u32", vAV, VBASE, vAV))
    e(valu("v_lshl_add_u32", tC, tC, 7, tD))
    e(valu("v_lshrrev_b32", tE, 1, tE))
    e(valu("v_lshlrev_b32", tE, 6, tE))
    e(valu("v_add_u32", vAWO[0][0], tC, tE))
    e(valu("v_xor_b32", tE, 64, tE))
    e(valu("v_add_u32", vAWO[0][1], tC, tE))
    e(valu("v_add_u32", vAWO[1][0], 2 * WOSLOT, vAWO[0][0]))
    e(valu("v_add_u32", vAWO[1][1], 2 * WOSLOT, vAWO[0][1]))
    e(valu("v_lshrrev_b32", tC, 3, lane))
    e(valu("v_mul_u32_u24", tC, 896, tC))
    e(valu("v_and_b32", tD, 7, lane))
    e(valu("v_lshlrev_b32", tB, 2, tB))
    e(valu("v_xor_b32", tD, tD, tB))
    e(valu("v_lshl_add_u32", vOFFWO, tD, 4, tC))
    if PFN:
        e(valu("v_lshlrev_b32", vL128, 7, lane))
        e(salu(f"s_cmp_lt_u32 {sW}, 2"))
        e(salu(f"s_cselect_b32 s96, s20, s24"))
        e(salu(f"s_cselect_b32 s97, s21, s25"))
        e(salu(f"s_mov_b32 s98, 262144"))
        e(salu(f"s_mov_b32 s99, 0x00020000"))
        e(salu(f"s_cselect_b32 {sPFOFF}, 5, 4"))
        e(salu(f"s_lshl_b32 {sPFOFF}, {sPFOFF}, 14"))
        e(salu(f"s_and_b32 s3, {sW}, 1"))
        e(salu(f"s_lshl_b32 s3, s3, 13"))
        e(salu(f"s_add_u32 {sPFOFF}, {sPFOFF}, s3"))
    if WARM:
        e(valu("v_lshrrev_b32", tA, 3, lane))
        e(valu("v_and_b32", tB, 7, lane))
        e(valu("v_lshlrev_b32", tA, 13, tA))
        e(valu("v_lshl_add_u32", vPFWQ, tB, 7, tA))
        if MAP == 0:
            e(salu(f"s_and_b32 s3, {sB}, 7"))
            e(salu(f"s_mul_i32 s3, s3, {56 * 8192}"))
            e(salu(f"s_lshl_b32 {sT2}, {sW}, 16"))
            e(salu(f"s_add_u32 {sT2}, {sT2}, s3"))
            e(pfload(vDUMMY, vPFWQ, SRD_WQ, sT2, tag=("pfw", 0), n=1))
            e(salu(f"s_add_u32 {sT2}, {sT2}, {4 << 16}"))
            e(pfload(vDUMMY, vPFWQ, SRD_WQ, sT2, tag=("pfw", 1), n=1))
        else:
            e(salu(f"s_mul_i32 s3, {sB}, {28 * 8192}"))
            e(salu(f"s_lshl_b32 {sT2}, {sW}, 16"))
            e(salu(f"s_add_u32 {sT2}, {sT2}, s3"))
            warm = [pfload(vDUMMY, vPFWQ, SRD_WQ, sT2, tag=("pfw", 0), n=1, flags=WRMF)]
            if WARM == 2:
                warm.append(pfload(vDUMMY, vPFWQ, SRD_WQ, sT2, off=64, tag=("pfw", 1), n=1, flags=WRMF))
            if WARMAT < 0:
                ext(warm)
    e(WaitVM(("x", 0)))
    for s in range(4):
        ext(rd_x(s))
    e(barrier())

    LA = 6
    for f in range(LA):
        ext(rd_wq(f))
    pre = [dma_k(0), dma_k(1), dma_v(0), stage_ld(0, "v", 1), stage_ld(1, "v", 2), stage_ld(2, "v", 3),
           stage_ld(3, "v", 4), dma_k(2), dma_k(3)]
    kv_at = {}
    if SMOOTH:
        units = []
        for g_ in pre:
            head, rest = g_[0], g_[1:]
            per = len(rest) // 4
            for i in range(4):
                units.append([head] + rest[i * per: (i + 1) * per])
        lo, hi = SMOOTH, 23
        for u in range(28):
            kv_at.setdefault(lo + u * (hi - lo) // 28, []).extend(units[u])
        for u in range(8):
            kv_at.setdefault(23 + u // 2, []).extend(units[28 + u])
    else:
        for st_, g_ in zip(KVAT, pre):
            kv_at.setdefault(st_, []).extend(g_)
    for s in range(28):
        if STAMP and s in STS:
            ext(stamp())
        slots = []
        for nt in range(16):
            f = 16 * s + nt
            sl = [mfma(Qacc(nt), Wf(f), Xf(s), Qacc(nt) if s > 0 else 0)]
            if f + LA < 448:
                sl += rd_wq(f + LA)
            if nt == 3 and s + 1 < 28:
                if s == 23:
                    sl += [WaitAll(vm=False, lgkm=True)]
                sl += [WaitVM(("wq", s + 1)), barrier()]
            slots.append(sl)
        fill = []
        if s + NP1 - 1 < 28:
            fill += dma_wq(s + NP1 - 1)
        if WARM and s == WARMAT:
            fill += warm
        if s in kv_at:
            fill += kv_at[s]
        if CODEW and s % 2 == 1 and CW0 + (s - 1) // 2 < 6:
            fill += cw[CW0 + (s - 1) // 2]
        if PFN and s >= PFAT and (s - PFAT) % 2 == 0 and (s - PFAT) // 2 < PFN:
            fill += [salu(f"s_add_u32 {sT2}, {sPFOFF}, {((s - PFAT) // 2) * 16384}", defs=[sT2]),
                     pfload(vDUMMY, vL128, SRD_PF, sT2, tag=("pf", s), n=1, flags=PFF)]
        if s % 4 == 1 and (s + 3) // 4 < 7:
            pc = (s + 3) // 4
            fill += [WaitVM(("x", pc))]
            for s2 in range(4):
                fill += rd_x(4 * pc + s2)
        if s % 4 == 0 and s // 4 + 2 < 7:
            fill += [WaitAll(vm=False, lgkm=True)] if s == 0 else []
            fill += dma_x(s // 4 + 2)
        ext(interleave(slots, fill, start=4, end=14))

    ext(stamp())
    e(WaitVM(("k", 0)))
    e(barrier())
    for s3 in range(3):
        ext(rd_k(0, s3))
    e(valu("v_add_u32", vT[0], sM0V, vL16))
    e(valu("v_add_u32", vT[0], VBASE + VSLOT, vT[0]))
    e(valu("v_add_u32", vAV2, VS[4], vAV))
    drain = []
    for t in range(4):
        for i in range(4):
            drain.append(ds_write_b128(vT[0], STG(t)[4 * i: 4 * i + 4], VS[t] + i * VSTR))
    def conv_q(qb, s):
        acc = Qacc(qb * 8 + s // 2)
        out = []
        for ee in range(8):
            out.append(valu("v_accvgpr_read_b32", vTMP[ee], acc[(s % 2) * 8 + ee]))
        for jj in range(4):
            out.append(valu("v_cvt_pk_bf16_f32", Qf(qb, s)[jj], vTMP[2 * jj], vTMP[2 * jj + 1]))
        return out

    QLA = 4 if T1OV else 16
    for s in range(QLA):
        for qb in range(2):
            ext(conv_q(qb, s))
            k = 2 * s + qb
            ext(drain[2 * k: 2 * k + 2])
    e(WaitAll(vm=False, lgkm=True))

    ext(stamp())
    for j in range(17):
        p = j % 2
        if LOOPX:
            if j == 6:
                e(salu("s_mov_b32 s99, 0"))
                e(label("L_loopx"))
            if j == 8:
                e(salu("s_add_u32 s99, s99, 1"))
                e(salu("s_cmp_lt_u32 s99, 3"))
                e(salu("s_cbranch_scc1 L_loopx"))
            if 8 <= j < 12:
                continue
        if j in (4, 12) and not FINE:
            ext(stamp())
        fillA = softmax2(j - 1) if j >= 1 else []
        if j < 16:
            slots = []
            for s in range(16):
                for qb in range(2):
                    sl = [mfma(Sb(p, qb), Kf(s), Qf(qb, s), Sb(p, qb) if s > 0 else 0)]
                    if qb == 0:
                        if s + 3 < 16:
                            sl += rd_k(j, s + 3)
                        elif j >= 1:
                            sl += rd_v(j - 1, s + 3 - 16)
                    if j == 0 and s + QLA < 16:
                        sl += conv_q(qb, s + QLA)
                    slots.append(sl)
            ext(interleave(slots, fillA, start=0, end=30))
        if j >= 2:
            ext(resc_check())
        waits = []
        if j + 1 < 16:
            waits.append(("k", j + 1))
        if j < 16:
            waits.append(("v", j))
        if j == 15:
            waits.append(("pfo", 1))
        grp = []
        if NV <= j + NV - 2 < 16:
            grp += dma_v(j + NV - 2)
        if j + NK < 16:
            grp += dma_k(j + NK)
        if j == WOWARM:
            grp += [valu("v_lshlrev_b32", vTMP[0], 2, vL16),
                    salu(f"s_mul_i32 s3, {sB}, 28672"), salu(f"s_lshl_b32 {sT2}, {sW}, 12"),
                    salu(f"s_add_u32 {sT2}, {sT2}, s3", defs=[sT2]),
                    pfload(vTMP[1], vTMP[0], SRD_WO, sT2, tag=("pfo", 0), n=1, flags=WRMF),
                    salu(f"s_add_u32 {sT2}, {sT2}, 16384", defs=[sT2]),
                    pfload(vTMP[1], vTMP[0], SRD_WO, sT2, tag=("pfo", 1), n=1, flags=WRMF)]
        if j == 13:
            grp += dma_wo(0)
        if j == 15:
            grp += dma_wo(1) + dma_wo(3)
        sync = [WaitVM(waits), barrier()] if j < 16 else []
        fillB = softmax1(j) if j < 16 else []
        if j == 16:
            for qb in range(2):
                fillB.append(valu("v_mov_b32", vU[qb], vL[qb]))
            for qb in range(2):
                fillB.append(Ins(f"v_permlane32_swap_b32 {vL[qb]}, {vU[qb]}", "perm",
                                 defs=[vL[qb], vU[qb]], uses=[vL[qb], vU[qb]]))
            for qb in range(2):
                fillB.append(valu("v_add_f32", vL[qb], vL[qb], vU[qb]))
            for qb in range(2):
                fillB.append(valu("v_rcp_f32", vL[qb], vL[qb]))
        if j >= 1:
            slots = []
            for f in range(16):
                dt, ks = divmod(f, 2)
                for qb in range(2):
                    sl = [mfma(Oacc(dt, qb), Vf(f), Pf(1 - p, qb, ks),
                               Oacc(dt, qb) if (j > 1 or ks > 0) else 0)]
                    if qb == 0:
                        if f + 3 < 16:
                            sl += rd_v(j - 1, f + 3)
                        elif j + 1 < 16:
                            sl += rd_k(j + 1, f + 3 - 16)
                        elif j == 15:
                            sl += rd_v(15, f + 3 - 16)
                    if f == 0 and qb == 1:
                        sl += sync
                    slots.append(sl)
            if j == 16:
                for k in range(NPRE):
                    cv = conv_o(k)
                    for q4 in range(4):
                        slots[7 + 4 * k + q4] += cv[5 * q4: 5 * q4 + 5]
                ext(interleave(slots, fillB, start=0, end=6))
            else:
                ext(interleave(slots, grp + fillB, start=2, end=32))
        else:
            ext(sync)
            ext(grp)
            for s3 in range(3):
                ext(rd_k(1, s3))
            ext(fillB)

    if not FUSE:
        ext(stamp())
    e(WaitVM(("wo", 0)))
    e(barrier())
    ext(dma_wo(2))
    if NWO == 5:
        ext(dma_wo(4))
        for tt in range(2):
            e(valu("v_add_u32", vAWO[2][tt], 4 * WOSLOT, vAWO[0][tt]))
    for f in range(LA):
        ext(rd_wo(f))
    cvl = []
    for ksg in range(NPRE, 32):
        cvl += conv_o(ksg)

    ext(stamp())
    for sg in range(14):
        ps, hs = divmod(sg, 2)
        if sg in (2, 8) and not FINE:
            ext(stamp())
        slots = []
        for r in range(32):
            f = 32 * sg + r
            ks, tt = divmod(r, 2)
            ksg = 16 * hs + ks
            acc = Wacc(ps % 2, tt)
            sl = [mfma(acc, Wf(f), Of(ksg), acc if ksg > 0 else 0)]
            if f + LA < 448:
                sl += rd_wo(f + LA)
            if ps == 0 and f < 60:
                sl += cvl[f * len(cvl) // 60: (f + 1) * len(cvl) // 60]
            if r == 3 and sg + 1 < 14:
                sl += [WaitVM(("wo", sg + 1)), barrier()]
            slots.append(sl)
        fill = []
        if sg >= 1 and sg + NWO - 1 < 14:
            fill += dma_wo(sg + NWO - 1)
        if ps >= 1:
            sp_ = store_pass(ps - 1)
            for k in range(2):
                if not env("NOST", 0):
                    slots[10 + 12 * k] += sp_[2 * hs + k]
        ext(interleave(slots, fill, start=4, end=26))

    ext(stamp())
    for g_ in store_pass(6):
        ext(g_)
    if FUSE:
        ext(fused_tail())
    if STAMP:
        e(WaitAll())
    ext(stamp())
    ext(stamp(True))
    ext(stamp_store())
    e(label("L_end"))
    e(raw("s_endpgm"))

    lines = finalize(st)

    sub = []
    s_ = sub.append
    s_(label("L_slow"))
    s_(nop(2))
    for qb in range(2):
        s_(valu("v_max_f32", vMR[qb], vMR[qb], vT[qb]))
        s_(valu("v_mul_f32", vU[qb], sC, vMR[qb]))
        s_(valu("v_sub_f32", vAL[qb], vM[qb], vU[qb]))
        s_(valu("v_exp_f32", vAL[qb], vAL[qb]))
        s_(valu("v_mov_b32", vM[qb], vU[qb]))
        s_(valu("v_add_f32", vTHR[qb], sTRAW, vMR[qb]))
        s_(valu("v_mul_f32", vL[qb], vL[qb], vAL[qb]))
    s_(salu(f"s_mov_b32 {sFLAG}, 1"))
    s_(nop(2))
    s_(raw(f"s_setpc_b64 {sRET}"))
    s_(label("L_resc"))
    s_(nop(16))
    tt = [vU[0], vU[1], vT[0], vT[1]]
    for dt in range(8):
        for qb in range(2):
            acc = Oacc(dt, qb)
            for r0 in range(0, 16, 4):
                for k in range(4):
                    s_(valu("v_accvgpr_read_b32", tt[k], acc[r0 + k]))
                for k in range(4):
                    s_(valu("v_mul_f32", tt[k], tt[k], vAL[qb]))
                for k in range(4):
                    s_(valu("v_accvgpr_write_b32", acc[r0 + k], tt[k]))
    s_(salu(f"s_mov_b32 {sFLAG}, 0"))
    s_(nop(4))
    s_(raw(f"s_setpc_b64 {sRET}"))
    lines += finalize(sub)
    return lines


NPC = env("NPC", 4)
K2_WGS = 896 // NPC


def gen_k2():
    st = []
    e = st.append
    per = 28 // NPC
    magic = (65536 + per - 1) // per
    assert all((i * magic) >> 16 == i // per for i in range(K2_WGS))
    e(salu(f"s_cmp_ge_u32 s2, {K2_WGS}"))
    e(salu("s_cbranch_scc1 L2_end"))
    e(salu("s_load_dwordx2 s[4:5], s[0:1], 80"))
    e(salu("s_load_dwordx2 s[6:7], s[0:1], 96"))
    e(salu(f"s_mul_i32 s10, s2, {magic}"))
    e(salu("s_lshr_b32 s10, s10, 16"))
    e(salu(f"s_mul_i32 s11, s10, {per}"))
    e(salu("s_sub_u32 s11, s2, s11"))
    e(salu(f"s_mul_i32 s11, s11, {NPC}"))
    lane, w, t1, t2 = V(1), V(2), V(3), V(4)
    e(valu("v_and_b32", lane, 63, V(0)))
    e(valu("v_lshrrev_b32", w, 6, V(0)))
    e(valu("v_mul_u32_u24", t1, 14 * 2048, w))
    e(valu("v_lshl_add_u32", t1, lane, 4, t1))
    e(salu("s_lshl_b32 s12, s11, 10"))
    e(valu("v_add_u32", t1, S(12), t1))
    e(salu("s_and_b32 s13, s10, 15"))
    e(salu("s_lshr_b32 s14, s10, 4"))
    e(salu("s_mul_i32 s13, s13, 229376"))
    e(salu("s_mul_i32 s14, s14, 896"))
    e(salu("s_add_u32 s13, s13, s14"))
    e(salu("s_lshl_b32 s14, s11, 5"))
    e(salu("s_add_u32 s13, s13, s14"))
    e(valu("v_and_b32", t2, 31, lane))
    e(valu("v_lshl_add_u32", t2, w, 5, t2))
    e(valu("v_mul_u32_u24", t2, 1792, t2))
    e(valu("v_lshrrev_b32", lane, 5, lane))
    e(valu("v_lshl_add_u32", t2, lane, 4, t2))
    e(valu("v_add_u32", t2, S(13), t2))
    e(raw("s_waitcnt lgkmcnt(0)", "wait"))
    e(salu("s_mov_b32 s16, s4"))
    e(salu("s_mov_b32 s17, s5"))
    e(salu(f"s_mov_b32 s18, {16 * 128 * 896 * 2}"))
    e(salu("s_mov_b32 s19, 0x00020000"))
    e(salu(f"s_mul_i32 s14, s10, {8 * PART}"))
    e(salu("s_add_u32 s20, s6, s14"))
    e(salu("s_addc_u32 s21, s7, 0"))
    e(salu(f"s_mov_b32 s22, {8 * PART}"))
    e(salu("s_mov_b32 s23, 0x00020000"))
    e(salu("s_mov_b32 s32, 0xffff0000"))
    so, sw = S(16, 4), S(20, 4)
    for g in range(8):
        e(salu(f"s_mov_b32 s{24 + g}, {g * PART}"))
    D0 = 32
    for pc in range(NPC):
        for g in range(8):
            e(bload(V(D0 + (pc * 8 + g) * 4, 4), t1, sw, S(24 + g), off=pc * 1024, flags=K2F))
    acc = V(8, 8)
    tmp = V(16, 8)
    for pc in range(NPC):
        for g in range(8):
            for jj in range(4):
                src = V(D0 + (pc * 8 + g) * 4 + jj)
                dlo, dhi = (acc[2 * jj], acc[2 * jj + 1]) if g == 0 else (tmp[2 * jj], tmp[2 * jj + 1])
                e(valu("v_lshlrev_b32", dlo, 16, src))
                e(valu("v_and_b32", dhi, S(32), src))
            if g:
                for k in range(8):
                    e(valu("v_add_f32", acc[k], acc[k], tmp[k]))
        res = V(24 + (pc % 2) * 4, 4)
        for jj in range(4):
            e(valu("v_cvt_pk_bf16_f32", res[jj], acc[2 * jj], acc[2 * jj + 1]))
        e(bstore(res, t2, so, 0, off=pc * 32, flags=OUTF))
    if STAMP == 3:
        e(salu("s_cmp_lg_u32 s2, 0"))
        e(salu("s_cbranch_scc1 L2_end"))
        e(salu("s_load_dwordx2 s[16:17], s[0:1], 88"))
        e(salu(f"s_add_u32 s20, s6, {64 << 20}"))
        e(salu("s_addc_u32 s21, s7, 0"))
        e(salu("s_mov_b32 s22, 64"))
        e(salu("s_mov_b32 s18, 64"))
        e(valu("v_lshlrev_b32", V(3), 2, V(0)))
        e(raw("s_waitcnt lgkmcnt(0)", "wait"))
        e(bload(V(5), V(3), sw, 0, n=1))
        e(bstore(V(5), V(3), so, 0, n=1))
    e(label("L2_end"))
    e(raw("s_endpgm"))
    return finalize(st)


HEADER = open(os.path.join(os.path.dirname(os.path.abspath(__file__)), "header.txt")).read()


def kd(name, vgpr, accum, sgpr):
    return f""".amdhsa_kernel {name}
  .amdhsa_next_free_vgpr {vgpr}
  .amdhsa_next_free_sgpr {sgpr}
  .amdhsa_accum_offset {accum}
  .amdhsa_group_segment_fixed_size 0
  .amdhsa_kernarg_size 104
  .amdhsa_user_sgpr_count 2
  .amdhsa_user_sgpr_kernarg_segment_ptr 1
  .amdhsa_system_sgpr_workgroup_id_x 1
.end_amdhsa_kernel
"""


def main():
    out = HEADER
    out += f"; @launch kernel={K1} grid=(256,1,1) block=(256,1,1) lds={LDS_BYTES}\n"
    if not FUSE:
        out += f"; @launch kernel={K2} grid=({K2_WGS},1,1) block=(256,1,1) lds=0\n"
    out += '.amdgcn_target "amdgcn-amd-amdhsa--gfx950"\n.text\n'
    for name, gen in ((K1, gen_k1), (K2, gen_k2))[: 1 if FUSE else 2]:
        out += f".globl {name}\n.p2align 8\n.type {name},@function\n{name}:\n"
        out += "\n".join(gen()) + "\n"
    out += "L_text_end:\n"
    out += '.section .rodata,"a"\n.p2align 6\n'
    out += kd(K1, 512, 256, 102)
    if not FUSE:
        out += ".p2align 6\n"
        out += kd(K2, 32 + 32 * NPC, 32 + 32 * NPC, 40)
    dst = sys.argv[1] if len(sys.argv) > 1 else f"cdna_kernels/{NAME}.s"
    open(dst, "w").write(out)
    print("wrote", dst, len(out), "bytes", out.count("\n"), "lines")


if __name__ == "__main__":
    main()
```
